```python
import torch

def _softmax(x, axis=-1):
    return torch.softmax(x, dim=axis)
def _gelu(x):
    return torch.nn.functional.gelu(x, approximate="tanh")
def _silu(x):
    return torch.nn.functional.silu(x)
def _sigmoid(x):
    return torch.sigmoid(x)
def _layernorm(x, axis=-1, eps=1e-5):
    m = x.mean(dim=axis, keepdim=True)
    v = x.var(dim=axis, keepdim=True, unbiased=False)
    return (x - m) / torch.sqrt(v + eps)
def _scatter_add(tgt, idx, src, axis=0):
    return tgt.clone().index_add_(axis, idx, src)
def _segment_sum(src, seg, n):
    out = torch.zeros((n,) + src.shape[1:], dtype=src.dtype)
    return out.index_add_(0, seg, src)
def _pad(x, pw):
    flat = tuple(v for pair in reversed(pw) for v in pair)
    return torch.nn.functional.pad(x, flat)

kernel_name = 'gated_mix__mha_block__dense_activation_mish__prompt'

def setup_inputs():

    _w = (lambda a: (lambda t: t.to(torch.bfloat16) if t.is_floating_point() else t)(torch.as_tensor(a)))
    def _A_setup():
        B, S, D, H = 1, 2048, 512, 32
        return {
            "x": _w((lambda *s: torch.randn(*s, dtype=torch.bfloat16) * 0.05)(B, S, D)),
            "wqkv": _w((lambda *s: torch.randn(*s, dtype=torch.bfloat16) * 0.8)(D, 3 * D)),
            "wo": _w((lambda *s: torch.randn(*s, dtype=torch.bfloat16) * 0.05)(D, D)),
        }
    _A_in = _A_setup()

    def _B_setup():
        B, S, D, F = 1, 2048, 512, 1792
        return {
            "x": _w((lambda *s: torch.randn(*s, dtype=torch.bfloat16) * 0.05)(B, S, D)),
            "w1": _w((lambda *s: torch.randn(*s, dtype=torch.bfloat16) * 12.8)(D, F) * (D ** -0.5)),
            "b1": _w((lambda *s: torch.randn(*s, dtype=torch.bfloat16) * 0.2)(F)),
            "w2": _w((lambda *s: torch.randn(*s, dtype=torch.bfloat16) * 0.1)(F, D) * (F ** -0.5)),
        }
    _B_in = _B_setup()

    return {
        "A_x": _A_in["x"],
        "A_wqkv": _A_in["wqkv"],
        "A_wo": _A_in["wo"],
        "B_x": _B_in["x"],
        "B_w1": _B_in["w1"],
        "B_b1": _B_in["b1"],
        "B_w2": _B_in["w2"],
        "gate_w": _w((lambda *s: torch.randn(*s, dtype=torch.bfloat16) * 0.05)(512) * 16.0),
    }

def reference(A_x, A_wqkv, A_wo, B_x, B_w1, B_b1, B_w2, gate_w):
    def _A_ref(x, wqkv, wo):
        B, S, D = x.shape
        H = 32
        Dh = D // H
        qkv = (lambda x, *d: x.permute(*d))((x @ wqkv).reshape(B, S, 3, H, Dh), 2, 0, 3, 1, 4)
        q, k, v = qkv[0], qkv[1], qkv[2]
        scores = torch.einsum("bhqd,bhkd->bhqk", q, k) * (Dh ** -0.5)
        p = _softmax(scores, axis=-1)
        o = torch.einsum("bhqk,bhkd->bhqd", p, v)
        return (lambda x, *d: x.permute(*d))(o, 0, 2, 1, 3).reshape(B, S, D) @ wo

    def _B_ref(x, w1, b1, w2):
        h = torch.einsum("bsd,df->bsf", x, w1) + b1
        sp = torch.log1p(torch.exp(-torch.abs(h))) + torch.where(h > 0, h, torch.zeros_like(h))
        act = h * torch.tanh(sp)
        return torch.einsum("bsf,fd->bsd", act, w2)

    x = A_x
    g = _sigmoid((x * gate_w).sum(-1, keepdims=True))
    a = _A_ref(x, A_wqkv, A_wo)
    b = _B_ref(x, B_w1, B_b1, B_w2)
    return g * a + (1 - g) * b
```

```python
class Asm:
    def __init__(self):
        self.lines = []
        self.vm = []
        self.lg = []
        self.n = 0
    def raw(self, s):
        self.lines.append(s)
    def label(self, s):
        self.lines.append(s + ":")
    def c(self, s):
        self.lines.append("    ; " + s)
    def i(self, s):
        self.lines.append("    " + s)
        if s.startswith("s_nop"):
            self.n += int(s.split()[1]) + 1
        else:
            self.n += 1
    def vmem(self, s, tag=None):
        self.i(s); self.vm.append(tag)
        assert len(self.vm) <= 63, "too many vmem outstanding"
    def lds(self, s, tag=None):
        self.i(s); self.lg.append(tag)
    def _cnt(self, q, tag):
        idx = [k for k, t in enumerate(q) if t == tag or (isinstance(tag, (list, tuple, set)) and t in tag)]
        if not idx:
            return None
        return len(q) - 1 - idx[-1]
    def wait(self, vm=None, lg=None):
        parts = []
        if vm is not None:
            n = 0 if vm == "all" else self._cnt(self.vm, vm)
            if n is not None and (vm != "all" or self.vm):
                parts.append(f"vmcnt({n})")
                self.vm = self.vm[len(self.vm) - n:] if n else []
        if lg is not None:
            n = 0 if lg == "all" else self._cnt(self.lg, lg)
            if n is not None and (lg != "all" or self.lg):
                assert n <= 15, n
                parts.append(f"lgkmcnt({n})")
                self.lg = self.lg[len(self.lg) - n:] if n else []
        if parts:
            self.i("s_waitcnt " + " ".join(parts))
    def text(self):
        return "\n".join(self.lines) + "\n"

def kdesc(name, vgpr, sgpr, accum):
    return f""".p2align 6
.amdhsa_kernel {name}
  .amdhsa_next_free_vgpr {vgpr}
  .amdhsa_next_free_sgpr {sgpr}
  .amdhsa_accum_offset {accum}
  .amdhsa_group_segment_fixed_size 0
  .amdhsa_kernarg_size 88
  .amdhsa_user_sgpr_count 2
  .amdhsa_user_sgpr_kernarg_segment_ptr 1
  .amdhsa_system_sgpr_workgroup_id_x 1
.end_amdhsa_kernel
"""
def khead(name):
    return f""".globl {name}
.p2align 8
.type {name},@function
{name}:
"""
def vr(a, n=1):
    return f"v{a}" if n == 1 else f"v[{a}:{a+n-1}]"
def ar(a, n=1):
    return f"a{a}" if n == 1 else f"a[{a}:{a+n-1}]"
def sr(a, n=1):
    return f"s{a}" if n == 1 else f"s[{a}:{a+n-1}]"
import struct
def f2u(f):
    return struct.unpack("<I", struct.pack("<f", f))[0]
def fhex(f):
    return "0x%08x" % f2u(f)
```

```python
import sys, math
from asmlib import *

NAME = "gated_mix__mha_block__dense_activation_mish__prompt"
QF_OFF = 0
KV_OFF = 2 << 20
AF_OFF = 6 << 20
WF_OFF = 16 << 20
G_OFF = 19 << 20
WS_BYTES = 32 << 20
LOG2E = 1.4426950408889634
QSCALE = 0.25 * LOG2E

def srd(a, s, nbytes):
    a.i(f"s_mov_b32 s{s+2}, {nbytes}")
    a.i(f"s_mov_b32 s{s+3}, 0x00020000")

def gen_k1():
    a = Asm()
    a.raw(khead("k1_kernel"))
    a.i("s_cmp_ge_u32 s2, 256")
    a.i("s_cbranch_scc1 K1_END")
    SX, SWQ, SWO, SW1, SB1, SW2, SG, SWS = 8, 12, 16, 20, 24, 28, 32, 36
    for s, off in [(SX, 0), (SWQ, 8), (SWO, 16), (SW1, 32), (SB1, 40), (SW2, 48), (SG, 56), (SWS, 80)]:
        a.i(f"s_load_dwordx2 s[{s}:{s+1}], s[0:1], {off}")
    srd(a, SX, 2048*512*2); srd(a, SWQ, 512*1536*2); srd(a, SWO, 512*512*2); srd(a, SW1, 512*1792*2)
    srd(a, SB1, 1792*2); srd(a, SW2, 1792*512*2); srd(a, SG, 512*2); srd(a, SWS, WS_BYTES)
    sW, sCB, sRB, sXO, sM0W, sSOW, sT0, sT1, sT2, sRT = 40, 41, 42, 43, 44, 45, 46, 47, 48, 49
    sLOG2E, sQS = 50, 51
    vL, vT, vXO, vWO, vTO, vTR0, vTR1, vTT, vST, vSV, vT2, vT3 = 1, 2, 3, 4, 5, 6, 7, 8, 9, 10, 11, 12
    ACC = [16, 32]
    WF = [48, 52, 56, 60]
    TMP = 64
    PK = 112
    BIAS = 128
    BONE = 144
    GX, GW = 148, 156
    a.i(f"v_and_b32 v{vL}, 63, v0")
    a.i(f"v_lshrrev_b32 v{vT}, 6, v0")
    a.i(f"s_and_b32 s{sCB}, s2, 15")
    a.i(f"v_readfirstlane_b32 s{sW}, v{vT}")
    a.i(f"s_lshr_b32 s{sRB}, s2, 4")
    a.i(f"s_mov_b32 s{sLOG2E}, {fhex(LOG2E)}")
    a.i(f"s_mov_b32 s{sQS}, {fhex(QSCALE)}")
    a.i(f"s_lshl_b32 s{sRT}, s{sRB}, 2")
    a.i(f"s_add_u32 s{sRT}, s{sRT}, s{sW}")
    a.i(f"s_lshl_b32 s{sXO}, s{sRT}, 15")
    a.i(f"s_lshl_b32 s{sM0W}, s{sW}, 13")
    a.i(f"v_and_b32 v{vT}, 31, v{vL}")
    a.i(f"v_lshlrev_b32 v{vXO}, 10, v{vT}")
    a.i(f"v_lshrrev_b32 v{vT2}, 5, v{vL}")
    a.i(f"v_lshl_add_u32 v{vXO}, v{vT2}, 4, v{vXO}")
    a.i(f"v_lshrrev_b32 v{vT}, 2, v{vL}")
    a.i(f"v_and_b32 v{vT3}, 3, v{vL}")
    a.i(f"v_lshlrev_b32 v{vTO}, 10, v{vT}")
    a.i(f"v_lshl_add_u32 v{vTO}, v{vT3}, 4, v{vTO}")
    a.i(f"v_and_b32 v{vT}, 3, v{vT}")
    a.i(f"v_lshlrev_b32 v{vTR0}, 9, v{vT2}")
    a.i(f"v_lshl_add_u32 v{vTR0}, v{vT}, 6, v{vTR0}")
    a.i(f"v_lshl_add_u32 v{vTR0}, v{vT3}, 3, v{vTR0}")
    a.i(f"v_bfe_u32 v13, v{vL}, 4, 1")
    a.i(f"v_lshl_add_u32 v{vTR0}, v13, 5, v{vTR0}")
    a.i(f"v_add_u32 v{vTR1}, 0x10000, v{vTR0}")
    a.i(f"v_lshlrev_b32 v{vTT}, 8, v{vT2}")
    a.i(f"v_lshl_add_u32 v{vTT}, v{vT}, 6, v{vTT}")
    a.i(f"v_and_b32 v14, 1, v{vT3}")
    a.i(f"v_lshl_add_u32 v{vTT}, v14, 5, v{vTT}")
    a.i(f"v_lshl_add_u32 v{vTT}, v13, 4, v{vTT}")
    a.i(f"v_lshrrev_b32 v14, 1, v{vT3}")
    a.i(f"v_lshl_add_u32 v{vTT}, v14, 3, v{vTT}")
    a.i(f"s_mul_i32 s{sT0}, s{sW}, 5120")
    a.i(f"s_add_u32 s{sT0}, s{sT0}, 131072")
    a.i(f"v_add_u32 v{vTT}, s{sT0}, v{vTT}")
    a.i(f"v_lshlrev_b32 v{vST}, 4, v{vL}")
    a.i(f"v_and_b32 v14, 15, v{vL}")
    a.i(f"v_lshlrev_b32 v{vSV}, 4, v14")
    a.i(f"v_lshl_add_u32 v{vSV}, v{vT2}, 8, v{vSV}")
    a.i(f"v_lshl_add_u32 v{vSV}, v13, 17, v{vSV}")
    a.i(f"v_add_u32 v{vSV}, 1024, v{vSV}")
    a.i("s_waitcnt lgkmcnt(0)")
    a.i(f"s_cmp_ge_u32 s{sCB}, 8")
    a.i("s_cbranch_scc1 K1_F")

    def path(kind):
        isF = kind == "F"
        ldw = 3584 if isF else 3072
        SW = SW1 if isF else SWQ
        a.vm = []; a.lg = []
        a.i(f"v_lshrrev_b32 v{vT}, 2, v{vL}")
        a.i(f"v_mul_u32_u24 v{vWO}, {ldw}, v{vT}")
        a.i(f"v_lshl_add_u32 v{vWO}, v{vT3}, 4, v{vWO}")
        a.i(f"s_mul_i32 s{sSOW}, s{sW}, {128*ldw}")
        if isF:
            a.i(f"s_sub_u32 s{sCB}, s{sCB}, 8")
            a.i(f"s_mul_i32 s{sT0}, s{sCB}, 448")
            tiles = [("F", 64*t) for t in range(7)]
        else:
            a.i(f"s_lshl_b32 s{sT0}, s{sCB}, 7")
            tiles = [("Q", 0), ("Q", 64), ("K", 1024), ("K", 1024+64), ("V", 2048), ("V", 2048+64)]
        a.i(f"s_add_u32 s{sSOW}, s{sSOW}, s{sT0}")
        NT = len(tiles)
        def dma(t):
            slot = t % 4
            for i in range(8):
                a.i(f"s_add_u32 m0, s{sM0W}, {slot*32768 + 1024*i}")
                a.i(f"s_add_u32 s{sT1}, s{sSOW}, {tiles[t][1] + 16*i*ldw}")
                a.vmem(f"buffer_load_dwordx4 v{vWO}, s[{SW}:{SW+3}], s{sT1} offen lds", ("W", t))
        if isF:
            a.i(f"v_and_b32 v{vT}, 31, v{vL}")
            a.i(f"v_lshlrev_b32 v{vT}, 1, v{vT}")
            for r in range(16):
                if r % 2 == 1 or r >= 14:
                    a.i(f"v_mov_b32 v{BIAS+r}, 0")
            for t in range(7):
                a.vmem(f"buffer_load_ushort v{BIAS+2*t}, v{vT}, s[{SB1}:{SB1+3}], s{sT0} offen offset:{64*t}", "bias")
            a.i(f"v_cmp_gt_u32 vcc, 32, v{vL}")
            a.i(f"v_mov_b32 v{BONE+1}, 0")
            a.i(f"v_mov_b32 v{BONE+2}, 0")
            a.i(f"v_mov_b32 v{BONE+3}, 0")
            a.i(f"v_mov_b32 v{vT}, 0x3f80")
            a.i(f"v_cndmask_b32 v{BONE}, 0, v{vT}, vcc")
        dma(0)
        for s in range(32):
            a.vmem(f"buffer_load_dwordx4 a[{4*s}:{4*s+3}], v{vXO}, s[{SX}:{SX+3}], s{sXO} offen offset:{32*s}", ("x", s))
        dma(1); dma(2)

        def epilogue(t):
            kindt, cofs = tiles[t]
            acc = ACC[t % 2]
            pk = PK + 8 * (t % 2)
            F = []
            def I(s): F.append(lambda s=s: a.i(s))
            def ST(s): F.append(lambda s=s: a.vmem(s, "st"))
            if kindt == "F":
                for gq in range(4):
                    els = [4*gq + e for e in range(4)]
                    T = lambda e, k: TMP + 12*(gq % 2) + 3*(e % 4) + k
                    for e in els: I(f"v_mul_f32 v{T(e,0)}, s{sLOG2E}, v{acc+e}")
                    for e in els: I(f"v_min_f32 v{T(e,0)}, 0x41f00000, v{T(e,0)}")
                    for e in els: I(f"v_exp_f32 v{T(e,0)}, v{T(e,0)}")
                    for e in els: I(f"v_add_f32 v{T(e,1)}, 2.0, v{T(e,0)}")
                    for e in els: I(f"v_mul_f32 v{T(e,1)}, v{T(e,0)}, v{T(e,1)}")
                    for e in els: I(f"v_add_f32 v{T(e,2)}, 2.0, v{T(e,1)}")
                    for e in els: I(f"v_rcp_f32 v{T(e,2)}, v{T(e,2)}")
                    for e in els: I(f"v_mul_f32 v{T(e,1)}, v{T(e,1)}, v{T(e,2)}")
                    for e in els: I(f"v_mul_f32 v{T(e,0)}, v{acc+e}, v{T(e,1)}")
                    I(f"v_cvt_pk_bf16_f32 v{pk+2*gq}, v{T(els[0],0)}, v{T(els[1],0)}")
                    I(f"v_cvt_pk_bf16_f32 v{pk+2*gq+1}, v{T(els[2],0)}, v{T(els[3],0)}")
                I(f"s_mul_i32 s{sT2}, s{sRT}, 144")
                I(f"s_mul_i32 s{sT1}, s{sCB}, 14")
                I(f"s_add_u32 s{sT2}, s{sT2}, s{sT1}")
                I(f"s_lshl_b32 s{sT2}, s{sT2}, 10")
                I(f"s_add_u32 s{sT2}, s{sT2}, {AF_OFF + (32 + 2*t)*1024}")
                ST(f"buffer_store_dwordx4 v[{pk}:{pk+3}], v{vST}, s[{SWS}:{SWS+3}], s{sT2} offen")
                ST(f"buffer_store_dwordx4 v[{pk+4}:{pk+7}], v{vST}, s[{SWS}:{SWS+3}], s{sT2} offen offset:1024")
            else:
                j = t % 2
                if kindt == "Q":
                    for e in range(16): I(f"v_mul_f32 v{TMP+e}, s{sQS}, v{acc+e}")
                    src = TMP
                else:
                    src = acc
                for e in range(8): I(f"v_cvt_pk_bf16_f32 v{pk+e}, v{src+2*e}, v{src+2*e+1}")
                if kindt == "Q":
                    I(f"s_lshl_b32 s{sT2}, s{sCB}, 18")
                    I(f"s_lshl_b32 s{sT1}, s{sRT}, 10")
                    I(f"s_add_u32 s{sT2}, s{sT2}, s{sT1}")
                    I(f"s_add_u32 s{sT2}, s{sT2}, {QF_OFF + 2*j*65536}")
                    I(f"s_add_u32 s{sT1}, s{sT2}, 65536")
                    ST(f"buffer_store_dwordx4 v[{pk}:{pk+3}], v{vST}, s[{SWS}:{SWS+3}], s{sT2} offen")
                    ST(f"buffer_store_dwordx4 v[{pk+4}:{pk+7}], v{vST}, s[{SWS}:{SWS+3}], s{sT1} offen")
                else:
                    I(f"s_lshl_b32 s{sT2}, s{sCB}, 19")
                    I(f"s_lshl_b32 s{sT1}, s{sRT}, 11")
                    I(f"s_add_u32 s{sT2}, s{sT2}, s{sT1}")
                    I(f"s_add_u32 s{sT2}, s{sT2}, {KV_OFF + 2*j*131072}")
                    if kindt == "K":
                        I(f"s_add_u32 s{sT1}, s{sT2}, 131072")
                        ST(f"buffer_store_dwordx4 v[{pk}:{pk+3}], v{vST}, s[{SWS}:{SWS+3}], s{sT2} offen")
                        ST(f"buffer_store_dwordx4 v[{pk+4}:{pk+7}], v{vST}, s[{SWS}:{SWS+3}], s{sT1} offen")
                    else:
                        ST(f"buffer_store_dwordx4 v[{pk}:{pk+3}], v{vSV}, s[{SWS}:{SWS+3}], s{sT2} offen")
                        ST(f"buffer_store_dwordx4 v[{pk+4}:{pk+7}], v{vSV}, s[{SWS}:{SWS+3}], s{sT2} offen offset:512")
            return F

        fill = []
        last_mfma_n = -100
        for t in range(NT):
            kindt, cofs = tiles[t]
            slot = t % 4
            acc = ACC[t % 2]
            trv = vTR0 if slot < 2 else vTR1
            tro = (slot % 2) * 32768
            a.c(f"---- tile {t} ({kindt})")
            a.wait(vm=("W", t))
            a.i("s_barrier")
            def rd(s):
                b = WF[s % 4]
                a.lds(f"ds_read_b64_tr_b16 v[{b}:{b+1}], v{trv} offset:{tro + 1024*s}", ("wf", s))
                a.lds(f"ds_read_b64_tr_b16 v[{b+2}:{b+3}], v{trv} offset:{tro + 1024*s + 256}", ("wf", s))
            rd(0); rd(1); rd(2)
            if t + 3 < NT:
                dma(t + 3)
            if t == 1:
                a.i(f"s_lshl_b32 s{sT1}, s2, 3")
                a.i(f"s_lshl_b32 s{sT2}, s{sW}, 1")
                a.i(f"s_add_u32 s{sT1}, s{sT1}, s{sT2}")
                a.i(f"s_lshl_b32 s{sT1}, s{sT1}, 10")
                a.i(f"v_lshlrev_b32 v13, 5, v{vL}")
                a.i(f"v_and_b32 v14, 0x3ff, v13")
                a.vmem(f"buffer_load_dwordx4 v[{GX}:{GX+3}], v13, s[{SX}:{SX+3}], s{sT1} offen", "g")
                a.vmem(f"buffer_load_dwordx4 v[{GX+4}:{GX+7}], v13, s[{SX}:{SX+3}], s{sT1} offen offset:16", "g")
                a.vmem(f"buffer_load_dwordx4 v[{GW}:{GW+3}], v14, s[{SG}:{SG+3}], 0 offen", "g")
                a.vmem(f"buffer_load_dwordx4 v[{GW+4}:{GW+7}], v14, s[{SG}:{SG+3}], 0 offen offset:16", "g")
            if t == 3 and not isF:
                a.i(f"s_mul_i32 s{sT0}, s{sW}, 5120")
                a.i(f"s_add_u32 s{sT0}, s{sT0}, 131072")
                a.i(f"s_lshl_b32 s52, s{sCB}, 2")
                a.i(f"s_add_u32 s52, s52, s{sW}")
                a.i(f"s_lshl_b32 s{sT1}, s52, 14")
                a.i(f"s_lshl_b32 s{sT2}, s{sRB}, 6")
                a.i(f"s_mov_b32 m0, s{sT0}")
                a.i(f"s_add_u32 s{sT1}, s{sT1}, s{sT2}")
                a.vmem(f"buffer_load_dwordx4 v{vTO}, s[{SWO}:{SWO+3}], s{sT1} offen lds", "tr")
                for j in range(4):
                    a.i(f"s_add_u32 s{53+j}, s{sW}, {4*j}")
                    if j == 3:
                        a.i(f"s_min_u32 s{53+j}, s{53+j}, 13")
                    a.i(f"s_mul_i32 s{sT1}, s{sCB}, 14")
                    a.i(f"s_add_u32 s{53+j}, s{53+j}, s{sT1}")
                    a.i(f"s_lshl_b32 s{sT1}, s{53+j}, 14")
                    a.i(f"s_add_u32 m0, s{sT0}, {1024*(j+1)}")
                    a.i(f"s_add_u32 s{sT1}, s{sT1}, s{sT2}")
                    a.vmem(f"buffer_load_dwordx4 v{vTO}, s[{SW2}:{SW2+3}], s{sT1} offen lds", "tr")
            per = -(-len(fill) // 28) if fill else 0
            if isF:
                if t == 0: a.wait(vm="bias")
                a.i(f"v_mfma_f32_32x32x16_bf16 v[{acc}:{acc+15}], v[{BIAS+2*t}:{BIAS+2*t+3}], v[{BONE}:{BONE+3}], 0")
            for s in range(32):
                if s + 3 < 32: rd(s + 3)
                if t == 0 and s % 4 == 0:
                    a.wait(vm=("x", s + 3), lg=("wf", s))
                else:
                    a.wait(lg=("wf", s))
                b = WF[s % 4]
                cin = "0" if (s == 0 and not isF) else f"v[{acc}:{acc+15}]"
                if kindt == "V":
                    a.i(f"v_mfma_f32_32x32x16_bf16 v[{acc}:{acc+15}], a[{4*s}:{4*s+3}], v[{b}:{b+3}], {cin}")
                else:
                    a.i(f"v_mfma_f32_32x32x16_bf16 v[{acc}:{acc+15}], v[{b}:{b+3}], a[{4*s}:{4*s+3}], {cin}")
                if fill and a.n - last_mfma_n >= 14:
                    for _ in range(per):
                        if fill: fill.pop(0)()
            while fill: fill.pop(0)()
            last_mfma_n = a.n
            fill = epilogue(t)
        a.c("---- gate")
        a.wait(vm="g")
        a.i(f"v_mov_b32 v13, 0")
        a.i(f"v_mov_b32 v14, 0")
        for k in range(8):
            a.i(f"v_dot2_f32_bf16 v{13+k%2}, v{GX+k}, v{GW+k}, v{13+k%2}")
        a.i("s_nop 2")
        a.i(f"v_add_f32 v13, v13, v14")
        a.i("s_nop 1")
        a.i(f"v_add_f32_dpp v13, v13, v13 quad_perm:[1,0,3,2] row_mask:0xf bank_mask:0xf")
        a.i("s_nop 1")
        a.i(f"v_add_f32_dpp v13, v13, v13 quad_perm:[2,3,0,1] row_mask:0xf bank_mask:0xf")
        a.i("s_nop 1")
        a.i(f"v_add_f32_dpp v13, v13, v13 row_half_mirror row_mask:0xf bank_mask:0xf")
        a.i("s_nop 1")
        a.i(f"v_add_f32_dpp v13, v13, v13 row_mirror row_mask:0xf bank_mask:0xf")
        a.lds(f"ds_swizzle_b32 v14, v13 offset:0x401F", "sw")
        while fill: fill.pop(0)()
        a.wait(lg="sw")
        a.i(f"v_add_f32 v13, v13, v14")
        a.i(f"v_mul_f32 v13, s{sLOG2E}, v13")
        a.i(f"v_exp_f32 v13, -v13")
        a.i("s_nop 0")
        a.i(f"v_add_f32 v13, 1.0, v13")
        a.i(f"v_rcp_f32 v13, v13")
        a.i(f"s_lshl_b32 s{sT1}, s2, 3")
        a.i(f"s_lshl_b32 s{sT2}, s{sW}, 1")
        a.i(f"s_add_u32 s{sT1}, s{sT1}, s{sT2}")
        a.i(f"s_lshl_b32 s{sT1}, s{sT1}, 2")
        a.i(f"s_add_u32 s{sT1}, s{sT1}, {G_OFF}")
        a.i(f"v_lshrrev_b32 v14, 5, v{vL}")
        a.i(f"v_lshlrev_b32 v14, 2, v14")
        a.i(f"s_mov_b32 s58, 1")
        a.i(f"s_mov_b32 s59, 1")
        a.i(f"s_mov_b64 exec, s[58:59]")
        a.vmem(f"buffer_store_dword v13, v14, s[{SWS}:{SWS+3}], s{sT1} offen", "st")
        a.i(f"s_mov_b64 exec, -1")
        if not isF:
            a.c("---- transposes")
            a.wait(vm="tr")
            for j in range(5):
                b = TMP + 4*j
                a.lds(f"ds_read_b64_tr_b16 v[{b}:{b+1}], v{vTT} offset:{1024*j}", ("tt", j))
                a.lds(f"ds_read_b64_tr_b16 v[{b+2}:{b+3}], v{vTT} offset:{1024*j+512}", ("tt", j))
            a.i(f"s_mul_i32 s{sT2}, s{sRB}, 144")
            for j in range(5):
                b = TMP + 4*j
                a.i(f"s_add_u32 s{sT1}, s{sT2}, s{52+j}")
                a.i(f"s_lshl_b32 s{sT1}, s{sT1}, 10")
                a.i(f"s_add_u32 s{sT1}, s{sT1}, {WF_OFF + (32*1024 if j else 0)}")
                a.wait(lg=("tt", j))
                a.vmem(f"buffer_store_dwordx4 v[{b}:{b+3}], v{vST}, s[{SWS}:{SWS+3}], s{sT1} offen", "st")
        a.i("s_endpgm")

    path("QKV")
    a.label("K1_F")
    path("F")
    a.label("K1_END")
    a.i("s_endpgm")
    return a.text(), kdesc("k1_kernel", 168 + 128, 64, 168), 131072 + 4*5120

def gen_k2():
    a = Asm()
    a.raw(khead("k2_kernel"))
    a.i("s_cmp_ge_u32 s2, 256")
    a.i("s_cbranch_scc1 K2_END")
    SWS = 8
    a.i(f"s_load_dwordx2 s[8:9], s[0:1], 80")
    srd(a, SWS, WS_BYTES)
    sW, sH, sQT, sT0, sT1, sCNT, sNMAX, sFIRST = 12, 13, 14, 15, 16, 17, 18, 19
    sVM = 20
    vL, vT, vLO, vKA, vVA, vG, vM, vT2 = 1, 2, 3, 4, 5, 6, 7, 8
    Q = 12
    NEGM = 16
    S = [32, 48]
    O = 64
    P = 80
    KF = [88, 92]
    VF = [96, 104]
    NV = 112
    a.i(f"v_and_b32 v{vL}, 63, v0")
    a.i(f"v_lshrrev_b32 v{vT}, 6, v0")
    a.i(f"s_and_b32 s{sT0}, s2, 7")
    a.i(f"v_readfirstlane_b32 s{sW}, v{vT}")
    a.i(f"s_lshl_b32 s{sT0}, s{sT0}, 2")
    a.i(f"s_bfe_u32 s{sT1}, s2, 0x20003")
    a.i(f"s_add_u32 s{sH}, s{sT0}, s{sT1}")
    a.i(f"s_lshr_b32 s{sQT}, s2, 5")
    a.i(f"s_lshl_b32 s{sQT}, s{sQT}, 3")
    a.i(f"s_add_u32 s{sQT}, s{sQT}, s{sW}")
    a.i(f"v_lshlrev_b32 v{vLO}, 4, v{vL}")
    a.i(f"s_mov_b32 s{sVM}, 0xffff")
    a.i(f"s_mov_b32 s{sVM+1}, 0xffff")
    a.i(f"s_lshl_b32 s{sT0}, s{sH}, 6")
    a.i(f"s_add_u32 s{sT0}, s{sT0}, s{sQT}")
    a.i(f"s_lshl_b32 s{sT0}, s{sT0}, 10")
    if QF_OFF: a.i(f"s_add_u32 s{sT0}, s{sT0}, {QF_OFF}")
    a.i(f"s_lshl_b32 s22, s{sH}, 17")
    a.i(f"s_lshl_b32 s23, s{sW}, 10")
    a.i(f"s_add_u32 s22, s22, s23")
    a.i("s_waitcnt lgkmcnt(0)")
    a.vmem(f"buffer_load_dwordx4 v[{Q}:{Q+3}], v{vLO}, s[{SWS}:{SWS+3}], s{sT0} offen", "q")
    for t in range(16):
        a.i(f"s_add_u32 m0, s23, {8192*t}")
        a.i(f"s_add_u32 s{sT1}, s22, {KV_OFF + 8192*t}")
        a.vmem(f"buffer_load_dwordx4 v{vLO}, s[{SWS}:{SWS+3}], s{sT1} offen lds", ("kv", t))
    a.i(f"v_and_b32 v{vT}, 31, v{vL}")
    a.i(f"v_lshlrev_b32 v{vT}, 2, v{vT}")
    a.i(f"s_lshl_b32 s{sT0}, s{sQT}, 7")
    a.i(f"s_add_u32 s{sT0}, s{sT0}, {G_OFF}")
    a.vmem(f"buffer_load_dword v{vG}, v{vT}, s[{SWS}:{SWS+3}], s{sT0} offen", "g")
    for r in range(16):
        a.i(f"v_mov_b32 v{VF[0]+r}, 0x3f803f80")
    a.i(f"s_mov_b32 s{sNMAX}, 1")
    a.i(f"s_mov_b32 s{sFIRST}, 1")
    a.wait(vm=("kv", 2))
    a.i("s_barrier")
    a.vm = []
    a.label("K2_MAXPASS")
    a.i(f"v_mov_b32 v{vKA}, v{vLO}")
    a.i(f"v_mov_b32 v{vM}, 0xff800000")
    a.i(f"s_mov_b32 s{sCNT}, s{sNMAX}")
    a.label("K2_MAXLOOP")
    a.i(f"ds_read_b128 v[{KF[0]}:{KF[0]+3}], v{vKA}")
    a.i(f"v_add_u32 v{vKA}, 2048, v{vKA}")
    a.i("s_waitcnt lgkmcnt(0)")
    a.i(f"v_mfma_f32_32x32x16_bf16 v[{S[0]}:{S[0]+15}], v[{KF[0]}:{KF[0]+3}], v[{Q}:{Q+3}], 0")
    a.i("s_nop 11")
    for r in range(8):
        a.i(f"v_max3_f32 v{vM}, v{S[0]+2*r}, v{S[0]+2*r+1}, v{vM}")
    a.i(f"s_sub_u32 s{sCNT}, s{sCNT}, 1")
    a.i(f"s_cmp_lg_u32 s{sCNT}, 0")
    a.i("s_cbranch_scc1 K2_MAXLOOP")
    a.i(f"v_mov_b32 v{vT}, v{vM}")
    a.i("s_nop 1")
    a.i(f"v_permlane32_swap_b32 v{vM}, v{vT}")
    a.i("s_nop 1")
    a.i(f"v_max_f32 v{vM}, v{vM}, v{vT}")
    for r in range(16):
        a.i(f"v_sub_f32 v{NEGM+r}, 0, v{vM}")
    a.i(f"v_mov_b32 v{vKA}, v{vLO}")
    a.i(f"v_and_b32 v{vT}, 15, v{vL}")
    a.i(f"v_lshlrev_b32 v{vVA}, 4, v{vT}")
    a.i(f"v_lshrrev_b32 v{vT}, 5, v{vL}")
    a.i(f"v_lshl_add_u32 v{vVA}, v{vT}, 8, v{vVA}")
    a.i(f"v_add_u32 v{vVA}, 1024, v{vVA}")
    def rdK(t, buf):
        a.i(f"ds_read_b128 v[{KF[buf]}:{KF[buf]+3}], v{vKA} offset:{2048*t}")
    def rdV(t, buf):
        a.i(f"s_mov_b64 exec, s[{sVM}:{sVM+1}]")
        a.i(f"ds_read_b128 v[{VF[buf]}:{VF[buf]+3}], v{vVA} offset:{2048*t}")
        a.i(f"ds_read_b128 v[{VF[buf]+4}:{VF[buf]+7}], v{vVA} offset:{2048*t+512}")
        a.i(f"s_mov_b64 exec, -1")
    rdK(0, 0); rdK(1, 1); rdV(0, 0)
    for r in range(16):
        a.i(f"v_mov_b32 v{O+r}, 0")
    for r in range(4, 8):
        a.i(f"v_mov_b32 v{P+r}, 0")
    a.i("s_waitcnt lgkmcnt(3)")
    a.i(f"v_mfma_f32_32x32x16_bf16 v[{S[0]}:{S[0]+15}], v[{KF[0]}:{KF[0]+3}], v[{Q}:{Q+3}], v[{NEGM}:{NEGM+15}]")
    a.i(f"s_mov_b32 s{sCNT}, 8")
    a.i("s_nop 9")
    a.label("K2_LOOP")
    for t in range(8):
        cur, nxt = t % 2, (t + 1) % 2
        sc = S[cur]
        e = lambda k: a.i(f"v_exp_f32 v{sc+k}, v{sc+k}")
        c = lambda k: a.i(f"v_cvt_pk_bf16_f32 v{P+k}, v{sc+2*k}, v{sc+2*k+1}")
        a.i("s_waitcnt lgkmcnt(2)")
        a.i(f"v_mfma_f32_32x32x16_bf16 v[{S[nxt]}:{S[nxt]+15}], v[{KF[nxt]}:{KF[nxt]+3}], v[{Q}:{Q+3}], v[{NEGM}:{NEGM+15}]")
        rdK(t + 2, cur)
        e(0); e(1); e(2); c(0); e(3); e(4); c(1)
        a.i(f"v_mfma_f32_32x32x16_bf16 v[{O}:{O+15}], v[{VF[nxt]+4}:{VF[nxt]+7}], v[{P+4}:{P+7}], v[{O}:{O+15}]")
        rdV(t + 1, nxt)
        e(5); e(6); c(2); e(7); e(8); c(3); e(9); e(10)
        a.i("s_waitcnt lgkmcnt(3)")
        a.i(f"v_mfma_f32_32x32x16_bf16 v[{O}:{O+15}], v[{VF[cur]}:{VF[cur]+3}], v[{P}:{P+3}], v[{O}:{O+15}]")
        c(4); e(11); e(12); c(5); e(13); e(14); c(6); e(15)
        if t == 7:
            a.i(f"v_add_u32 v{vKA}, 0x4000, v{vKA}")
            c(7)
            a.i(f"v_add_u32 v{vVA}, 0x4000, v{vVA}")
        else:
            a.i("s_nop 0")
            c(7)
    a.i(f"s_cmp_eq_u32 s{sFIRST}, 0")
    a.i("s_cbranch_scc1 K2_NOBAR")
    a.i(f"s_mov_b32 s{sFIRST}, 0")
    a.i("s_waitcnt vmcnt(0)")
    a.i("s_barrier")
    a.label("K2_NOBAR")
    a.i(f"s_sub_u32 s{sCNT}, s{sCNT}, 1")
    a.i(f"s_cmp_lg_u32 s{sCNT}, 0")
    a.i("s_cbranch_scc1 K2_LOOP")
    a.i(f"v_mfma_f32_32x32x16_bf16 v[{O}:{O+15}], v[{VF[1]+4}:{VF[1]+7}], v[{P+4}:{P+7}], v[{O}:{O+15}]")
    a.i("s_waitcnt lgkmcnt(0)")
    a.i("s_nop 11")
    a.i(f"v_mov_b32 v{vT}, v{O+8}")
    for r in range(8):
        a.i(f"v_fma_f32 v{vT}, v{O+r}, 0, v{vT}")
    a.i(f"v_cmp_gt_f32 vcc, {fhex(2.0**40)}, v{vT}")
    a.i(f"v_rcp_f32 v{vT2}, v{O+8}")
    a.i("s_nop 3")
    a.i(f"s_cmp_eq_u64 vcc, -1")
    a.i("s_cbranch_scc1 K2_OK")
    a.i(f"s_cmp_eq_u32 s{sNMAX}, 64")
    a.i("s_cbranch_scc1 K2_OK")
    a.i(f"s_mov_b32 s{sNMAX}, 64")
    a.i("s_branch K2_MAXPASS")
    a.label("K2_OK")
    a.i(f"v_mul_f32 v{vT2}, v{vT2}, v{vG}")
    for r in range(8):
        a.i(f"v_mul_f32 v{O+r}, v{O+r}, v{vT2}")
    for r in range(4):
        a.i(f"v_cvt_pk_bf16_f32 v{P+r}, v{O+2*r}, v{O+2*r+1}")
    a.i(f"s_mul_i32 s{sT0}, s{sQT}, 144")
    a.i(f"s_add_u32 s{sT0}, s{sT0}, s{sH}")
    a.i(f"s_lshl_b32 s{sT0}, s{sT0}, 10")
    a.i(f"s_add_u32 s{sT0}, s{sT0}, {AF_OFF}")
    a.i(f"buffer_store_dwordx4 v[{P}:{P+3}], v{vLO}, s[{SWS}:{SWS+3}], s{sT0} offen")
    a.label("K2_END")
    a.i("s_endpgm")
    return a.text(), kdesc("k2_kernel", NV, 32, NV), 131072 + 8192

def gen_k3():
    a = Asm()
    a.raw(khead("k3_kernel"))
    a.i("s_cmp_ge_u32 s2, 256")
    a.i("s_cbranch_scc1 K3_END")
    SWS, SO = 8, 12
    a.i(f"s_load_dwordx2 s[8:9], s[0:1], 80")
    a.i(f"s_load_dwordx2 s[12:13], s[0:1], 64")
    srd(a, SWS, WS_BYTES); srd(a, SO, 2048*512*2)
    sW, sRP, sCP, sT0, sT1 = 16, 17, 18, 19, 20
    sA, sB = 24, 28
    vL, vT, vLO, vG0, vG1, vT2 = 1, 2, 3, 4, 5, 6
    ACCH, ACCO, FR = 16, 80, 144
    D = 6
    a.i(f"v_and_b32 v{vL}, 63, v0")
    a.i(f"v_lshrrev_b32 v{vT}, 6, v0")
    a.i(f"s_and_b32 s{sT0}, s2, 7")
    a.i(f"v_readfirstlane_b32 s{sW}, v{vT}")
    a.i(f"s_lshl_b32 s{sT0}, s{sT0}, 2")
    a.i(f"s_bfe_u32 s{sT1}, s2, 0x20003")
    a.i(f"s_add_u32 s{sRP}, s{sT0}, s{sT1}")
    a.i(f"s_lshr_b32 s{sCP}, s2, 5")
    a.i(f"v_lshlrev_b32 v{vLO}, 4, v{vL}")
    a.i(f"s_mul_i32 s{sT0}, s{sCP}, {2*144*1024}")
    a.i(f"s_mul_i32 s{sT1}, s{sW}, {28*1024}")
    a.i(f"s_add_u32 s{sA}, s{sT0}, s{sT1}")
    a.i(f"s_add_u32 s{sA}, s{sA}, {WF_OFF + 32*1024}")
    a.i(f"s_add_u32 s{sA+1}, s{sA}, {144*1024}")
    a.i(f"s_lshl_b32 s21, s{sW}, 13")
    a.i(f"s_add_u32 s{sA+2}, s{sT0}, s21")
    a.i(f"s_add_u32 s{sA+2}, s{sA+2}, {WF_OFF}")
    a.i(f"s_add_u32 s{sA+3}, s{sA+2}, {144*1024}")
    a.i(f"s_mul_i32 s{sT0}, s{sRP}, {2*144*1024}")
    a.i(f"s_add_u32 s{sB}, s{sT0}, s{sT1}")
    a.i(f"s_add_u32 s{sB}, s{sB}, {AF_OFF + 32*1024}")
    a.i(f"s_add_u32 s{sB+1}, s{sB}, {144*1024}")
    a.i(f"s_add_u32 s{sB+2}, s{sT0}, s21")
    a.i(f"s_add_u32 s{sB+2}, s{sB+2}, {AF_OFF}")
    a.i(f"s_add_u32 s{sB+3}, s{sB+2}, {144*1024}")
    a.i(f"v_and_b32 v{vT}, 31, v{vL}")
    a.i(f"v_lshlrev_b32 v{vT}, 2, v{vT}")
    a.i(f"s_lshl_b32 s{sT0}, s{sRP}, 8")
    a.i(f"s_add_u32 s{sT0}, s{sT0}, {G_OFF}")
    a.i("s_waitcnt lgkmcnt(0)")
    a.vmem(f"buffer_load_dword v{vG0}, v{vT}, s[{SWS}:{SWS+3}], s{sT0} offen", "g")
    a.vmem(f"buffer_load_dword v{vG1}, v{vT}, s[{SWS}:{SWS+3}], s{sT0} offen offset:128", "g")
    NS = 36
    def ld(s):
        part = 0 if s < 28 else 2
        k = s if s < 28 else s - 28
        if k % 4 == 0 and k > 0:
            for r in (sA+part, sA+part+1, sB+part, sB+part+1):
                a.i(f"s_add_u32 s{r}, s{r}, 4096")
        fb = FR + 16 * (s % D)
        off = 1024 * (k % 4)
        for q, r in enumerate((sA+part, sB+part, sA+part+1, sB+part+1)):
            a.vmem(f"buffer_load_dwordx4 v[{fb+4*q}:{fb+4*q+3}], v{vLO}, s[{SWS}:{SWS+3}], s{r} offen offset:{off}", ("f", s))
    for s in range(D - 1): ld(s)
    for s in range(NS):
        if s + D - 1 < NS: ld(s + D - 1)
        a.wait(vm=("f", s))
        fb = FR + 16 * (s % D)
        A0, B0, A1, B1 = fb, fb+4, fb+8, fb+12
        base = ACCH if s < 28 else ACCO
        first = s == 0 or s == 28
        for ai, A in enumerate((A0, A1)):
            for bi, B in enumerate((B0, B1)):
                acc = base + 16 * (2*ai + bi)
                cin = "0" if first else f"v[{acc}:{acc+15}]"
                a.i(f"v_mfma_f32_32x32x16_bf16 v[{acc}:{acc+15}], v[{A}:{A+3}], v[{B}:{B+3}], {cin}")
    a.i(f"v_sub_f32 v{vG0}, 1.0, v{vG0}")
    a.i(f"v_sub_f32 v{vG1}, 1.0, v{vG1}")
    a.i(f"s_lshl_b32 s{sT0}, s{sW}, 12")
    a.i(f"v_add_u32 v{vT}, s{sT0}, v{vLO}")
    a.i(f"s_lshl_b32 s{sT0}, s{sW}, 14")
    a.i(f"v_add_u32 v{vT2}, s{sT0}, v{vLO}")
    a.i("s_nop 7")
    for tau in range(4):
        bi = tau & 1
        for r in range(16):
            a.i(f"v_fma_f32 v{ACCH+16*tau+r}, v{ACCH+16*tau+r}, v{vG0+bi}, v{ACCO+16*tau+r}")
        for q in range(4):
            b = ACCH + 16*tau + 4*q
            a.i(f"ds_write_b128 v{vT}, v[{b}:{b+3}] offset:{tau*16384 + q*1024}")
    a.i("s_waitcnt lgkmcnt(0)")
    a.i("s_barrier")
    for ww in range(4):
        for q in range(4):
            b = FR + 16*ww + 4*q
            a.i(f"ds_read_b128 v[{b}:{b+3}], v{vT2} offset:{ww*4096 + q*1024}")
    a.i(f"s_and_b32 s{sT0}, s{sW}, 1")
    a.i(f"s_lshl_b32 s{sT1}, s{sRP}, 1")
    a.i(f"s_add_u32 s{sT0}, s{sT0}, s{sT1}")
    a.i(f"s_lshl_b32 s{sT0}, s{sT0}, 15")
    a.i(f"s_lshr_b32 s{sT1}, s{sW}, 1")
    a.i(f"s_lshl_b32 s21, s{sCP}, 1")
    a.i(f"s_add_u32 s{sT1}, s{sT1}, s21")
    a.i(f"s_lshl_b32 s{sT1}, s{sT1}, 6")
    a.i(f"s_add_u32 s{sT0}, s{sT0}, s{sT1}")
    a.i(f"v_and_b32 v{vT}, 31, v{vL}")
    a.i(f"v_lshlrev_b32 v{vT}, 10, v{vT}")
    a.i(f"v_lshrrev_b32 v{vT2}, 5, v{vL}")
    a.i(f"v_lshl_add_u32 v{vT}, v{vT2}, 5, v{vT}")
    a.i("s_waitcnt lgkmcnt(0)")
    for r in range(16):
        a.i(f"v_add_f32 v{FR+r}, v{FR+r}, v{FR+16+r}")
        a.i(f"v_add_f32 v{FR+32+r}, v{FR+32+r}, v{FR+48+r}")
    for r in range(16):
        a.i(f"v_add_f32 v{FR+r}, v{FR+r}, v{FR+32+r}")
    for r in range(8):
        a.i(f"v_cvt_pk_bf16_f32 v{ACCH+r}, v{FR+2*r}, v{FR+2*r+1}")
    a.i(f"buffer_store_dwordx4 v[{ACCH}:{ACCH+3}], v{vT}, s[{SO}:{SO+3}], s{sT0} offen")
    a.i(f"buffer_store_dwordx4 v[{ACCH+4}:{ACCH+7}], v{vT}, s[{SO}:{SO+3}], s{sT0} offen offset:16")
    a.label("K3_END")
    a.i("s_endpgm")
    return a.text(), kdesc("k3_kernel", 240, 40, 240), 65536

def main(out):
    ref = open(f"cdna_kernels/{NAME}.s.ref").read().splitlines()
    head = [l for l in ref if l.startswith(";") and "@launch" not in l and "Override launch" not in l and "grid=ceil" not in l and "TODO" not in l]
    head = head[:12]
    ks = [("k1_kernel", gen_k1(), 256), ("k2_kernel", gen_k2(), 512), ("k3_kernel", gen_k3(), 256)]
    s = "\n".join(head) + "\n"
    for n, (txt, kd, lds), blk in ks:
        s += f"; @launch kernel={n} grid=(256,1,1) block=({blk},1,1) lds={lds}\n"
    s += '.amdgcn_target "amdgcn-amd-amdhsa--gfx950"\n.text\n'
    for n, (txt, kd, lds), blk in ks:
        s += txt
    s += '.section .rodata,"a"\n'
    for n, (txt, kd, lds), blk in ks:
        s += kd
    open(out, "w").write(s)

if __name__ == "__main__":
    main(sys.argv[1] if len(sys.argv) > 1 else f"cdna_kernels/{NAME}.s")
```

```python
import sys, math
from asmlib import *

NAME = "gated_mix__mha_block__dense_activation_mish__prompt"
QF_OFF = 0
KV_OFF = 2 << 20
AF_OFF = 6 << 20
WF_OFF = 16 << 20
G_OFF = 19 << 20
WS_BYTES = 32 << 20
LOG2E = 1.4426950408889634
QSCALE = 0.25 * LOG2E

DBG = "--dbg" in sys.argv
DBG_OFF = 24 << 20
def stamp(a, idx):
    if not DBG: return
    a.i("s_memtime s[90:91]")
    if idx == 0: a.i("s_memrealtime s[88:89]")
    a.i("s_waitcnt lgkmcnt(0)")
    a.lg = []
    a.i(f"s_mov_b32 s{64+idx}, s90")
def stamp_flush(a, n, SWS, sW, kid):
    if not DBG: return
    a.i("s_memrealtime s[92:93]")
    a.i("s_waitcnt lgkmcnt(0)")
    a.i(f"s_mov_b32 s{64+n}, s92")
    a.i(f"s_mov_b32 s{65+n}, s88")
    a.i(f"s_getreg_b32 s{66+n}, hwreg(HW_REG_HW_ID)")
    a.i(f"s_getreg_b32 s{67+n}, hwreg(HW_REG_XCC_ID)")
    a.i(f"s_lshl_b32 s90, s2, 4")
    a.i(f"s_add_u32 s90, s90, s{sW}")
    a.i(f"s_lshl_b32 s90, s90, 6")
    a.i(f"s_add_u32 s90, s90, {DBG_OFF + kid*(1<<20)}")
    a.i("v_mov_b32 v1, 0")
    for k in range(n+4):
        a.i(f"v_mov_b32 v2, s{64+k}")
        a.i(f"buffer_store_dword v2, v1, s[{SWS}:{SWS+3}], s90 offen offset:{4*k}")
        a.i("s_nop 1")
def srd(a, s, nbytes):
    a.i(f"s_mov_b32 s{s+2}, {nbytes}")
    a.i(f"s_mov_b32 s{s+3}, 0x00020000")

def gen_k1():
    a = Asm()
    a.raw(khead("k1_kernel"))
    a.i("s_cmp_ge_u32 s2, 256")
    a.i("s_cbranch_scc1 K1_END")
    SX, SWQ, SWO, SW1, SB1, SW2, SG, SWS = 8, 12, 16, 20, 24, 28, 32, 36
    for s, off in [(SX, 0), (SWQ, 8), (SWO, 16), (SW1, 32), (SB1, 40), (SW2, 48), (SG, 56), (SWS, 80)]:
        a.i(f"s_load_dwordx2 s[{s}:{s+1}], s[0:1], {off}")
    srd(a, SX, 2048*512*2); srd(a, SWQ, 512*1536*2); srd(a, SWO, 512*512*2); srd(a, SW1, 512*1792*2)
    srd(a, SB1, 1792*2); srd(a, SW2, 1792*512*2); srd(a, SG, 512*2); srd(a, SWS, WS_BYTES)
    sW, sCB, sRB, sXO, sM0W, sSOW, sT0, sT1, sT2, sRT = 40, 41, 42, 43, 44, 45, 46, 47, 48, 49
    sLOG2E, sQS = 50, 51
    vL, vT, vXO, vWO, vTO, vTR0, vTR1, vTT, vST, vSV, vT2, vT3 = 1, 2, 3, 4, 5, 6, 7, 8, 9, 10, 11, 12
    ACC = [16, 32]
    WF = [48, 52, 56, 60]
    TMP = 64
    PK = 112
    BIAS = 128
    BONE = 144
    GX, GW = 148, 156
    a.i(f"v_and_b32 v{vL}, 63, v0")
    a.i(f"v_lshrrev_b32 v{vT}, 6, v0")
    a.i(f"s_and_b32 s{sCB}, s2, 15")
    a.i(f"v_readfirstlane_b32 s{sW}, v{vT}")
    a.i(f"s_lshr_b32 s{sRB}, s2, 4")
    a.i(f"s_mov_b32 s{sLOG2E}, {fhex(LOG2E)}")
    a.i(f"s_mov_b32 s{sQS}, {fhex(QSCALE)}")
    a.i(f"s_lshl_b32 s{sRT}, s{sRB}, 2")
    a.i(f"s_add_u32 s{sRT}, s{sRT}, s{sW}")
    a.i(f"s_lshl_b32 s{sXO}, s{sRT}, 15")
    a.i(f"s_lshl_b32 s{sM0W}, s{sW}, 13")
    a.i(f"v_and_b32 v{vT}, 31, v{vL}")
    a.i(f"v_lshlrev_b32 v{vXO}, 10, v{vT}")
    a.i(f"v_lshrrev_b32 v{vT2}, 5, v{vL}")
    a.i(f"v_lshl_add_u32 v{vXO}, v{vT2}, 4, v{vXO}")
    a.i(f"v_lshrrev_b32 v{vT}, 2, v{vL}")
    a.i(f"v_and_b32 v{vT3}, 3, v{vL}")
    a.i(f"v_lshlrev_b32 v{vTO}, 10, v{vT}")
    a.i(f"v_lshl_add_u32 v{vTO}, v{vT3}, 4, v{vTO}")
    a.i(f"v_and_b32 v{vT}, 3, v{vT}")
    a.i(f"v_lshlrev_b32 v{vTR0}, 9, v{vT2}")
    a.i(f"v_lshl_add_u32 v{vTR0}, v{vT}, 6, v{vTR0}")
    a.i(f"v_lshl_add_u32 v{vTR0}, v{vT3}, 3, v{vTR0}")
    a.i(f"v_bfe_u32 v13, v{vL}, 4, 1")
    a.i(f"v_lshl_add_u32 v{vTR0}, v13, 5, v{vTR0}")
    a.i(f"v_add_u32 v{vTR1}, 0x10000, v{vTR0}")
    a.i(f"v_lshlrev_b32 v{vTT}, 8, v{vT2}")
    a.i(f"v_lshl_add_u32 v{vTT}, v{vT}, 6, v{vTT}")
    a.i(f"v_and_b32 v14, 1, v{vT3}")
    a.i(f"v_lshl_add_u32 v{vTT}, v14, 5, v{vTT}")
    a.i(f"v_lshl_add_u32 v{vTT}, v13, 4, v{vTT}")
    a.i(f"v_lshrrev_b32 v14, 1, v{vT3}")
    a.i(f"v_lshl_add_u32 v{vTT}, v14, 3, v{vTT}")
    a.i(f"s_mul_i32 s{sT0}, s{sW}, 5120")
    a.i(f"s_add_u32 s{sT0}, s{sT0}, 131072")
    a.i(f"v_add_u32 v{vTT}, s{sT0}, v{vTT}")
    a.i(f"v_lshlrev_b32 v{vST}, 4, v{vL}")
    a.i(f"v_and_b32 v14, 15, v{vL}")
    a.i(f"v_lshlrev_b32 v{vSV}, 4, v14")
    a.i(f"v_lshl_add_u32 v{vSV}, v{vT2}, 8, v{vSV}")
    a.i(f"v_lshl_add_u32 v{vSV}, v13, 17, v{vSV}")
    a.i(f"v_add_u32 v{vSV}, 1024, v{vSV}")
    a.i("s_waitcnt lgkmcnt(0)")
    stamp(a, 0)
    a.i(f"s_cmp_ge_u32 s{sCB}, 8")
    a.i("s_cbranch_scc1 K1_F")

    def path(kind):
        isF = kind == "F"
        ldw = 3584 if isF else 3072
        SW = SW1 if isF else SWQ
        a.vm = []; a.lg = []
        a.i(f"v_lshrrev_b32 v{vT}, 2, v{vL}")
        a.i(f"v_mul_u32_u24 v{vWO}, {ldw}, v{vT}")
        a.i(f"v_lshl_add_u32 v{vWO}, v{vT3}, 4, v{vWO}")
        a.i(f"s_mul_i32 s{sSOW}, s{sW}, {128*ldw}")
        if isF:
            a.i(f"s_sub_u32 s{sCB}, s{sCB}, 8")
            a.i(f"s_mul_i32 s{sT0}, s{sCB}, 448")
            tiles = [("F", 64*t) for t in range(7)]
        else:
            a.i(f"s_lshl_b32 s{sT0}, s{sCB}, 7")
            tiles = [("Q", 0), ("Q", 64), ("K", 1024), ("K", 1024+64), ("V", 2048), ("V", 2048+64)]
        a.i(f"s_add_u32 s{sSOW}, s{sSOW}, s{sT0}")
        NT = len(tiles)
        def dma(t):
            slot = t % 4
            for i in range(8):
                a.i(f"s_add_u32 m0, s{sM0W}, {slot*32768 + 1024*i}")
                a.i(f"s_add_u32 s{sT1}, s{sSOW}, {tiles[t][1] + 16*i*ldw}")
                a.vmem(f"buffer_load_dwordx4 v{vWO}, s[{SW}:{SW+3}], s{sT1} offen lds", ("W", t))
        if isF:
            a.i(f"v_and_b32 v{vT}, 31, v{vL}")
            a.i(f"v_lshlrev_b32 v{vT}, 1, v{vT}")
            for r in range(16):
                if r % 2 == 1 or r >= 14:
                    a.i(f"v_mov_b32 v{BIAS+r}, 0")
            for t in range(7):
                a.vmem(f"buffer_load_ushort v{BIAS+2*t}, v{vT}, s[{SB1}:{SB1+3}], s{sT0} offen offset:{64*t}", "bias")
            a.i(f"v_cmp_gt_u32 vcc, 32, v{vL}")
            a.i(f"v_mov_b32 v{BONE+1}, 0")
            a.i(f"v_mov_b32 v{BONE+2}, 0")
            a.i(f"v_mov_b32 v{BONE+3}, 0")
            a.i(f"v_mov_b32 v{vT}, 0x3f80")
            a.i(f"v_cndmask_b32 v{BONE}, 0, v{vT}, vcc")
        dma(0)
        for s in range(32):
            a.vmem(f"buffer_load_dwordx4 a[{4*s}:{4*s+3}], v{vXO}, s[{SX}:{SX+3}], s{sXO} offen offset:{32*s}", ("x", s))
        dma(1); dma(2)

        def epilogue(t):
            kindt, cofs = tiles[t]
            acc = ACC[t % 2]
            pk = PK + 8 * (t % 2)
            F = []
            def I(s): F.append(lambda s=s: a.i(s))
            def ST(s): F.append(lambda s=s: a.vmem(s, "st"))
            if kindt == "F":
                for gq in range(4):
                    els = [4*gq + e for e in range(4)]
                    T = lambda e, k: TMP + 12*(gq % 2) + 3*(e % 4) + k
                    for e in els: I(f"v_mul_f32 v{T(e,0)}, s{sLOG2E}, v{acc+e}")
                    for e in els: I(f"v_min_f32 v{T(e,0)}, 0x41f00000, v{T(e,0)}")
                    for e in els: I(f"v_exp_f32 v{T(e,0)}, v{T(e,0)}")
                    for e in els: I(f"v_add_f32 v{T(e,1)}, 2.0, v{T(e,0)}")
                    for e in els: I(f"v_mul_f32 v{T(e,1)}, v{T(e,0)}, v{T(e,1)}")
                    for e in els: I(f"v_add_f32 v{T(e,2)}, 2.0, v{T(e,1)}")
                    for e in els: I(f"v_rcp_f32 v{T(e,2)}, v{T(e,2)}")
                    for e in els: I(f"v_mul_f32 v{T(e,1)}, v{T(e,1)}, v{T(e,2)}")
                    for e in els: I(f"v_mul_f32 v{T(e,0)}, v{acc+e}, v{T(e,1)}")
                    I(f"v_cvt_pk_bf16_f32 v{pk+2*gq}, v{T(els[0],0)}, v{T(els[1],0)}")
                    I(f"v_cvt_pk_bf16_f32 v{pk+2*gq+1}, v{T(els[2],0)}, v{T(els[3],0)}")
                I(f"s_mul_i32 s{sT2}, s{sRT}, 144")
                I(f"s_mul_i32 s{sT1}, s{sCB}, 14")
                I(f"s_add_u32 s{sT2}, s{sT2}, s{sT1}")
                I(f"s_lshl_b32 s{sT2}, s{sT2}, 10")
                I(f"s_add_u32 s{sT2}, s{sT2}, {AF_OFF + (32 + 2*t)*1024}")
                ST(f"buffer_store_dwordx4 v[{pk}:{pk+3}], v{vST}, s[{SWS}:{SWS+3}], s{sT2} offen")
                ST(f"buffer_store_dwordx4 v[{pk+4}:{pk+7}], v{vST}, s[{SWS}:{SWS+3}], s{sT2} offen offset:1024")
            else:
                j = t % 2
                if kindt == "Q":
                    for e in range(16): I(f"v_mul_f32 v{TMP+e}, s{sQS}, v{acc+e}")
                    src = TMP
                else:
                    src = acc
                for e in range(8): I(f"v_cvt_pk_bf16_f32 v{pk+e}, v{src+2*e}, v{src+2*e+1}")
                if kindt == "Q":
                    I(f"s_lshl_b32 s{sT2}, s{sCB}, 18")
                    I(f"s_lshl_b32 s{sT1}, s{sRT}, 10")
                    I(f"s_add_u32 s{sT2}, s{sT2}, s{sT1}")
                    I(f"s_add_u32 s{sT2}, s{sT2}, {QF_OFF + 2*j*65536}")
                    I(f"s_add_u32 s{sT1}, s{sT2}, 65536")
                    ST(f"buffer_store_dwordx4 v[{pk}:{pk+3}], v{vST}, s[{SWS}:{SWS+3}], s{sT2} offen")
                    ST(f"buffer_store_dwordx4 v[{pk+4}:{pk+7}], v{vST}, s[{SWS}:{SWS+3}], s{sT1} offen")
                else:
                    I(f"s_lshl_b32 s{sT2}, s{sCB}, 19")
                    I(f"s_lshl_b32 s{sT1}, s{sRT}, 11")
                    I(f"s_add_u32 s{sT2}, s{sT2}, s{sT1}")
                    I(f"s_add_u32 s{sT2}, s{sT2}, {KV_OFF + 2*j*131072}")
                    if kindt == "K":
                        I(f"s_add_u32 s{sT1}, s{sT2}, 131072")
                        ST(f"buffer_store_dwordx4 v[{pk}:{pk+3}], v{vST}, s[{SWS}:{SWS+3}], s{sT2} offen")
                        ST(f"buffer_store_dwordx4 v[{pk+4}:{pk+7}], v{vST}, s[{SWS}:{SWS+3}], s{sT1} offen")
                    else:
                        ST(f"buffer_store_dwordx4 v[{pk}:{pk+3}], v{vSV}, s[{SWS}:{SWS+3}], s{sT2} offen")
                        ST(f"buffer_store_dwordx4 v[{pk+4}:{pk+7}], v{vSV}, s[{SWS}:{SWS+3}], s{sT2} offen offset:512")
            return F

        fill = []
        last_mfma_n = -100
        for t in range(NT):
            kindt, cofs = tiles[t]
            slot = t % 4
            acc = ACC[t % 2]
            trv = vTR0 if slot < 2 else vTR1
            tro = (slot % 2) * 32768
            a.c(f"---- tile {t} ({kindt})")
            a.wait(vm=("W", t))
            a.i("s_barrier")
            stamp(a, 1 + t)
            def rd(s):
                b = WF[s % 4]
                a.lds(f"ds_read_b64_tr_b16 v[{b}:{b+1}], v{trv} offset:{tro + 1024*s}", ("wf", s))
                a.lds(f"ds_read_b64_tr_b16 v[{b+2}:{b+3}], v{trv} offset:{tro + 1024*s + 256}", ("wf", s))
            rd(0); rd(1); rd(2)
            if t + 3 < NT:
                dma(t + 3)
            if t == 1:
                a.i(f"s_lshl_b32 s{sT1}, s2, 3")
                a.i(f"s_lshl_b32 s{sT2}, s{sW}, 1")
                a.i(f"s_add_u32 s{sT1}, s{sT1}, s{sT2}")
                a.i(f"s_lshl_b32 s{sT1}, s{sT1}, 10")
                a.i(f"v_lshlrev_b32 v13, 5, v{vL}")
                a.i(f"v_and_b32 v14, 0x3ff, v13")
                a.vmem(f"buffer_load_dwordx4 v[{GX}:{GX+3}], v13, s[{SX}:{SX+3}], s{sT1} offen", "g")
                a.vmem(f"buffer_load_dwordx4 v[{GX+4}:{GX+7}], v13, s[{SX}:{SX+3}], s{sT1} offen offset:16", "g")
                a.vmem(f"buffer_load_dwordx4 v[{GW}:{GW+3}], v14, s[{SG}:{SG+3}], 0 offen", "g")
                a.vmem(f"buffer_load_dwordx4 v[{GW+4}:{GW+7}], v14, s[{SG}:{SG+3}], 0 offen offset:16", "g")
            if t == 3 and not isF:
                a.i(f"s_mul_i32 s{sT0}, s{sW}, 5120")
                a.i(f"s_add_u32 s{sT0}, s{sT0}, 131072")
                a.i(f"s_lshl_b32 s52, s{sCB}, 2")
                a.i(f"s_add_u32 s52, s52, s{sW}")
                a.i(f"s_lshl_b32 s{sT1}, s52, 14")
                a.i(f"s_lshl_b32 s{sT2}, s{sRB}, 6")
                a.i(f"s_mov_b32 m0, s{sT0}")
                a.i(f"s_add_u32 s{sT1}, s{sT1}, s{sT2}")
                a.vmem(f"buffer_load_dwordx4 v{vTO}, s[{SWO}:{SWO+3}], s{sT1} offen lds", "tr")
                for j in range(4):
                    a.i(f"s_add_u32 s{53+j}, s{sW}, {4*j}")
                    if j == 3:
                        a.i(f"s_min_u32 s{53+j}, s{53+j}, 13")
                    a.i(f"s_mul_i32 s{sT1}, s{sCB}, 14")
                    a.i(f"s_add_u32 s{53+j}, s{53+j}, s{sT1}")
                    a.i(f"s_lshl_b32 s{sT1}, s{53+j}, 14")
                    a.i(f"s_add_u32 m0, s{sT0}, {1024*(j+1)}")
                    a.i(f"s_add_u32 s{sT1}, s{sT1}, s{sT2}")
                    a.vmem(f"buffer_load_dwordx4 v{vTO}, s[{SW2}:{SW2+3}], s{sT1} offen lds", "tr")
            per = -(-len(fill) // 28) if fill else 0
            if isF:
                if t == 0: a.wait(vm="bias")
                a.i(f"v_mfma_f32_32x32x16_bf16 v[{acc}:{acc+15}], v[{BIAS+2*t}:{BIAS+2*t+3}], v[{BONE}:{BONE+3}], 0")
            for s in range(32):
                if s + 3 < 32: rd(s + 3)
                if t == 0 and s % 4 == 0:
                    a.wait(vm=("x", s + 3), lg=("wf", s))
                else:
                    a.wait(lg=("wf", s))
                b = WF[s % 4]
                cin = "0" if (s == 0 and not isF) else f"v[{acc}:{acc+15}]"
                if kindt == "V":
                    a.i(f"v_mfma_f32_32x32x16_bf16 v[{acc}:{acc+15}], a[{4*s}:{4*s+3}], v[{b}:{b+3}], {cin}")
                else:
                    a.i(f"v_mfma_f32_32x32x16_bf16 v[{acc}:{acc+15}], v[{b}:{b+3}], a[{4*s}:{4*s+3}], {cin}")
                if fill and a.n - last_mfma_n >= 14:
                    for _ in range(per):
                        if fill: fill.pop(0)()
            while fill: fill.pop(0)()
            last_mfma_n = a.n
            fill = epilogue(t)
        stamp(a, 8)
        a.c("---- gate")
        a.wait(vm="g")
        a.i(f"v_mov_b32 v13, 0")
        a.i(f"v_mov_b32 v14, 0")
        for k in range(8):
            a.i(f"v_dot2_f32_bf16 v{13+k%2}, v{GX+k}, v{GW+k}, v{13+k%2}")
        a.i("s_nop 2")
        a.i(f"v_add_f32 v13, v13, v14")
        a.i("s_nop 1")
        a.i(f"v_add_f32_dpp v13, v13, v13 quad_perm:[1,0,3,2] row_mask:0xf bank_mask:0xf")
        a.i("s_nop 1")
        a.i(f"v_add_f32_dpp v13, v13, v13 quad_perm:[2,3,0,1] row_mask:0xf bank_mask:0xf")
        a.i("s_nop 1")
        a.i(f"v_add_f32_dpp v13, v13, v13 row_half_mirror row_mask:0xf bank_mask:0xf")
        a.i("s_nop 1")
        a.i(f"v_add_f32_dpp v13, v13, v13 row_mirror row_mask:0xf bank_mask:0xf")
        a.lds(f"ds_swizzle_b32 v14, v13 offset:0x401F", "sw")
        while fill: fill.pop(0)()
        a.wait(lg="sw")
        a.i(f"v_add_f32 v13, v13, v14")
        a.i(f"v_mul_f32 v13, s{sLOG2E}, v13")
        a.i(f"v_exp_f32 v13, -v13")
        a.i("s_nop 0")
        a.i(f"v_add_f32 v13, 1.0, v13")
        a.i(f"v_rcp_f32 v13, v13")
        a.i(f"s_lshl_b32 s{sT1}, s2, 3")
        a.i(f"s_lshl_b32 s{sT2}, s{sW}, 1")
        a.i(f"s_add_u32 s{sT1}, s{sT1}, s{sT2}")
        a.i(f"s_lshl_b32 s{sT1}, s{sT1}, 2")
        a.i(f"s_add_u32 s{sT1}, s{sT1}, {G_OFF}")
        a.i(f"v_lshrrev_b32 v14, 5, v{vL}")
        a.i(f"v_lshlrev_b32 v14, 2, v14")
        a.i(f"s_mov_b32 s58, 1")
        a.i(f"s_mov_b32 s59, 1")
        a.i(f"s_mov_b64 exec, s[58:59]")
        a.vmem(f"buffer_store_dword v13, v14, s[{SWS}:{SWS+3}], s{sT1} offen", "st")
        a.i(f"s_mov_b64 exec, -1")
        if not isF:
            a.c("---- transposes")
            a.wait(vm="tr")
            for j in range(5):
                b = TMP + 4*j
                a.lds(f"ds_read_b64_tr_b16 v[{b}:{b+1}], v{vTT} offset:{1024*j}", ("tt", j))
                a.lds(f"ds_read_b64_tr_b16 v[{b+2}:{b+3}], v{vTT} offset:{1024*j+512}", ("tt", j))
            a.i(f"s_mul_i32 s{sT2}, s{sRB}, 144")
            for j in range(5):
                b = TMP + 4*j
                a.i(f"s_add_u32 s{sT1}, s{sT2}, s{52+j}")
                a.i(f"s_lshl_b32 s{sT1}, s{sT1}, 10")
                a.i(f"s_add_u32 s{sT1}, s{sT1}, {WF_OFF + (32*1024 if j else 0)}")
                a.wait(lg=("tt", j))
                a.vmem(f"buffer_store_dwordx4 v[{b}:{b+3}], v{vST}, s[{SWS}:{SWS+3}], s{sT1} offen", "st")
        stamp(a, 9)
        if DBG: a.i("s_waitcnt vmcnt(0)")
        stamp(a, 10)
        stamp_flush(a, 11, SWS, sW, 0)
        a.i("s_endpgm")

    path("QKV")
    a.label("K1_F")
    path("F")
    a.label("K1_END")
    a.i("s_endpgm")
    return a.text(), kdesc("k1_kernel", 168 + 128, 100, 168), 131072 + 4*5120

def gen_k2():
    a = Asm()
    a.raw(khead("k2_kernel"))
    a.i("s_cmp_ge_u32 s2, 256")
    a.i("s_cbranch_scc1 K2_END")
    SWS = 8
    a.i(f"s_load_dwordx2 s[8:9], s[0:1], 80")
    srd(a, SWS, WS_BYTES)
    sW, sH, sQT, sT0, sT1, sCNT, sNMAX, sFIRST = 12, 13, 14, 15, 16, 17, 18, 19
    sVM = 20
    vL, vT, vLO, vKA, vVA, vG, vM, vT2 = 1, 2, 3, 4, 5, 6, 7, 8
    Q = 12
    NEGM = 16
    S = [32, 48]
    O = 64
    P = 80
    KF = [88, 92]
    VF = [96, 104]
    NV = 112
    a.i(f"v_and_b32 v{vL}, 63, v0")
    a.i(f"v_lshrrev_b32 v{vT}, 6, v0")
    a.i(f"s_and_b32 s{sT0}, s2, 7")
    a.i(f"v_readfirstlane_b32 s{sW}, v{vT}")
    a.i(f"s_lshl_b32 s{sT0}, s{sT0}, 2")
    a.i(f"s_bfe_u32 s{sT1}, s2, 0x20003")
    a.i(f"s_add_u32 s{sH}, s{sT0}, s{sT1}")
    a.i(f"s_lshr_b32 s{sQT}, s2, 5")
    a.i(f"s_lshl_b32 s{sQT}, s{sQT}, 3")
    a.i(f"s_add_u32 s{sQT}, s{sQT}, s{sW}")
    a.i(f"v_lshlrev_b32 v{vLO}, 4, v{vL}")
    a.i(f"s_mov_b32 s{sVM}, 0xffff")
    a.i(f"s_mov_b32 s{sVM+1}, 0xffff")
    a.i(f"s_lshl_b32 s{sT0}, s{sH}, 6")
    a.i(f"s_add_u32 s{sT0}, s{sT0}, s{sQT}")
    a.i(f"s_lshl_b32 s{sT0}, s{sT0}, 10")
    if QF_OFF: a.i(f"s_add_u32 s{sT0}, s{sT0}, {QF_OFF}")
    a.i(f"s_lshl_b32 s22, s{sH}, 17")
    a.i(f"s_lshl_b32 s23, s{sW}, 10")
    a.i(f"s_add_u32 s22, s22, s23")
    a.i("s_waitcnt lgkmcnt(0)")
    stamp(a, 0)
    a.vmem(f"buffer_load_dwordx4 v[{Q}:{Q+3}], v{vLO}, s[{SWS}:{SWS+3}], s{sT0} offen", "q")
    for t in range(16):
        a.i(f"s_add_u32 m0, s23, {8192*t}")
        a.i(f"s_add_u32 s{sT1}, s22, {KV_OFF + 8192*t}")
        a.vmem(f"buffer_load_dwordx4 v{vLO}, s[{SWS}:{SWS+3}], s{sT1} offen lds", ("kv", t))
    a.i(f"v_and_b32 v{vT}, 31, v{vL}")
    a.i(f"v_lshlrev_b32 v{vT}, 2, v{vT}")
    a.i(f"s_lshl_b32 s{sT0}, s{sQT}, 7")
    a.i(f"s_add_u32 s{sT0}, s{sT0}, {G_OFF}")
    a.vmem(f"buffer_load_dword v{vG}, v{vT}, s[{SWS}:{SWS+3}], s{sT0} offen", "g")
    for r in range(16):
        a.i(f"v_mov_b32 v{VF[0]+r}, 0x3f803f80")
    a.i(f"s_mov_b32 s{sNMAX}, 1")
    a.i(f"s_mov_b32 s{sFIRST}, 1")
    a.wait(vm=("kv", 2))
    a.i("s_barrier")
    a.vm = []
    stamp(a, 1)
    a.label("K2_MAXPASS")
    a.i(f"v_mov_b32 v{vKA}, v{vLO}")
    a.i(f"v_mov_b32 v{vM}, 0xff800000")
    a.i(f"s_mov_b32 s{sCNT}, s{sNMAX}")
    a.label("K2_MAXLOOP")
    a.i(f"ds_read_b128 v[{KF[0]}:{KF[0]+3}], v{vKA}")
    a.i(f"v_add_u32 v{vKA}, 2048, v{vKA}")
    a.i("s_waitcnt lgkmcnt(0)")
    a.i(f"v_mfma_f32_32x32x16_bf16 v[{S[0]}:{S[0]+15}], v[{KF[0]}:{KF[0]+3}], v[{Q}:{Q+3}], 0")
    a.i("s_nop 11")
    for r in range(8):
        a.i(f"v_max3_f32 v{vM}, v{S[0]+2*r}, v{S[0]+2*r+1}, v{vM}")
    a.i(f"s_sub_u32 s{sCNT}, s{sCNT}, 1")
    a.i(f"s_cmp_lg_u32 s{sCNT}, 0")
    a.i("s_cbranch_scc1 K2_MAXLOOP")
    a.i(f"v_mov_b32 v{vT}, v{vM}")
    a.i("s_nop 1")
    a.i(f"v_permlane32_swap_b32 v{vM}, v{vT}")
    a.i("s_nop 1")
    a.i(f"v_max_f32 v{vM}, v{vM}, v{vT}")
    for r in range(16):
        a.i(f"v_sub_f32 v{NEGM+r}, 0, v{vM}")
    stamp(a, 2)
    a.i(f"v_mov_b32 v{vKA}, v{vLO}")
    a.i(f"v_and_b32 v{vT}, 15, v{vL}")
    a.i(f"v_lshlrev_b32 v{vVA}, 4, v{vT}")
    a.i(f"v_lshrrev_b32 v{vT}, 5, v{vL}")
    a.i(f"v_lshl_add_u32 v{vVA}, v{vT}, 8, v{vVA}")
    a.i(f"v_add_u32 v{vVA}, 1024, v{vVA}")
    def rdK(t, buf):
        a.i(f"ds_read_b128 v[{KF[buf]}:{KF[buf]+3}], v{vKA} offset:{2048*t}")
    def rdV(t, buf):
        a.i(f"s_mov_b64 exec, s[{sVM}:{sVM+1}]")
        a.i(f"ds_read_b128 v[{VF[buf]}:{VF[buf]+3}], v{vVA} offset:{2048*t}")
        a.i(f"ds_read_b128 v[{VF[buf]+4}:{VF[buf]+7}], v{vVA} offset:{2048*t+512}")
        a.i(f"s_mov_b64 exec, -1")
    rdK(0, 0); rdK(1, 1); rdV(0, 0)
    for r in range(16):
        a.i(f"v_mov_b32 v{O+r}, 0")
    for r in range(4, 8):
        a.i(f"v_mov_b32 v{P+r}, 0")
    a.i("s_waitcnt lgkmcnt(3)")
    a.i(f"v_mfma_f32_32x32x16_bf16 v[{S[0]}:{S[0]+15}], v[{KF[0]}:{KF[0]+3}], v[{Q}:{Q+3}], v[{NEGM}:{NEGM+15}]")
    a.i(f"s_mov_b32 s{sCNT}, 8")
    a.i("s_nop 9")
    a.label("K2_LOOP")
    for t in range(8):
        cur, nxt = t % 2, (t + 1) % 2
        sc = S[cur]
        e = lambda k: a.i(f"v_exp_f32 v{sc+k}, v{sc+k}")
        c = lambda k: a.i(f"v_cvt_pk_bf16_f32 v{P+k}, v{sc+2*k}, v{sc+2*k+1}")
        a.i("s_waitcnt lgkmcnt(2)")
        a.i(f"v_mfma_f32_32x32x16_bf16 v[{S[nxt]}:{S[nxt]+15}], v[{KF[nxt]}:{KF[nxt]+3}], v[{Q}:{Q+3}], v[{NEGM}:{NEGM+15}]")
        rdK(t + 2, cur)
        e(0); e(1); e(2); c(0); e(3); e(4); c(1)
        a.i(f"v_mfma_f32_32x32x16_bf16 v[{O}:{O+15}], v[{VF[nxt]+4}:{VF[nxt]+7}], v[{P+4}:{P+7}], v[{O}:{O+15}]")
        rdV(t + 1, nxt)
        e(5); e(6); c(2); e(7); e(8); c(3); e(9); e(10)
        a.i("s_waitcnt lgkmcnt(3)")
        a.i(f"v_mfma_f32_32x32x16_bf16 v[{O}:{O+15}], v[{VF[cur]}:{VF[cur]+3}], v[{P}:{P+3}], v[{O}:{O+15}]")
        c(4); e(11); e(12); c(5); e(13); e(14); c(6); e(15)
        if t == 7:
            a.i(f"v_add_u32 v{vKA}, 0x4000, v{vKA}")
            c(7)
            a.i(f"v_add_u32 v{vVA}, 0x4000, v{vVA}")
        else:
            a.i("s_nop 0")
            c(7)
    a.i(f"s_cmp_eq_u32 s{sFIRST}, 0")
    a.i("s_cbranch_scc1 K2_NOBAR")
    a.i(f"s_mov_b32 s{sFIRST}, 0")
    if DBG:
        a.i("s_memtime s[94:95]")
    a.i("s_waitcnt vmcnt(0)")
    a.i("s_barrier")
    if DBG:
        a.i("s_memtime s[96:97]")
        a.i("s_waitcnt lgkmcnt(0)")
        a.i("s_mov_b32 s67, s94")
        a.i("s_mov_b32 s68, s96")
    a.label("K2_NOBAR")
    a.i(f"s_sub_u32 s{sCNT}, s{sCNT}, 1")
    a.i(f"s_cmp_lg_u32 s{sCNT}, 0")
    a.i("s_cbranch_scc1 K2_LOOP")
    a.i(f"v_mfma_f32_32x32x16_bf16 v[{O}:{O+15}], v[{VF[1]+4}:{VF[1]+7}], v[{P+4}:{P+7}], v[{O}:{O+15}]")
    a.i("s_waitcnt lgkmcnt(0)")
    a.i("s_nop 11")
    stamp(a, 5)
    a.i(f"v_mov_b32 v{vT}, v{O+8}")
    for r in range(8):
        a.i(f"v_fma_f32 v{vT}, v{O+r}, 0, v{vT}")
    a.i(f"v_cmp_gt_f32 vcc, {fhex(2.0**40)}, v{vT}")
    a.i(f"v_rcp_f32 v{vT2}, v{O+8}")
    a.i("s_nop 3")
    a.i(f"s_cmp_eq_u64 vcc, -1")
    a.i("s_cbranch_scc1 K2_OK")
    a.i(f"s_cmp_eq_u32 s{sNMAX}, 64")
    a.i("s_cbranch_scc1 K2_OK")
    a.i(f"s_mov_b32 s{sNMAX}, 64")
    a.i("s_branch K2_MAXPASS")
    a.label("K2_OK")
    a.i(f"v_mul_f32 v{vT2}, v{vT2}, v{vG}")
    for r in range(8):
        a.i(f"v_mul_f32 v{O+r}, v{O+r}, v{vT2}")
    for r in range(4):
        a.i(f"v_cvt_pk_bf16_f32 v{P+r}, v{O+2*r}, v{O+2*r+1}")
    a.i(f"s_mul_i32 s{sT0}, s{sQT}, 144")
    a.i(f"s_add_u32 s{sT0}, s{sT0}, s{sH}")
    a.i(f"s_lshl_b32 s{sT0}, s{sT0}, 10")
    a.i(f"s_add_u32 s{sT0}, s{sT0}, {AF_OFF}")
    a.i(f"buffer_store_dwordx4 v[{P}:{P+3}], v{vLO}, s[{SWS}:{SWS+3}], s{sT0} offen")
    if DBG: a.i("s_waitcnt vmcnt(0)")
    stamp(a, 6)
    stamp_flush(a, 7, SWS, sW, 1)
    a.label("K2_END")
    a.i("s_endpgm")
    return a.text(), kdesc("k2_kernel", NV, 100, NV), 131072 + 8192

def gen_k3():
    a = Asm()
    a.raw(khead("k3_kernel"))
    a.i("s_cmp_ge_u32 s2, 256")
    a.i("s_cbranch_scc1 K3_END")
    SWS, SO = 8, 12
    a.i(f"s_load_dwordx2 s[8:9], s[0:1], 80")
    a.i(f"s_load_dwordx2 s[12:13], s[0:1], 64")
    srd(a, SWS, WS_BYTES); srd(a, SO, 2048*512*2)
    sW, sRP, sCP, sT0, sT1 = 16, 17, 18, 19, 20
    sA, sB = 24, 28
    vL, vT, vLO, vG0, vG1, vT2 = 1, 2, 3, 4, 5, 6
    ACCH, ACCO, FR = 16, 80, 144
    D = 6
    a.i(f"v_and_b32 v{vL}, 63, v0")
    a.i(f"v_lshrrev_b32 v{vT}, 6, v0")
    a.i(f"s_and_b32 s{sT0}, s2, 7")
    a.i(f"v_readfirstlane_b32 s{sW}, v{vT}")
    a.i(f"s_lshl_b32 s{sT0}, s{sT0}, 2")
    a.i(f"s_bfe_u32 s{sT1}, s2, 0x20003")
    a.i(f"s_add_u32 s{sRP}, s{sT0}, s{sT1}")
    a.i(f"s_lshr_b32 s{sCP}, s2, 5")
    a.i(f"v_lshlrev_b32 v{vLO}, 4, v{vL}")
    a.i(f"s_mul_i32 s{sT0}, s{sCP}, {2*144*1024}")
    a.i(f"s_mul_i32 s{sT1}, s{sW}, {28*1024}")
    a.i(f"s_add_u32 s{sA}, s{sT0}, s{sT1}")
    a.i(f"s_add_u32 s{sA}, s{sA}, {WF_OFF + 32*1024}")
    a.i(f"s_add_u32 s{sA+1}, s{sA}, {144*1024}")
    a.i(f"s_lshl_b32 s21, s{sW}, 13")
    a.i(f"s_add_u32 s{sA+2}, s{sT0}, s21")
    a.i(f"s_add_u32 s{sA+2}, s{sA+2}, {WF_OFF}")
    a.i(f"s_add_u32 s{sA+3}, s{sA+2}, {144*1024}")
    a.i(f"s_mul_i32 s{sT0}, s{sRP}, {2*144*1024}")
    a.i(f"s_add_u32 s{sB}, s{sT0}, s{sT1}")
    a.i(f"s_add_u32 s{sB}, s{sB}, {AF_OFF + 32*1024}")
    a.i(f"s_add_u32 s{sB+1}, s{sB}, {144*1024}")
    a.i(f"s_add_u32 s{sB+2}, s{sT0}, s21")
    a.i(f"s_add_u32 s{sB+2}, s{sB+2}, {AF_OFF}")
    a.i(f"s_add_u32 s{sB+3}, s{sB+2}, {144*1024}")
    a.i(f"v_and_b32 v{vT}, 31, v{vL}")
    a.i(f"v_lshlrev_b32 v{vT}, 2, v{vT}")
    a.i(f"s_lshl_b32 s{sT0}, s{sRP}, 8")
    a.i(f"s_add_u32 s{sT0}, s{sT0}, {G_OFF}")
    a.i("s_waitcnt lgkmcnt(0)")
    stamp(a, 0)
    a.vmem(f"buffer_load_dword v{vG0}, v{vT}, s[{SWS}:{SWS+3}], s{sT0} offen", "g")
    a.vmem(f"buffer_load_dword v{vG1}, v{vT}, s[{SWS}:{SWS+3}], s{sT0} offen offset:128", "g")
    NS = 36
    def ld(s):
        part = 0 if s < 28 else 2
        k = s if s < 28 else s - 28
        if k % 4 == 0 and k > 0:
            for r in (sA+part, sA+part+1, sB+part, sB+part+1):
                a.i(f"s_add_u32 s{r}, s{r}, 4096")
        fb = FR + 16 * (s % D)
        off = 1024 * (k % 4)
        for q, r in enumerate((sA+part, sB+part, sA+part+1, sB+part+1)):
            a.vmem(f"buffer_load_dwordx4 v[{fb+4*q}:{fb+4*q+3}], v{vLO}, s[{SWS}:{SWS+3}], s{r} offen offset:{off}", ("f", s))
    for s in range(D - 1): ld(s)
    for s in range(NS):
        if s + D - 1 < NS: ld(s + D - 1)
        a.wait(vm=("f", s))
        if s in (0, 12, 24, 35): stamp(a, 1 + (0, 12, 24, 35).index(s))
        fb = FR + 16 * (s % D)
        A0, B0, A1, B1 = fb, fb+4, fb+8, fb+12
        base = ACCH if s < 28 else ACCO
        first = s == 0 or s == 28
        for ai, A in enumerate((A0, A1)):
            for bi, B in enumerate((B0, B1)):
                acc = base + 16 * (2*ai + bi)
                cin = "0" if first else f"v[{acc}:{acc+15}]"
                a.i(f"v_mfma_f32_32x32x16_bf16 v[{acc}:{acc+15}], v[{A}:{A+3}], v[{B}:{B+3}], {cin}")
    a.i(f"v_sub_f32 v{vG0}, 1.0, v{vG0}")
    a.i(f"v_sub_f32 v{vG1}, 1.0, v{vG1}")
    a.i(f"s_lshl_b32 s{sT0}, s{sW}, 12")
    a.i(f"v_add_u32 v{vT}, s{sT0}, v{vLO}")
    a.i(f"s_lshl_b32 s{sT0}, s{sW}, 14")
    a.i(f"v_add_u32 v{vT2}, s{sT0}, v{vLO}")
    a.i("s_nop 7")
    for tau in range(4):
        bi = tau & 1
        for r in range(16):
            a.i(f"v_fma_f32 v{ACCH+16*tau+r}, v{ACCH+16*tau+r}, v{vG0+bi}, v{ACCO+16*tau+r}")
        for q in range(4):
            b = ACCH + 16*tau + 4*q
            a.i(f"ds_write_b128 v{vT}, v[{b}:{b+3}] offset:{tau*16384 + q*1024}")
    a.i("s_waitcnt lgkmcnt(0)")
    a.i("s_barrier")
    stamp(a, 5)
    for ww in range(4):
        for q in range(4):
            b = FR + 16*ww + 4*q
            a.i(f"ds_read_b128 v[{b}:{b+3}], v{vT2} offset:{ww*4096 + q*1024}")
    a.i(f"s_and_b32 s{sT0}, s{sW}, 1")
    a.i(f"s_lshl_b32 s{sT1}, s{sRP}, 1")
    a.i(f"s_add_u32 s{sT0}, s{sT0}, s{sT1}")
    a.i(f"s_lshl_b32 s{sT0}, s{sT0}, 15")
    a.i(f"s_lshr_b32 s{sT1}, s{sW}, 1")
    a.i(f"s_lshl_b32 s21, s{sCP}, 1")
    a.i(f"s_add_u32 s{sT1}, s{sT1}, s21")
    a.i(f"s_lshl_b32 s{sT1}, s{sT1}, 6")
    a.i(f"s_add_u32 s{sT0}, s{sT0}, s{sT1}")
    a.i(f"v_and_b32 v{vT}, 31, v{vL}")
    a.i(f"v_lshlrev_b32 v{vT}, 10, v{vT}")
    a.i(f"v_lshrrev_b32 v{vT2}, 5, v{vL}")
    a.i(f"v_lshl_add_u32 v{vT}, v{vT2}, 5, v{vT}")
    a.i("s_waitcnt lgkmcnt(0)")
    for r in range(16):
        a.i(f"v_add_f32 v{FR+r}, v{FR+r}, v{FR+16+r}")
        a.i(f"v_add_f32 v{FR+32+r}, v{FR+32+r}, v{FR+48+r}")
    for r in range(16):
        a.i(f"v_add_f32 v{FR+r}, v{FR+r}, v{FR+32+r}")
    for r in range(8):
        a.i(f"v_cvt_pk_bf16_f32 v{ACCH+r}, v{FR+2*r}, v{FR+2*r+1}")
    a.i(f"buffer_store_dwordx4 v[{ACCH}:{ACCH+3}], v{vT}, s[{SO}:{SO+3}], s{sT0} offen")
    a.i(f"buffer_store_dwordx4 v[{ACCH+4}:{ACCH+7}], v{vT}, s[{SO}:{SO+3}], s{sT0} offen offset:16")
    if DBG: a.i("s_waitcnt vmcnt(0)")
    stamp(a, 6)
    stamp_flush(a, 7, SWS, sW, 2)
    a.label("K3_END")
    a.i("s_endpgm")
    return a.text(), kdesc("k3_kernel", 240, 100, 240), 65536

def main(out):
    ref = open(f"cdna_kernels/{NAME}.s.ref").read().splitlines()
    head = [l for l in ref if l.startswith(";") and "@launch" not in l and "Override launch" not in l and "grid=ceil" not in l and "TODO" not in l]
    head = head[:12]
    ks = [("k1_kernel", gen_k1(), 256), ("k2_kernel", gen_k2(), 512), ("k3_kernel", gen_k3(), 256)]
    s = "\n".join(head) + "\n"
    for n, (txt, kd, lds), blk in ks:
        s += f"; @launch kernel={n} grid=(256,1,1) block=({blk},1,1) lds={lds}\n"
    s += '.amdgcn_target "amdgcn-amd-amdhsa--gfx950"\n.text\n'
    for n, (txt, kd, lds), blk in ks:
        s += txt
    s += '.section .rodata,"a"\n'
    for n, (txt, kd, lds), blk in ks:
        s += kd
    open(out, "w").write(s)

if __name__ == "__main__":
    main(sys.argv[1] if len(sys.argv) > 1 and not sys.argv[1].startswith("--") else f"cdna_kernels/{NAME}.s")
```

```python
import sys, math
from asmlib import *

NAME = "gated_mix__mha_block__dense_activation_mish__prompt"
QF_OFF = 0
KV_OFF = 2 << 20
AF_OFF = 6 << 20
WF_OFF = 16 << 20
G_OFF = 19 << 20
WS_BYTES = 32 << 20
LOG2E = 1.4426950408889634
QSCALE = 0.25 * LOG2E

DBG = "--dbg" in sys.argv
DBG_OFF = 24 << 20
def stamp(a, idx):
    if not DBG: return
    a.i("s_memtime s[90:91]")
    if idx == 0: a.i("s_memrealtime s[88:89]")
    a.i("s_waitcnt lgkmcnt(0)")
    a.lg = []
    a.i(f"s_mov_b32 s{64+idx}, s90")
def stamp_flush(a, n, SWS, sW, kid):
    if not DBG: return
    a.i("s_memrealtime s[92:93]")
    a.i("s_waitcnt lgkmcnt(0)")
    a.i(f"s_mov_b32 s{64+n}, s92")
    a.i(f"s_mov_b32 s{65+n}, s88")
    a.i(f"s_getreg_b32 s{66+n}, hwreg(HW_REG_HW_ID)")
    a.i(f"s_getreg_b32 s{67+n}, hwreg(HW_REG_XCC_ID)")
    a.i(f"s_lshl_b32 s90, s2, 4")
    a.i(f"s_add_u32 s90, s90, s{sW}")
    a.i(f"s_lshl_b32 s90, s90, 6")
    a.i(f"s_add_u32 s90, s90, {DBG_OFF + kid*(1<<20)}")
    a.i("v_mov_b32 v1, 0")
    for k in range(n+4):
        a.i(f"v_mov_b32 v2, s{64+k}")
        a.i(f"buffer_store_dword v2, v1, s[{SWS}:{SWS+3}], s90 offen offset:{4*k}")
        a.i("s_nop 1")
RT = "--rt" in sys.argv
def rt_start(a, kid):
    if not RT: return
    a.i("s_memrealtime s[88:89]")
    a.i("s_load_dwordx2 s[84:85], s[0:1], 72")
def rt_end(a, kid):
    if not RT: return
    a.i("s_waitcnt vmcnt(0) lgkmcnt(0)")
    a.i("s_memrealtime s[92:93]")
    a.i(f"s_sub_u32 s84, s84, {512*kid}")
    a.i(f"s_subb_u32 s85, s85, 0")
    a.i("s_waitcnt lgkmcnt(0)")
    a.i("s_not_b32 s88, s88")
    a.i("v_mov_b32 v1, 0")
    a.i("v_mov_b32 v2, s88")
    a.i("v_mov_b32 v3, s92")
    a.i("s_mov_b64 exec, 1")
    a.i(f"global_atomic_umax v1, v2, s[84:85] offset:{8*kid}")
    a.i(f"global_atomic_umax v1, v3, s[84:85] offset:{8*kid+4}")
def srd(a, s, nbytes):
    a.i(f"s_mov_b32 s{s+2}, {nbytes}")
    a.i(f"s_mov_b32 s{s+3}, 0x00020000")

def gen_k1():
    a = Asm()
    a.raw(khead("k1_kernel"))
    a.i("s_cmp_ge_u32 s2, 256")
    a.i("s_cbranch_scc1 K1_END")
    rt_start(a, 0)
    SX, SWQ, SWO, SW1, SB1, SW2, SG, SWS = 8, 12, 16, 20, 24, 28, 32, 36
    for s, off in [(SX, 0), (SWQ, 8), (SWO, 16), (SW1, 32), (SB1, 40), (SW2, 48), (SG, 56), (SWS, 80)]:
        a.i(f"s_load_dwordx2 s[{s}:{s+1}], s[0:1], {off}")
    srd(a, SX, 2048*512*2); srd(a, SWQ, 512*1536*2); srd(a, SWO, 512*512*2); srd(a, SW1, 512*1792*2)
    srd(a, SB1, 1792*2); srd(a, SW2, 1792*512*2); srd(a, SG, 512*2); srd(a, SWS, WS_BYTES)
    sW, sCB, sRB, sXO, sM0W, sSOW, sT0, sT1, sT2, sRT = 40, 41, 42, 43, 44, 45, 46, 47, 48, 49
    sLOG2E, sQS = 50, 51
    vL, vT, vXO, vWO, vTO, vTR0, vTR1, vTT, vST, vSV, vT2, vT3 = 1, 2, 3, 4, 5, 6, 7, 8, 9, 10, 11, 12
    ACC = [16, 32]
    WF = [48, 52, 56, 60]
    TMP = 64
    PK = 112
    BIAS = 128
    BONE = 144
    GX, GW = 148, 156
    a.i(f"v_and_b32 v{vL}, 63, v0")
    a.i(f"v_lshrrev_b32 v{vT}, 6, v0")
    a.i(f"s_and_b32 s{sCB}, s2, 15")
    a.i(f"v_readfirstlane_b32 s{sW}, v{vT}")
    a.i(f"s_lshr_b32 s{sRB}, s2, 4")
    a.i(f"s_mov_b32 s{sLOG2E}, {fhex(LOG2E)}")
    a.i(f"s_mov_b32 s{sQS}, {fhex(QSCALE)}")
    a.i(f"s_lshl_b32 s{sRT}, s{sRB}, 2")
    a.i(f"s_add_u32 s{sRT}, s{sRT}, s{sW}")
    a.i(f"s_lshl_b32 s{sXO}, s{sRT}, 15")
    a.i(f"s_lshl_b32 s{sM0W}, s{sW}, 13")
    a.i(f"v_and_b32 v{vT}, 31, v{vL}")
    a.i(f"v_lshlrev_b32 v{vXO}, 10, v{vT}")
    a.i(f"v_lshrrev_b32 v{vT2}, 5, v{vL}")
    a.i(f"v_lshl_add_u32 v{vXO}, v{vT2}, 4, v{vXO}")
    a.i(f"v_lshrrev_b32 v{vT}, 2, v{vL}")
    a.i(f"v_and_b32 v{vT3}, 3, v{vL}")
    a.i(f"v_lshlrev_b32 v{vTO}, 10, v{vT}")
    a.i(f"v_lshl_add_u32 v{vTO}, v{vT3}, 4, v{vTO}")
    a.i(f"v_and_b32 v{vT}, 3, v{vT}")
    a.i(f"v_lshlrev_b32 v{vTR0}, 9, v{vT2}")
    a.i(f"v_lshl_add_u32 v{vTR0}, v{vT}, 6, v{vTR0}")
    a.i(f"v_lshl_add_u32 v{vTR0}, v{vT3}, 3, v{vTR0}")
    a.i(f"v_bfe_u32 v13, v{vL}, 4, 1")
    a.i(f"v_lshl_add_u32 v{vTR0}, v13, 5, v{vTR0}")
    a.i(f"v_add_u32 v{vTR1}, 0x10000, v{vTR0}")
    a.i(f"v_lshlrev_b32 v{vTT}, 8, v{vT2}")
    a.i(f"v_lshl_add_u32 v{vTT}, v{vT}, 6, v{vTT}")
    a.i(f"v_and_b32 v14, 1, v{vT3}")
    a.i(f"v_lshl_add_u32 v{vTT}, v14, 5, v{vTT}")
    a.i(f"v_lshl_add_u32 v{vTT}, v13, 4, v{vTT}")
    a.i(f"v_lshrrev_b32 v14, 1, v{vT3}")
    a.i(f"v_lshl_add_u32 v{vTT}, v14, 3, v{vTT}")
    a.i(f"s_mul_i32 s{sT0}, s{sW}, 5120")
    a.i(f"s_add_u32 s{sT0}, s{sT0}, 131072")
    a.i(f"v_add_u32 v{vTT}, s{sT0}, v{vTT}")
    a.i(f"v_lshlrev_b32 v{vST}, 4, v{vL}")
    a.i(f"v_and_b32 v14, 15, v{vL}")
    a.i(f"v_lshlrev_b32 v{vSV}, 4, v14")
    a.i(f"v_lshl_add_u32 v{vSV}, v{vT2}, 8, v{vSV}")
    a.i(f"v_lshl_add_u32 v{vSV}, v13, 17, v{vSV}")
    a.i(f"v_add_u32 v{vSV}, 1024, v{vSV}")
    a.i("s_waitcnt lgkmcnt(0)")
    stamp(a, 0)
    a.i(f"s_cmp_ge_u32 s{sCB}, 8")
    a.i("s_cbranch_scc1 K1_F")

    def path(kind):
        isF = kind == "F"
        ldw = 3584 if isF else 3072
        SW = SW1 if isF else SWQ
        a.vm = []; a.lg = []
        a.i(f"v_lshrrev_b32 v{vT}, 2, v{vL}")
        a.i(f"v_mul_u32_u24 v{vWO}, {ldw}, v{vT}")
        a.i(f"v_lshl_add_u32 v{vWO}, v{vT3}, 4, v{vWO}")
        a.i(f"s_mul_i32 s{sSOW}, s{sW}, {128*ldw}")
        if isF:
            a.i(f"s_sub_u32 s{sCB}, s{sCB}, 8")
            a.i(f"s_mul_i32 s{sT0}, s{sCB}, 448")
            tiles = [("F", 64*t) for t in range(7)]
        else:
            a.i(f"s_lshl_b32 s{sT0}, s{sCB}, 7")
            tiles = [("Q", 0), ("Q", 64), ("K", 1024), ("K", 1024+64), ("V", 2048), ("V", 2048+64)]
        a.i(f"s_add_u32 s{sSOW}, s{sSOW}, s{sT0}")
        NT = len(tiles)
        def dma(t):
            slot = t % 4
            for i in range(8):
                a.i(f"s_add_u32 m0, s{sM0W}, {slot*32768 + 1024*i}")
                a.i(f"s_add_u32 s{sT1}, s{sSOW}, {tiles[t][1] + 16*i*ldw}")
                a.vmem(f"buffer_load_dwordx4 v{vWO}, s[{SW}:{SW+3}], s{sT1} offen lds", ("W", t))
        if isF:
            a.i(f"v_and_b32 v{vT}, 31, v{vL}")
            a.i(f"v_lshlrev_b32 v{vT}, 1, v{vT}")
            for r in range(16):
                if r % 2 == 1 or r >= 14:
                    a.i(f"v_mov_b32 v{BIAS+r}, 0")
            for t in range(7):
                a.vmem(f"buffer_load_ushort v{BIAS+2*t}, v{vT}, s[{SB1}:{SB1+3}], s{sT0} offen offset:{64*t}", "bias")
            a.i(f"v_cmp_gt_u32 vcc, 32, v{vL}")
            a.i(f"v_mov_b32 v{BONE+1}, 0")
            a.i(f"v_mov_b32 v{BONE+2}, 0")
            a.i(f"v_mov_b32 v{BONE+3}, 0")
            a.i(f"v_mov_b32 v{vT}, 0x3f80")
            a.i(f"v_cndmask_b32 v{BONE}, 0, v{vT}, vcc")
        dma(0)
        for s in range(32):
            a.vmem(f"buffer_load_dwordx4 a[{4*s}:{4*s+3}], v{vXO}, s[{SX}:{SX+3}], s{sXO} offen offset:{32*s}", ("x", s))
        dma(1); dma(2)

        def epilogue(t):
            kindt, cofs = tiles[t]
            acc = ACC[t % 2]
            pk = PK + 8 * (t % 2)
            F = []
            def I(s): F.append(lambda s=s: a.i(s))
            def ST(s): F.append(lambda s=s: a.vmem(s, "st"))
            if kindt == "F":
                for gq in range(4):
                    els = [4*gq + e for e in range(4)]
                    T = lambda e, k: TMP + 12*(gq % 2) + 3*(e % 4) + k
                    for e in els: I(f"v_mul_f32 v{T(e,0)}, s{sLOG2E}, v{acc+e}")
                    for e in els: I(f"v_min_f32 v{T(e,0)}, 0x41f00000, v{T(e,0)}")
                    for e in els: I(f"v_exp_f32 v{T(e,0)}, v{T(e,0)}")
                    for e in els: I(f"v_add_f32 v{T(e,1)}, 2.0, v{T(e,0)}")
                    for e in els: I(f"v_mul_f32 v{T(e,1)}, v{T(e,0)}, v{T(e,1)}")
                    for e in els: I(f"v_add_f32 v{T(e,2)}, 2.0, v{T(e,1)}")
                    for e in els: I(f"v_rcp_f32 v{T(e,2)}, v{T(e,2)}")
                    for e in els: I(f"v_mul_f32 v{T(e,1)}, v{T(e,1)}, v{T(e,2)}")
                    for e in els: I(f"v_mul_f32 v{T(e,0)}, v{acc+e}, v{T(e,1)}")
                    I(f"v_cvt_pk_bf16_f32 v{pk+2*gq}, v{T(els[0],0)}, v{T(els[1],0)}")
                    I(f"v_cvt_pk_bf16_f32 v{pk+2*gq+1}, v{T(els[2],0)}, v{T(els[3],0)}")
                I(f"s_mul_i32 s{sT2}, s{sRT}, 144")
                I(f"s_mul_i32 s{sT1}, s{sCB}, 14")
                I(f"s_add_u32 s{sT2}, s{sT2}, s{sT1}")
                I(f"s_lshl_b32 s{sT2}, s{sT2}, 10")
                I(f"s_add_u32 s{sT2}, s{sT2}, {AF_OFF + (32 + 2*t)*1024}")
                ST(f"buffer_store_dwordx4 v[{pk}:{pk+3}], v{vST}, s[{SWS}:{SWS+3}], s{sT2} offen")
                ST(f"buffer_store_dwordx4 v[{pk+4}:{pk+7}], v{vST}, s[{SWS}:{SWS+3}], s{sT2} offen offset:1024")
            else:
                j = t % 2
                if kindt == "Q":
                    for e in range(16): I(f"v_mul_f32 v{TMP+e}, s{sQS}, v{acc+e}")
                    src = TMP
                else:
                    src = acc
                for e in range(8): I(f"v_cvt_pk_bf16_f32 v{pk+e}, v{src+2*e}, v{src+2*e+1}")
                if kindt == "Q":
                    I(f"s_lshl_b32 s{sT2}, s{sCB}, 18")
                    I(f"s_lshl_b32 s{sT1}, s{sRT}, 10")
                    I(f"s_add_u32 s{sT2}, s{sT2}, s{sT1}")
                    I(f"s_add_u32 s{sT2}, s{sT2}, {QF_OFF + 2*j*65536}")
                    I(f"s_add_u32 s{sT1}, s{sT2}, 65536")
                    ST(f"buffer_store_dwordx4 v[{pk}:{pk+3}], v{vST}, s[{SWS}:{SWS+3}], s{sT2} offen")
                    ST(f"buffer_store_dwordx4 v[{pk+4}:{pk+7}], v{vST}, s[{SWS}:{SWS+3}], s{sT1} offen")
                else:
                    I(f"s_lshl_b32 s{sT2}, s{sCB}, 19")
                    I(f"s_lshl_b32 s{sT1}, s{sRT}, 11")
                    I(f"s_add_u32 s{sT2}, s{sT2}, s{sT1}")
                    I(f"s_add_u32 s{sT2}, s{sT2}, {KV_OFF + 2*j*131072}")
                    if kindt == "K":
                        I(f"s_add_u32 s{sT1}, s{sT2}, 131072")
                        ST(f"buffer_store_dwordx4 v[{pk}:{pk+3}], v{vST}, s[{SWS}:{SWS+3}], s{sT2} offen")
                        ST(f"buffer_store_dwordx4 v[{pk+4}:{pk+7}], v{vST}, s[{SWS}:{SWS+3}], s{sT1} offen")
                    else:
                        ST(f"buffer_store_dwordx4 v[{pk}:{pk+3}], v{vSV}, s[{SWS}:{SWS+3}], s{sT2} offen")
                        ST(f"buffer_store_dwordx4 v[{pk+4}:{pk+7}], v{vSV}, s[{SWS}:{SWS+3}], s{sT2} offen offset:512")
            return F

        fill = []
        last_mfma_n = -100
        for t in range(NT):
            kindt, cofs = tiles[t]
            slot = t % 4
            acc = ACC[t % 2]
            trv = vTR0 if slot < 2 else vTR1
            tro = (slot % 2) * 32768
            a.c(f"---- tile {t} ({kindt})")
            a.wait(vm=("W", t))
            a.i("s_barrier")
            stamp(a, 1 + t)
            def rd(s):
                b = WF[s % 4]
                a.lds(f"ds_read_b64_tr_b16 v[{b}:{b+1}], v{trv} offset:{tro + 1024*s}", ("wf", s))
                a.lds(f"ds_read_b64_tr_b16 v[{b+2}:{b+3}], v{trv} offset:{tro + 1024*s + 256}", ("wf", s))
            rd(0); rd(1); rd(2)
            if t + 3 < NT:
                dma(t + 3)
            if t == 1:
                a.i(f"s_lshl_b32 s{sT1}, s2, 3")
                a.i(f"s_lshl_b32 s{sT2}, s{sW}, 1")
                a.i(f"s_add_u32 s{sT1}, s{sT1}, s{sT2}")
                a.i(f"s_lshl_b32 s{sT1}, s{sT1}, 10")
                a.i(f"v_lshlrev_b32 v13, 5, v{vL}")
                a.i(f"v_and_b32 v14, 0x3ff, v13")
                a.vmem(f"buffer_load_dwordx4 v[{GX}:{GX+3}], v13, s[{SX}:{SX+3}], s{sT1} offen", "g")
                a.vmem(f"buffer_load_dwordx4 v[{GX+4}:{GX+7}], v13, s[{SX}:{SX+3}], s{sT1} offen offset:16", "g")
                a.vmem(f"buffer_load_dwordx4 v[{GW}:{GW+3}], v14, s[{SG}:{SG+3}], 0 offen", "g")
                a.vmem(f"buffer_load_dwordx4 v[{GW+4}:{GW+7}], v14, s[{SG}:{SG+3}], 0 offen offset:16", "g")
            if t == 3 and not isF:
                a.i(f"s_mul_i32 s{sT0}, s{sW}, 5120")
                a.i(f"s_add_u32 s{sT0}, s{sT0}, 131072")
                a.i(f"s_lshl_b32 s52, s{sCB}, 2")
                a.i(f"s_add_u32 s52, s52, s{sW}")
                a.i(f"s_lshl_b32 s{sT1}, s52, 14")
                a.i(f"s_lshl_b32 s{sT2}, s{sRB}, 6")
                a.i(f"s_mov_b32 m0, s{sT0}")
                a.i(f"s_add_u32 s{sT1}, s{sT1}, s{sT2}")
                a.vmem(f"buffer_load_dwordx4 v{vTO}, s[{SWO}:{SWO+3}], s{sT1} offen lds", "tr")
                for j in range(4):
                    a.i(f"s_add_u32 s{53+j}, s{sW}, {4*j}")
                    if j == 3:
                        a.i(f"s_min_u32 s{53+j}, s{53+j}, 13")
                    a.i(f"s_mul_i32 s{sT1}, s{sCB}, 14")
                    a.i(f"s_add_u32 s{53+j}, s{53+j}, s{sT1}")
                    a.i(f"s_lshl_b32 s{sT1}, s{53+j}, 14")
                    a.i(f"s_add_u32 m0, s{sT0}, {1024*(j+1)}")
                    a.i(f"s_add_u32 s{sT1}, s{sT1}, s{sT2}")
                    a.vmem(f"buffer_load_dwordx4 v{vTO}, s[{SW2}:{SW2+3}], s{sT1} offen lds", "tr")
            per = -(-len(fill) // 28) if fill else 0
            if isF:
                if t == 0: a.wait(vm="bias")
                a.i(f"v_mfma_f32_32x32x16_bf16 v[{acc}:{acc+15}], v[{BIAS+2*t}:{BIAS+2*t+3}], v[{BONE}:{BONE+3}], 0")
            for s in range(32):
                if s + 3 < 32: rd(s + 3)
                if t == 0 and s % 4 == 0:
                    a.wait(vm=("x", s + 3), lg=("wf", s))
                else:
                    a.wait(lg=("wf", s))
                b = WF[s % 4]
                cin = "0" if (s == 0 and not isF) else f"v[{acc}:{acc+15}]"
                if kindt == "V":
                    a.i(f"v_mfma_f32_32x32x16_bf16 v[{acc}:{acc+15}], a[{4*s}:{4*s+3}], v[{b}:{b+3}], {cin}")
                else:
                    a.i(f"v_mfma_f32_32x32x16_bf16 v[{acc}:{acc+15}], v[{b}:{b+3}], a[{4*s}:{4*s+3}], {cin}")
                if fill and a.n - last_mfma_n >= 14:
                    for _ in range(per):
                        if fill: fill.pop(0)()
            while fill: fill.pop(0)()
            last_mfma_n = a.n
            fill = epilogue(t)
        stamp(a, 8)
        a.c("---- gate")
        a.wait(vm="g")
        a.i(f"v_mov_b32 v13, 0")
        a.i(f"v_mov_b32 v14, 0")
        for k in range(8):
            a.i(f"v_dot2_f32_bf16 v{13+k%2}, v{GX+k}, v{GW+k}, v{13+k%2}")
        a.i("s_nop 2")
        a.i(f"v_add_f32 v13, v13, v14")
        a.i("s_nop 1")
        a.i(f"v_add_f32_dpp v13, v13, v13 quad_perm:[1,0,3,2] row_mask:0xf bank_mask:0xf")
        a.i("s_nop 1")
        a.i(f"v_add_f32_dpp v13, v13, v13 quad_perm:[2,3,0,1] row_mask:0xf bank_mask:0xf")
        a.i("s_nop 1")
        a.i(f"v_add_f32_dpp v13, v13, v13 row_half_mirror row_mask:0xf bank_mask:0xf")
        a.i("s_nop 1")
        a.i(f"v_add_f32_dpp v13, v13, v13 row_mirror row_mask:0xf bank_mask:0xf")
        a.lds(f"ds_swizzle_b32 v14, v13 offset:0x401F", "sw")
        while fill: fill.pop(0)()
        a.wait(lg="sw")
        a.i(f"v_add_f32 v13, v13, v14")
        a.i(f"v_mul_f32 v13, s{sLOG2E}, v13")
        a.i(f"v_exp_f32 v13, -v13")
        a.i("s_nop 0")
        a.i(f"v_add_f32 v13, 1.0, v13")
        a.i(f"v_rcp_f32 v13, v13")
        a.i(f"s_lshl_b32 s{sT1}, s2, 3")
        a.i(f"s_lshl_b32 s{sT2}, s{sW}, 1")
        a.i(f"s_add_u32 s{sT1}, s{sT1}, s{sT2}")
        a.i(f"s_lshl_b32 s{sT1}, s{sT1}, 2")
        a.i(f"s_add_u32 s{sT1}, s{sT1}, {G_OFF}")
        a.i(f"v_lshrrev_b32 v14, 5, v{vL}")
        a.i(f"v_lshlrev_b32 v14, 2, v14")
        a.i(f"s_mov_b32 s58, 1")
        a.i(f"s_mov_b32 s59, 1")
        a.i(f"s_mov_b64 exec, s[58:59]")
        a.vmem(f"buffer_store_dword v13, v14, s[{SWS}:{SWS+3}], s{sT1} offen", "st")
        a.i(f"s_mov_b64 exec, -1")
        if not isF:
            a.c("---- transposes")
            a.wait(vm="tr")
            for j in range(5):
                b = TMP + 4*j
                a.lds(f"ds_read_b64_tr_b16 v[{b}:{b+1}], v{vTT} offset:{1024*j}", ("tt", j))
                a.lds(f"ds_read_b64_tr_b16 v[{b+2}:{b+3}], v{vTT} offset:{1024*j+512}", ("tt", j))
            a.i(f"s_mul_i32 s{sT2}, s{sRB}, 144")
            for j in range(5):
                b = TMP + 4*j
                a.i(f"s_add_u32 s{sT1}, s{sT2}, s{52+j}")
                a.i(f"s_lshl_b32 s{sT1}, s{sT1}, 10")
                a.i(f"s_add_u32 s{sT1}, s{sT1}, {WF_OFF + (32*1024 if j else 0)}")
                a.wait(lg=("tt", j))
                a.vmem(f"buffer_store_dwordx4 v[{b}:{b+3}], v{vST}, s[{SWS}:{SWS+3}], s{sT1} offen", "st")
        stamp(a, 9)
        if DBG: a.i("s_waitcnt vmcnt(0)")
        stamp(a, 10)
        stamp_flush(a, 11, SWS, sW, 0)
        rt_end(a, 0)
        a.i("s_endpgm")

    path("QKV")
    a.label("K1_F")
    path("F")
    a.label("K1_END")
    a.i("s_endpgm")
    return a.text(), kdesc("k1_kernel", 168 + 128, 100, 168), 131072 + 4*5120

def gen_k2():
    a = Asm()
    a.raw(khead("k2_kernel"))
    a.i("s_cmp_ge_u32 s2, 256")
    a.i("s_cbranch_scc1 K2_END")
    rt_start(a, 1)
    SWS = 8
    a.i(f"s_load_dwordx2 s[8:9], s[0:1], 80")
    srd(a, SWS, WS_BYTES)
    sW, sH, sQT, sT0, sT1, sCNT, sNMAX, sFIRST = 12, 13, 14, 15, 16, 17, 18, 19
    sVM = 20
    vL, vT, vLO, vKA, vVA, vG, vM, vT2 = 1, 2, 3, 4, 5, 6, 7, 8
    Q = 12
    NEGM = 16
    S = [32, 48]
    O = 64
    P = 80
    KF = [88, 92]
    VF = [96, 104]
    NV = 112
    a.i(f"v_and_b32 v{vL}, 63, v0")
    a.i(f"v_lshrrev_b32 v{vT}, 6, v0")
    a.i(f"s_and_b32 s{sT0}, s2, 7")
    a.i(f"v_readfirstlane_b32 s{sW}, v{vT}")
    a.i(f"s_lshl_b32 s{sT0}, s{sT0}, 2")
    a.i(f"s_bfe_u32 s{sT1}, s2, 0x20003")
    a.i(f"s_add_u32 s{sH}, s{sT0}, s{sT1}")
    a.i(f"s_lshr_b32 s{sQT}, s2, 5")
    a.i(f"s_lshl_b32 s{sQT}, s{sQT}, 3")
    a.i(f"s_add_u32 s{sQT}, s{sQT}, s{sW}")
    a.i(f"v_lshlrev_b32 v{vLO}, 4, v{vL}")
    a.i(f"s_mov_b32 s{sVM}, 0xffff")
    a.i(f"s_mov_b32 s{sVM+1}, 0xffff")
    a.i(f"s_lshl_b32 s{sT0}, s{sH}, 6")
    a.i(f"s_add_u32 s{sT0}, s{sT0}, s{sQT}")
    a.i(f"s_lshl_b32 s{sT0}, s{sT0}, 10")
    if QF_OFF: a.i(f"s_add_u32 s{sT0}, s{sT0}, {QF_OFF}")
    a.i(f"s_lshl_b32 s22, s{sH}, 17")
    a.i(f"s_lshl_b32 s23, s{sW}, 10")
    a.i(f"s_add_u32 s22, s22, s23")
    a.i("s_waitcnt lgkmcnt(0)")
    stamp(a, 0)
    a.vmem(f"buffer_load_dwordx4 v[{Q}:{Q+3}], v{vLO}, s[{SWS}:{SWS+3}], s{sT0} offen", "q")
    for t in range(16):
        a.i(f"s_add_u32 m0, s23, {8192*t}")
        a.i(f"s_add_u32 s{sT1}, s22, {KV_OFF + 8192*t}")
        a.vmem(f"buffer_load_dwordx4 v{vLO}, s[{SWS}:{SWS+3}], s{sT1} offen lds", ("kv", t))
    a.i(f"v_and_b32 v{vT}, 31, v{vL}")
    a.i(f"v_lshlrev_b32 v{vT}, 2, v{vT}")
    a.i(f"s_lshl_b32 s{sT0}, s{sQT}, 7")
    a.i(f"s_add_u32 s{sT0}, s{sT0}, {G_OFF}")
    a.vmem(f"buffer_load_dword v{vG}, v{vT}, s[{SWS}:{SWS+3}], s{sT0} offen", "g")
    for r in range(16):
        a.i(f"v_mov_b32 v{VF[0]+r}, 0x3f803f80")
    a.i(f"s_mov_b32 s{sNMAX}, 1")
    a.i(f"s_mov_b32 s{sFIRST}, 1")
    a.wait(vm=("kv", 2))
    a.i("s_barrier")
    a.vm = []
    stamp(a, 1)
    a.label("K2_MAXPASS")
    a.i(f"v_mov_b32 v{vKA}, v{vLO}")
    a.i(f"v_mov_b32 v{vM}, 0xff800000")
    a.i(f"s_mov_b32 s{sCNT}, s{sNMAX}")
    a.label("K2_MAXLOOP")
    a.i(f"ds_read_b128 v[{KF[0]}:{KF[0]+3}], v{vKA}")
    a.i(f"v_add_u32 v{vKA}, 2048, v{vKA}")
    a.i("s_waitcnt lgkmcnt(0)")
    a.i(f"v_mfma_f32_32x32x16_bf16 v[{S[0]}:{S[0]+15}], v[{KF[0]}:{KF[0]+3}], v[{Q}:{Q+3}], 0")
    a.i("s_nop 11")
    for r in range(8):
        a.i(f"v_max3_f32 v{vM}, v{S[0]+2*r}, v{S[0]+2*r+1}, v{vM}")
    a.i(f"s_sub_u32 s{sCNT}, s{sCNT}, 1")
    a.i(f"s_cmp_lg_u32 s{sCNT}, 0")
    a.i("s_cbranch_scc1 K2_MAXLOOP")
    a.i(f"v_mov_b32 v{vT}, v{vM}")
    a.i("s_nop 1")
    a.i(f"v_permlane32_swap_b32 v{vM}, v{vT}")
    a.i("s_nop 1")
    a.i(f"v_max_f32 v{vM}, v{vM}, v{vT}")
    for r in range(16):
        a.i(f"v_sub_f32 v{NEGM+r}, 0, v{vM}")
    stamp(a, 2)
    a.i(f"v_mov_b32 v{vKA}, v{vLO}")
    a.i(f"v_and_b32 v{vT}, 15, v{vL}")
    a.i(f"v_lshlrev_b32 v{vVA}, 4, v{vT}")
    a.i(f"v_lshrrev_b32 v{vT}, 5, v{vL}")
    a.i(f"v_lshl_add_u32 v{vVA}, v{vT}, 8, v{vVA}")
    a.i(f"v_add_u32 v{vVA}, 1024, v{vVA}")
    def rdK(t, buf):
        a.i(f"ds_read_b128 v[{KF[buf]}:{KF[buf]+3}], v{vKA} offset:{2048*t}")
    def rdV(t, buf):
        a.i(f"s_mov_b64 exec, s[{sVM}:{sVM+1}]")
        a.i(f"ds_read_b128 v[{VF[buf]}:{VF[buf]+3}], v{vVA} offset:{2048*t}")
        a.i(f"ds_read_b128 v[{VF[buf]+4}:{VF[buf]+7}], v{vVA} offset:{2048*t+512}")
        a.i(f"s_mov_b64 exec, -1")
    rdK(0, 0); rdK(1, 1); rdV(0, 0)
    for r in range(16):
        a.i(f"v_mov_b32 v{O+r}, 0")
    for r in range(4, 8):
        a.i(f"v_mov_b32 v{P+r}, 0")
    a.i("s_waitcnt lgkmcnt(3)")
    a.i(f"v_mfma_f32_32x32x16_bf16 v[{S[0]}:{S[0]+15}], v[{KF[0]}:{KF[0]+3}], v[{Q}:{Q+3}], v[{NEGM}:{NEGM+15}]")
    a.i(f"s_mov_b32 s{sCNT}, 8")
    a.i("s_nop 9")
    a.label("K2_LOOP")
    for t in range(8):
        cur, nxt = t % 2, (t + 1) % 2
        sc = S[cur]
        e = lambda k: a.i(f"v_exp_f32 v{sc+k}, v{sc+k}")
        c = lambda k: a.i(f"v_cvt_pk_bf16_f32 v{P+k}, v{sc+2*k}, v{sc+2*k+1}")
        a.i("s_waitcnt lgkmcnt(2)")
        a.i(f"v_mfma_f32_32x32x16_bf16 v[{S[nxt]}:{S[nxt]+15}], v[{KF[nxt]}:{KF[nxt]+3}], v[{Q}:{Q+3}], v[{NEGM}:{NEGM+15}]")
        rdK(t + 2, cur)
        e(0); e(1); e(2); c(0); e(3); e(4); c(1)
        a.i(f"v_mfma_f32_32x32x16_bf16 v[{O}:{O+15}], v[{VF[nxt]+4}:{VF[nxt]+7}], v[{P+4}:{P+7}], v[{O}:{O+15}]")
        rdV(t + 1, nxt)
        e(5); e(6); c(2); e(7); e(8); c(3); e(9); e(10)
        a.i("s_waitcnt lgkmcnt(3)")
        a.i(f"v_mfma_f32_32x32x16_bf16 v[{O}:{O+15}], v[{VF[cur]}:{VF[cur]+3}], v[{P}:{P+3}], v[{O}:{O+15}]")
        c(4); e(11); e(12); c(5); e(13); e(14); c(6); e(15)
        if t == 7:
            a.i(f"v_add_u32 v{vKA}, 0x4000, v{vKA}")
            c(7)
            a.i(f"v_add_u32 v{vVA}, 0x4000, v{vVA}")
        else:
            a.i("s_nop 0")
            c(7)
    a.i(f"s_cmp_eq_u32 s{sFIRST}, 0")
    a.i("s_cbranch_scc1 K2_NOBAR")
    a.i(f"s_mov_b32 s{sFIRST}, 0")
    if DBG:
        a.i("s_memtime s[94:95]")
    a.i("s_waitcnt vmcnt(0)")
    a.i("s_barrier")
    if DBG:
        a.i("s_memtime s[96:97]")
        a.i("s_waitcnt lgkmcnt(0)")
        a.i("s_mov_b32 s67, s94")
        a.i("s_mov_b32 s68, s96")
    a.label("K2_NOBAR")
    a.i(f"s_sub_u32 s{sCNT}, s{sCNT}, 1")
    a.i(f"s_cmp_lg_u32 s{sCNT}, 0")
    a.i("s_cbranch_scc1 K2_LOOP")
    a.i(f"v_mfma_f32_32x32x16_bf16 v[{O}:{O+15}], v[{VF[1]+4}:{VF[1]+7}], v[{P+4}:{P+7}], v[{O}:{O+15}]")
    a.i("s_waitcnt lgkmcnt(0)")
    a.i("s_nop 11")
    stamp(a, 5)
    a.i(f"v_mov_b32 v{vT}, v{O+8}")
    for r in range(8):
        a.i(f"v_fma_f32 v{vT}, v{O+r}, 0, v{vT}")
    a.i(f"v_cmp_gt_f32 vcc, {fhex(2.0**40)}, v{vT}")
    a.i(f"v_rcp_f32 v{vT2}, v{O+8}")
    a.i("s_nop 3")
    a.i(f"s_cmp_eq_u64 vcc, -1")
    a.i("s_cbranch_scc1 K2_OK")
    a.i(f"s_cmp_eq_u32 s{sNMAX}, 64")
    a.i("s_cbranch_scc1 K2_OK")
    a.i(f"s_mov_b32 s{sNMAX}, 64")
    a.i("s_branch K2_MAXPASS")
    a.label("K2_OK")
    a.i(f"v_mul_f32 v{vT2}, v{vT2}, v{vG}")
    for r in range(8):
        a.i(f"v_mul_f32 v{O+r}, v{O+r}, v{vT2}")
    for r in range(4):
        a.i(f"v_cvt_pk_bf16_f32 v{P+r}, v{O+2*r}, v{O+2*r+1}")
    a.i(f"s_mul_i32 s{sT0}, s{sQT}, 144")
    a.i(f"s_add_u32 s{sT0}, s{sT0}, s{sH}")
    a.i(f"s_lshl_b32 s{sT0}, s{sT0}, 10")
    a.i(f"s_add_u32 s{sT0}, s{sT0}, {AF_OFF}")
    a.i(f"buffer_store_dwordx4 v[{P}:{P+3}], v{vLO}, s[{SWS}:{SWS+3}], s{sT0} offen")
    if DBG: a.i("s_waitcnt vmcnt(0)")
    stamp(a, 6)
    stamp_flush(a, 7, SWS, sW, 1)
    rt_end(a, 1)
    a.label("K2_END")
    a.i("s_endpgm")
    return a.text(), kdesc("k2_kernel", NV, 100, NV), 131072 + 8192

def gen_k3():
    a = Asm()
    a.raw(khead("k3_kernel"))
    a.i("s_cmp_ge_u32 s2, 256")
    a.i("s_cbranch_scc1 K3_END")
    rt_start(a, 2)
    SWS, SO = 8, 12
    a.i(f"s_load_dwordx2 s[8:9], s[0:1], 80")
    a.i(f"s_load_dwordx2 s[12:13], s[0:1], 64")
    srd(a, SWS, WS_BYTES); srd(a, SO, 2048*512*2)
    sW, sRP, sCP, sT0, sT1 = 16, 17, 18, 19, 20
    sA, sB = 24, 28
    vL, vT, vLO, vG0, vG1, vT2 = 1, 2, 3, 4, 5, 6
    ACCH, ACCO, FR = 16, 80, 144
    D = 6
    a.i(f"v_and_b32 v{vL}, 63, v0")
    a.i(f"v_lshrrev_b32 v{vT}, 6, v0")
    a.i(f"s_and_b32 s{sT0}, s2, 7")
    a.i(f"v_readfirstlane_b32 s{sW}, v{vT}")
    a.i(f"s_lshl_b32 s{sT0}, s{sT0}, 2")
    a.i(f"s_bfe_u32 s{sT1}, s2, 0x20003")
    a.i(f"s_add_u32 s{sRP}, s{sT0}, s{sT1}")
    a.i(f"s_lshr_b32 s{sCP}, s2, 5")
    a.i(f"v_lshlrev_b32 v{vLO}, 4, v{vL}")
    a.i(f"s_mul_i32 s{sT0}, s{sCP}, {2*144*1024}")
    a.i(f"s_mul_i32 s{sT1}, s{sW}, {28*1024}")
    a.i(f"s_add_u32 s{sA}, s{sT0}, s{sT1}")
    a.i(f"s_add_u32 s{sA}, s{sA}, {WF_OFF + 32*1024}")
    a.i(f"s_add_u32 s{sA+1}, s{sA}, {144*1024}")
    a.i(f"s_lshl_b32 s21, s{sW}, 13")
    a.i(f"s_add_u32 s{sA+2}, s{sT0}, s21")
    a.i(f"s_add_u32 s{sA+2}, s{sA+2}, {WF_OFF}")
    a.i(f"s_add_u32 s{sA+3}, s{sA+2}, {144*1024}")
    a.i(f"s_mul_i32 s{sT0}, s{sRP}, {2*144*1024}")
    a.i(f"s_add_u32 s{sB}, s{sT0}, s{sT1}")
    a.i(f"s_add_u32 s{sB}, s{sB}, {AF_OFF + 32*1024}")
    a.i(f"s_add_u32 s{sB+1}, s{sB}, {144*1024}")
    a.i(f"s_add_u32 s{sB+2}, s{sT0}, s21")
    a.i(f"s_add_u32 s{sB+2}, s{sB+2}, {AF_OFF}")
    a.i(f"s_add_u32 s{sB+3}, s{sB+2}, {144*1024}")
    a.i(f"v_and_b32 v{vT}, 31, v{vL}")
    a.i(f"v_lshlrev_b32 v{vT}, 2, v{vT}")
    a.i(f"s_lshl_b32 s{sT0}, s{sRP}, 8")
    a.i(f"s_add_u32 s{sT0}, s{sT0}, {G_OFF}")
    a.i("s_waitcnt lgkmcnt(0)")
    stamp(a, 0)
    a.vmem(f"buffer_load_dword v{vG0}, v{vT}, s[{SWS}:{SWS+3}], s{sT0} offen", "g")
    a.vmem(f"buffer_load_dword v{vG1}, v{vT}, s[{SWS}:{SWS+3}], s{sT0} offen offset:128", "g")
    NS = 36
    def ld(s):
        part = 0 if s < 28 else 2
        k = s if s < 28 else s - 28
        if k % 4 == 0 and k > 0:
            for r in (sA+part, sA+part+1, sB+part, sB+part+1):
                a.i(f"s_add_u32 s{r}, s{r}, 4096")
        fb = FR + 16 * (s % D)
        off = 1024 * (k % 4)
        for q, r in enumerate((sA+part, sB+part, sA+part+1, sB+part+1)):
            a.vmem(f"buffer_load_dwordx4 v[{fb+4*q}:{fb+4*q+3}], v{vLO}, s[{SWS}:{SWS+3}], s{r} offen offset:{off}", ("f", s))
    for s in range(D - 1): ld(s)
    for s in range(NS):
        if s + D - 1 < NS: ld(s + D - 1)
        a.wait(vm=("f", s))
        if s in (0, 12, 24, 35): stamp(a, 1 + (0, 12, 24, 35).index(s))
        fb = FR + 16 * (s % D)
        A0, B0, A1, B1 = fb, fb+4, fb+8, fb+12
        base = ACCH if s < 28 else ACCO
        first = s == 0 or s == 28
        for ai, A in enumerate((A0, A1)):
            for bi, B in enumerate((B0, B1)):
                acc = base + 16 * (2*ai + bi)
                cin = "0" if first else f"v[{acc}:{acc+15}]"
                a.i(f"v_mfma_f32_32x32x16_bf16 v[{acc}:{acc+15}], v[{A}:{A+3}], v[{B}:{B+3}], {cin}")
    a.i(f"v_sub_f32 v{vG0}, 1.0, v{vG0}")
    a.i(f"v_sub_f32 v{vG1}, 1.0, v{vG1}")
    a.i(f"s_lshl_b32 s{sT0}, s{sW}, 12")
    a.i(f"v_add_u32 v{vT}, s{sT0}, v{vLO}")
    a.i(f"s_lshl_b32 s{sT0}, s{sW}, 14")
    a.i(f"v_add_u32 v{vT2}, s{sT0}, v{vLO}")
    a.i("s_nop 7")
    for tau in range(4):
        bi = tau & 1
        for r in range(16):
            a.i(f"v_fma_f32 v{ACCH+16*tau+r}, v{ACCH+16*tau+r}, v{vG0+bi}, v{ACCO+16*tau+r}")
        for q in range(4):
            b = ACCH + 16*tau + 4*q
            a.i(f"ds_write_b128 v{vT}, v[{b}:{b+3}] offset:{tau*16384 + q*1024}")
    a.i("s_waitcnt lgkmcnt(0)")
    a.i("s_barrier")
    stamp(a, 5)
    for ww in range(4):
        for q in range(4):
            b = FR + 16*ww + 4*q
            a.i(f"ds_read_b128 v[{b}:{b+3}], v{vT2} offset:{ww*4096 + q*1024}")
    a.i(f"s_and_b32 s{sT0}, s{sW}, 1")
    a.i(f"s_lshl_b32 s{sT1}, s{sRP}, 1")
    a.i(f"s_add_u32 s{sT0}, s{sT0}, s{sT1}")
    a.i(f"s_lshl_b32 s{sT0}, s{sT0}, 15")
    a.i(f"s_lshr_b32 s{sT1}, s{sW}, 1")
    a.i(f"s_lshl_b32 s21, s{sCP}, 1")
    a.i(f"s_add_u32 s{sT1}, s{sT1}, s21")
    a.i(f"s_lshl_b32 s{sT1}, s{sT1}, 6")
    a.i(f"s_add_u32 s{sT0}, s{sT0}, s{sT1}")
    a.i(f"v_and_b32 v{vT}, 31, v{vL}")
    a.i(f"v_lshlrev_b32 v{vT}, 10, v{vT}")
    a.i(f"v_lshrrev_b32 v{vT2}, 5, v{vL}")
    a.i(f"v_lshl_add_u32 v{vT}, v{vT2}, 5, v{vT}")
    a.i("s_waitcnt lgkmcnt(0)")
    for r in range(16):
        a.i(f"v_add_f32 v{FR+r}, v{FR+r}, v{FR+16+r}")
        a.i(f"v_add_f32 v{FR+32+r}, v{FR+32+r}, v{FR+48+r}")
    for r in range(16):
        a.i(f"v_add_f32 v{FR+r}, v{FR+r}, v{FR+32+r}")
    for r in range(8):
        a.i(f"v_cvt_pk_bf16_f32 v{ACCH+r}, v{FR+2*r}, v{FR+2*r+1}")
    a.i(f"buffer_store_dwordx4 v[{ACCH}:{ACCH+3}], v{vT}, s[{SO}:{SO+3}], s{sT0} offen")
    a.i(f"buffer_store_dwordx4 v[{ACCH+4}:{ACCH+7}], v{vT}, s[{SO}:{SO+3}], s{sT0} offen offset:16")
    if DBG: a.i("s_waitcnt vmcnt(0)")
    stamp(a, 6)
    stamp_flush(a, 7, SWS, sW, 2)
    rt_end(a, 2)
    a.label("K3_END")
    a.i("s_endpgm")
    return a.text(), kdesc("k3_kernel", 240, 100, 240), 65536

def main(out):
    ref = open(f"cdna_kernels/{NAME}.s.ref").read().splitlines()
    head = [l for l in ref if l.startswith(";") and "@launch" not in l and "Override launch" not in l and "grid=ceil" not in l and "TODO" not in l]
    head = head[:12]
    ks = [("k1_kernel", gen_k1(), 256), ("k2_kernel", gen_k2(), 512), ("k3_kernel", gen_k3(), 256)]
    s = "\n".join(head) + "\n"
    for n, (txt, kd, lds), blk in ks:
        s += f"; @launch kernel={n} grid=(256,1,1) block=({blk},1,1) lds={lds}\n"
    s += '.amdgcn_target "amdgcn-amd-amdhsa--gfx950"\n.text\n'
    for n, (txt, kd, lds), blk in ks:
        s += txt
    s += '.section .rodata,"a"\n'
    for n, (txt, kd, lds), blk in ks:
        s += kd
    open(out, "w").write(s)

if __name__ == "__main__":
    main(sys.argv[1] if len(sys.argv) > 1 and not sys.argv[1].startswith("--") else f"cdna_kernels/{NAME}.s")
```

```python
import sys, math
from asmlib import *

NAME = "gated_mix__mha_block__dense_activation_mish__prompt"
QF_OFF = 0
KV_OFF = 2 << 20
AF_OFF = 6 << 20
WF_OFF = 16 << 20
G_OFF = 19 << 20
WS_BYTES = 32 << 20
LOG2E = 1.4426950408889634
QSCALE = 0.25 * LOG2E

DBG = "--dbg" in sys.argv
DBG_OFF = 24 << 20
def stamp(a, idx):
    if not DBG: return
    a.i("s_memtime s[90:91]")
    if idx == 0: a.i("s_memrealtime s[88:89]")
    a.i("s_waitcnt lgkmcnt(0)")
    a.lg = []
    a.i(f"s_mov_b32 s{64+idx}, s90")
def stamp_flush(a, n, SWS, sW, kid):
    if not DBG: return
    a.i("s_memrealtime s[92:93]")
    a.i("s_waitcnt lgkmcnt(0)")
    a.i(f"s_mov_b32 s{64+n}, s92")
    a.i(f"s_mov_b32 s{65+n}, s88")
    a.i(f"s_getreg_b32 s{66+n}, hwreg(HW_REG_HW_ID)")
    a.i(f"s_getreg_b32 s{67+n}, hwreg(HW_REG_XCC_ID)")
    a.i(f"s_lshl_b32 s90, s2, 4")
    a.i(f"s_add_u32 s90, s90, s{sW}")
    a.i(f"s_lshl_b32 s90, s90, 6")
    a.i(f"s_add_u32 s90, s90, {DBG_OFF + kid*(1<<20)}")
    a.i("v_mov_b32 v1, 0")
    for k in range(n+4):
        a.i(f"v_mov_b32 v2, s{64+k}")
        a.i(f"buffer_store_dword v2, v1, s[{SWS}:{SWS+3}], s90 offen offset:{4*k}")
        a.i("s_nop 1")
RT = "--rt" in sys.argv
def rt_start(a, kid):
    if not RT: return
    a.i("s_memrealtime s[88:89]")
    a.i("s_load_dwordx2 s[84:85], s[0:1], 72")
def rt_end(a, kid):
    if not RT: return
    a.i("s_waitcnt vmcnt(0) lgkmcnt(0)")
    a.i("s_memrealtime s[92:93]")
    a.i(f"s_add_u32 s84, s84, {512*(2-kid)}")
    a.i(f"s_addc_u32 s85, s85, 0")
    a.i("s_waitcnt lgkmcnt(0)")
    a.i("v_readfirstlane_b32 s86, v0")
    a.i("s_nop 4")
    a.i("s_and_b32 s87, s2, 7")
    a.i("s_cmp_lg_u32 s87, 0")
    a.i(f"s_cbranch_scc1 K{kid+1}_END")
    a.i(f"s_cmp_lg_u32 s86, {448 if kid==1 else 0}")
    a.i(f"s_cbranch_scc1 K{kid+1}_END")
    a.i("s_not_b32 s88, s88")
    a.i("v_mov_b32 v1, 0")
    a.i("v_mov_b32 v2, s88")
    a.i("v_mov_b32 v3, s92")
    a.i("s_mov_b64 exec, 1")
    a.i(f"global_atomic_umax v1, v2, s[84:85] offset:{8*kid}")
    a.i(f"global_atomic_umax v1, v3, s[84:85] offset:{8*kid+4}")
def srd(a, s, nbytes):
    a.i(f"s_mov_b32 s{s+2}, {nbytes}")
    a.i(f"s_mov_b32 s{s+3}, 0x00020000")

def gen_k1():
    a = Asm()
    a.raw(khead("k1_kernel"))
    a.i("s_cmp_ge_u32 s2, 256")
    a.i("s_cbranch_scc1 K1_END")
    rt_start(a, 0)
    SX, SWQ, SWO, SW1, SB1, SW2, SG, SWS = 8, 12, 16, 20, 24, 28, 32, 36
    for s, off in [(SX, 0), (SWQ, 8), (SWO, 16), (SW1, 32), (SB1, 40), (SW2, 48), (SG, 56), (SWS, 80)]:
        a.i(f"s_load_dwordx2 s[{s}:{s+1}], s[0:1], {off}")
    srd(a, SX, 2048*512*2); srd(a, SWQ, 512*1536*2); srd(a, SWO, 512*512*2); srd(a, SW1, 512*1792*2)
    srd(a, SB1, 1792*2); srd(a, SW2, 1792*512*2); srd(a, SG, 512*2); srd(a, SWS, WS_BYTES)
    sW, sCB, sRB, sXO, sM0W, sSOW, sT0, sT1, sT2, sRT = 40, 41, 42, 43, 44, 45, 46, 47, 48, 49
    sLOG2E, sQS = 50, 51
    vL, vT, vXO, vWO, vTO, vTR0, vTR1, vTT, vST, vSV, vT2, vT3 = 1, 2, 3, 4, 5, 6, 7, 8, 9, 10, 11, 12
    ACC = [16, 32]
    WF = [48, 52, 56, 60]
    TMP = 64
    PK = 112
    BIAS = 128
    BONE = 144
    GX, GW = 148, 156
    a.i(f"v_and_b32 v{vL}, 63, v0")
    a.i(f"v_lshrrev_b32 v{vT}, 6, v0")
    a.i(f"s_and_b32 s{sCB}, s2, 15")
    a.i(f"v_readfirstlane_b32 s{sW}, v{vT}")
    a.i(f"s_lshr_b32 s{sRB}, s2, 4")
    a.i(f"s_mov_b32 s{sLOG2E}, {fhex(LOG2E)}")
    a.i(f"s_mov_b32 s{sQS}, {fhex(QSCALE)}")
    a.i(f"s_lshl_b32 s{sRT}, s{sRB}, 2")
    a.i(f"s_add_u32 s{sRT}, s{sRT}, s{sW}")
    a.i(f"s_lshl_b32 s{sXO}, s{sRT}, 15")
    a.i(f"s_lshl_b32 s{sM0W}, s{sW}, 13")
    a.i(f"v_and_b32 v{vT}, 31, v{vL}")
    a.i(f"v_lshlrev_b32 v{vXO}, 10, v{vT}")
    a.i(f"v_lshrrev_b32 v{vT2}, 5, v{vL}")
    a.i(f"v_lshl_add_u32 v{vXO}, v{vT2}, 4, v{vXO}")
    a.i(f"v_lshrrev_b32 v{vT}, 2, v{vL}")
    a.i(f"v_and_b32 v{vT3}, 3, v{vL}")
    a.i(f"v_lshlrev_b32 v{vTO}, 10, v{vT}")
    a.i(f"v_lshl_add_u32 v{vTO}, v{vT3}, 4, v{vTO}")
    a.i(f"v_and_b32 v{vT}, 3, v{vT}")
    a.i(f"v_lshlrev_b32 v{vTR0}, 9, v{vT2}")
    a.i(f"v_lshl_add_u32 v{vTR0}, v{vT}, 6, v{vTR0}")
    a.i(f"v_lshl_add_u32 v{vTR0}, v{vT3}, 3, v{vTR0}")
    a.i(f"v_bfe_u32 v13, v{vL}, 4, 1")
    a.i(f"v_lshl_add_u32 v{vTR0}, v13, 5, v{vTR0}")
    a.i(f"v_add_u32 v{vTR1}, 0x10000, v{vTR0}")
    a.i(f"v_lshlrev_b32 v{vTT}, 8, v{vT2}")
    a.i(f"v_lshl_add_u32 v{vTT}, v{vT}, 6, v{vTT}")
    a.i(f"v_and_b32 v14, 1, v{vT3}")
    a.i(f"v_lshl_add_u32 v{vTT}, v14, 5, v{vTT}")
    a.i(f"v_lshl_add_u32 v{vTT}, v13, 4, v{vTT}")
    a.i(f"v_lshrrev_b32 v14, 1, v{vT3}")
    a.i(f"v_lshl_add_u32 v{vTT}, v14, 3, v{vTT}")
    a.i(f"s_mul_i32 s{sT0}, s{sW}, 5120")
    a.i(f"s_add_u32 s{sT0}, s{sT0}, 131072")
    a.i(f"v_add_u32 v{vTT}, s{sT0}, v{vTT}")
    a.i(f"v_lshlrev_b32 v{vST}, 4, v{vL}")
    a.i(f"v_and_b32 v14, 15, v{vL}")
    a.i(f"v_lshlrev_b32 v{vSV}, 4, v14")
    a.i(f"v_lshl_add_u32 v{vSV}, v{vT2}, 8, v{vSV}")
    a.i(f"v_lshl_add_u32 v{vSV}, v13, 17, v{vSV}")
    a.i(f"v_add_u32 v{vSV}, 1024, v{vSV}")
    a.i("s_waitcnt lgkmcnt(0)")
    stamp(a, 0)
    a.i(f"s_cmp_ge_u32 s{sCB}, 8")
    a.i("s_cbranch_scc1 K1_F")

    def path(kind):
        isF = kind == "F"
        ldw = 3584 if isF else 3072
        SW = SW1 if isF else SWQ
        a.vm = []; a.lg = []
        a.i(f"v_lshrrev_b32 v{vT}, 2, v{vL}")
        a.i(f"v_mul_u32_u24 v{vWO}, {ldw}, v{vT}")
        a.i(f"v_lshl_add_u32 v{vWO}, v{vT3}, 4, v{vWO}")
        a.i(f"s_mul_i32 s{sSOW}, s{sW}, {128*ldw}")
        if isF:
            a.i(f"s_sub_u32 s{sCB}, s{sCB}, 8")
            a.i(f"s_mul_i32 s{sT0}, s{sCB}, 448")
            tiles = [("F", 64*t) for t in range(7)]
        else:
            a.i(f"s_lshl_b32 s{sT0}, s{sCB}, 7")
            tiles = [("Q", 0), ("Q", 64), ("K", 1024), ("K", 1024+64), ("V", 2048), ("V", 2048+64)]
        a.i(f"s_add_u32 s{sSOW}, s{sSOW}, s{sT0}")
        NT = len(tiles)
        def dma(t):
            slot = t % 4
            for i in range(8):
                a.i(f"s_add_u32 m0, s{sM0W}, {slot*32768 + 1024*i}")
                a.i(f"s_add_u32 s{sT1}, s{sSOW}, {tiles[t][1] + 16*i*ldw}")
                a.vmem(f"buffer_load_dwordx4 v{vWO}, s[{SW}:{SW+3}], s{sT1} offen lds", ("W", t))
        if isF:
            a.i(f"v_and_b32 v{vT}, 31, v{vL}")
            a.i(f"v_lshlrev_b32 v{vT}, 1, v{vT}")
            for r in range(16):
                if r % 2 == 1 or r >= 14:
                    a.i(f"v_mov_b32 v{BIAS+r}, 0")
            for t in range(7):
                a.vmem(f"buffer_load_ushort v{BIAS+2*t}, v{vT}, s[{SB1}:{SB1+3}], s{sT0} offen offset:{64*t}", "bias")
            a.i(f"v_cmp_gt_u32 vcc, 32, v{vL}")
            a.i(f"v_mov_b32 v{BONE+1}, 0")
            a.i(f"v_mov_b32 v{BONE+2}, 0")
            a.i(f"v_mov_b32 v{BONE+3}, 0")
            a.i(f"v_mov_b32 v{vT}, 0x3f80")
            a.i(f"v_cndmask_b32 v{BONE}, 0, v{vT}, vcc")
        dma(0)
        for s in range(32):
            a.vmem(f"buffer_load_dwordx4 a[{4*s}:{4*s+3}], v{vXO}, s[{SX}:{SX+3}], s{sXO} offen offset:{32*s}", ("x", s))
        dma(1); dma(2)

        def epilogue(t):
            kindt, cofs = tiles[t]
            acc = ACC[t % 2]
            pk = PK + 8 * (t % 2)
            F = []
            def I(s): F.append(lambda s=s: a.i(s))
            def ST(s): F.append(lambda s=s: a.vmem(s, "st"))
            if kindt == "F":
                for gq in range(4):
                    els = [4*gq + e for e in range(4)]
                    T = lambda e, k: TMP + 12*(gq % 2) + 3*(e % 4) + k
                    for e in els: I(f"v_mul_f32 v{T(e,0)}, s{sLOG2E}, v{acc+e}")
                    for e in els: I(f"v_min_f32 v{T(e,0)}, 0x41f00000, v{T(e,0)}")
                    for e in els: I(f"v_exp_f32 v{T(e,0)}, v{T(e,0)}")
                    for e in els: I(f"v_add_f32 v{T(e,1)}, 2.0, v{T(e,0)}")
                    for e in els: I(f"v_mul_f32 v{T(e,1)}, v{T(e,0)}, v{T(e,1)}")
                    for e in els: I(f"v_add_f32 v{T(e,2)}, 2.0, v{T(e,1)}")
                    for e in els: I(f"v_rcp_f32 v{T(e,2)}, v{T(e,2)}")
                    for e in els: I(f"v_mul_f32 v{T(e,1)}, v{T(e,1)}, v{T(e,2)}")
                    for e in els: I(f"v_mul_f32 v{T(e,0)}, v{acc+e}, v{T(e,1)}")
                    I(f"v_cvt_pk_bf16_f32 v{pk+2*gq}, v{T(els[0],0)}, v{T(els[1],0)}")
                    I(f"v_cvt_pk_bf16_f32 v{pk+2*gq+1}, v{T(els[2],0)}, v{T(els[3],0)}")
                I(f"s_mul_i32 s{sT2}, s{sRT}, 144")
                I(f"s_mul_i32 s{sT1}, s{sCB}, 14")
                I(f"s_add_u32 s{sT2}, s{sT2}, s{sT1}")
                I(f"s_lshl_b32 s{sT2}, s{sT2}, 10")
                I(f"s_add_u32 s{sT2}, s{sT2}, {AF_OFF + (32 + 2*t)*1024}")
                ST(f"buffer_store_dwordx4 v[{pk}:{pk+3}], v{vST}, s[{SWS}:{SWS+3}], s{sT2} offen")
                ST(f"buffer_store_dwordx4 v[{pk+4}:{pk+7}], v{vST}, s[{SWS}:{SWS+3}], s{sT2} offen offset:1024")
            else:
                j = t % 2
                if kindt == "Q":
                    for e in range(16): I(f"v_mul_f32 v{TMP+e}, s{sQS}, v{acc+e}")
                    src = TMP
                else:
                    src = acc
                for e in range(8): I(f"v_cvt_pk_bf16_f32 v{pk+e}, v{src+2*e}, v{src+2*e+1}")
                if kindt == "Q":
                    I(f"s_lshl_b32 s{sT2}, s{sCB}, 18")
                    I(f"s_lshl_b32 s{sT1}, s{sRT}, 10")
                    I(f"s_add_u32 s{sT2}, s{sT2}, s{sT1}")
                    I(f"s_add_u32 s{sT2}, s{sT2}, {QF_OFF + 2*j*65536}")
                    I(f"s_add_u32 s{sT1}, s{sT2}, 65536")
                    ST(f"buffer_store_dwordx4 v[{pk}:{pk+3}], v{vST}, s[{SWS}:{SWS+3}], s{sT2} offen")
                    ST(f"buffer_store_dwordx4 v[{pk+4}:{pk+7}], v{vST}, s[{SWS}:{SWS+3}], s{sT1} offen")
                else:
                    I(f"s_lshl_b32 s{sT2}, s{sCB}, 19")
                    I(f"s_lshl_b32 s{sT1}, s{sRT}, 11")
                    I(f"s_add_u32 s{sT2}, s{sT2}, s{sT1}")
                    I(f"s_add_u32 s{sT2}, s{sT2}, {KV_OFF + 2*j*131072}")
                    if kindt == "K":
                        I(f"s_add_u32 s{sT1}, s{sT2}, 131072")
                        ST(f"buffer_store_dwordx4 v[{pk}:{pk+3}], v{vST}, s[{SWS}:{SWS+3}], s{sT2} offen")
                        ST(f"buffer_store_dwordx4 v[{pk+4}:{pk+7}], v{vST}, s[{SWS}:{SWS+3}], s{sT1} offen")
                    else:
                        ST(f"buffer_store_dwordx4 v[{pk}:{pk+3}], v{vSV}, s[{SWS}:{SWS+3}], s{sT2} offen")
                        ST(f"buffer_store_dwordx4 v[{pk+4}:{pk+7}], v{vSV}, s[{SWS}:{SWS+3}], s{sT2} offen offset:512")
            return F

        fill = []
        last_mfma_n = -100
        for t in range(NT):
            kindt, cofs = tiles[t]
            slot = t % 4
            acc = ACC[t % 2]
            trv = vTR0 if slot < 2 else vTR1
            tro = (slot % 2) * 32768
            a.c(f"---- tile {t} ({kindt})")
            a.wait(vm=("W", t))
            a.i("s_barrier")
            stamp(a, 1 + t)
            def rd(s):
                b = WF[s % 4]
                a.lds(f"ds_read_b64_tr_b16 v[{b}:{b+1}], v{trv} offset:{tro + 1024*s}", ("wf", s))
                a.lds(f"ds_read_b64_tr_b16 v[{b+2}:{b+3}], v{trv} offset:{tro + 1024*s + 256}", ("wf", s))
            rd(0); rd(1); rd(2)
            if t + 3 < NT:
                dma(t + 3)
            if t == 1:
                a.i(f"s_lshl_b32 s{sT1}, s2, 3")
                a.i(f"s_lshl_b32 s{sT2}, s{sW}, 1")
                a.i(f"s_add_u32 s{sT1}, s{sT1}, s{sT2}")
                a.i(f"s_lshl_b32 s{sT1}, s{sT1}, 10")
                a.i(f"v_lshlrev_b32 v13, 5, v{vL}")
                a.i(f"v_and_b32 v14, 0x3ff, v13")
                a.vmem(f"buffer_load_dwordx4 v[{GX}:{GX+3}], v13, s[{SX}:{SX+3}], s{sT1} offen", "g")
                a.vmem(f"buffer_load_dwordx4 v[{GX+4}:{GX+7}], v13, s[{SX}:{SX+3}], s{sT1} offen offset:16", "g")
                a.vmem(f"buffer_load_dwordx4 v[{GW}:{GW+3}], v14, s[{SG}:{SG+3}], 0 offen", "g")
                a.vmem(f"buffer_load_dwordx4 v[{GW+4}:{GW+7}], v14, s[{SG}:{SG+3}], 0 offen offset:16", "g")
            if t == 3 and not isF:
                a.i(f"s_mul_i32 s{sT0}, s{sW}, 5120")
                a.i(f"s_add_u32 s{sT0}, s{sT0}, 131072")
                a.i(f"s_lshl_b32 s52, s{sCB}, 2")
                a.i(f"s_add_u32 s52, s52, s{sW}")
                a.i(f"s_lshl_b32 s{sT1}, s52, 14")
                a.i(f"s_lshl_b32 s{sT2}, s{sRB}, 6")
                a.i(f"s_mov_b32 m0, s{sT0}")
                a.i(f"s_add_u32 s{sT1}, s{sT1}, s{sT2}")
                a.vmem(f"buffer_load_dwordx4 v{vTO}, s[{SWO}:{SWO+3}], s{sT1} offen lds", "tr")
                for j in range(4):
                    a.i(f"s_add_u32 s{53+j}, s{sW}, {4*j}")
                    if j == 3:
                        a.i(f"s_min_u32 s{53+j}, s{53+j}, 13")
                    a.i(f"s_mul_i32 s{sT1}, s{sCB}, 14")
                    a.i(f"s_add_u32 s{53+j}, s{53+j}, s{sT1}")
                    a.i(f"s_lshl_b32 s{sT1}, s{53+j}, 14")
                    a.i(f"s_add_u32 m0, s{sT0}, {1024*(j+1)}")
                    a.i(f"s_add_u32 s{sT1}, s{sT1}, s{sT2}")
                    a.vmem(f"buffer_load_dwordx4 v{vTO}, s[{SW2}:{SW2+3}], s{sT1} offen lds", "tr")
            per = -(-len(fill) // 28) if fill else 0
            if isF:
                if t == 0: a.wait(vm="bias")
                a.i(f"v_mfma_f32_32x32x16_bf16 v[{acc}:{acc+15}], v[{BIAS+2*t}:{BIAS+2*t+3}], v[{BONE}:{BONE+3}], 0")
            for s in range(32):
                if s + 3 < 32: rd(s + 3)
                if t == 0 and s % 4 == 0:
                    a.wait(vm=("x", s + 3), lg=("wf", s))
                else:
                    a.wait(lg=("wf", s))
                b = WF[s % 4]
                cin = "0" if (s == 0 and not isF) else f"v[{acc}:{acc+15}]"
                if kindt == "V":
                    a.i(f"v_mfma_f32_32x32x16_bf16 v[{acc}:{acc+15}], a[{4*s}:{4*s+3}], v[{b}:{b+3}], {cin}")
                else:
                    a.i(f"v_mfma_f32_32x32x16_bf16 v[{acc}:{acc+15}], v[{b}:{b+3}], a[{4*s}:{4*s+3}], {cin}")
                if fill and a.n - last_mfma_n >= 14:
                    for _ in range(per):
                        if fill: fill.pop(0)()
            while fill: fill.pop(0)()
            last_mfma_n = a.n
            fill = epilogue(t)
        stamp(a, 8)
        a.c("---- gate")
        a.wait(vm="g")
        a.i(f"v_mov_b32 v13, 0")
        a.i(f"v_mov_b32 v14, 0")
        for k in range(8):
            a.i(f"v_dot2_f32_bf16 v{13+k%2}, v{GX+k}, v{GW+k}, v{13+k%2}")
        a.i("s_nop 2")
        a.i(f"v_add_f32 v13, v13, v14")
        a.i("s_nop 1")
        a.i(f"v_add_f32_dpp v13, v13, v13 quad_perm:[1,0,3,2] row_mask:0xf bank_mask:0xf")
        a.i("s_nop 1")
        a.i(f"v_add_f32_dpp v13, v13, v13 quad_perm:[2,3,0,1] row_mask:0xf bank_mask:0xf")
        a.i("s_nop 1")
        a.i(f"v_add_f32_dpp v13, v13, v13 row_half_mirror row_mask:0xf bank_mask:0xf")
        a.i("s_nop 1")
        a.i(f"v_add_f32_dpp v13, v13, v13 row_mirror row_mask:0xf bank_mask:0xf")
        a.lds(f"ds_swizzle_b32 v14, v13 offset:0x401F", "sw")
        while fill: fill.pop(0)()
        a.wait(lg="sw")
        a.i(f"v_add_f32 v13, v13, v14")
        a.i(f"v_mul_f32 v13, s{sLOG2E}, v13")
        a.i(f"v_exp_f32 v13, -v13")
        a.i("s_nop 0")
        a.i(f"v_add_f32 v13, 1.0, v13")
        a.i(f"v_rcp_f32 v13, v13")
        a.i(f"s_lshl_b32 s{sT1}, s2, 3")
        a.i(f"s_lshl_b32 s{sT2}, s{sW}, 1")
        a.i(f"s_add_u32 s{sT1}, s{sT1}, s{sT2}")
        a.i(f"s_lshl_b32 s{sT1}, s{sT1}, 2")
        a.i(f"s_add_u32 s{sT1}, s{sT1}, {G_OFF}")
        a.i(f"v_lshrrev_b32 v14, 5, v{vL}")
        a.i(f"v_lshlrev_b32 v14, 2, v14")
        a.i(f"s_mov_b32 s58, 1")
        a.i(f"s_mov_b32 s59, 1")
        a.i(f"s_mov_b64 exec, s[58:59]")
        a.vmem(f"buffer_store_dword v13, v14, s[{SWS}:{SWS+3}], s{sT1} offen", "st")
        a.i(f"s_mov_b64 exec, -1")
        if not isF:
            a.c("---- transposes")
            a.wait(vm="tr")
            for j in range(5):
                b = TMP + 4*j
                a.lds(f"ds_read_b64_tr_b16 v[{b}:{b+1}], v{vTT} offset:{1024*j}", ("tt", j))
                a.lds(f"ds_read_b64_tr_b16 v[{b+2}:{b+3}], v{vTT} offset:{1024*j+512}", ("tt", j))
            a.i(f"s_mul_i32 s{sT2}, s{sRB}, 144")
            for j in range(5):
                b = TMP + 4*j
                a.i(f"s_add_u32 s{sT1}, s{sT2}, s{52+j}")
                a.i(f"s_lshl_b32 s{sT1}, s{sT1}, 10")
                a.i(f"s_add_u32 s{sT1}, s{sT1}, {WF_OFF + (32*1024 if j else 0)}")
                a.wait(lg=("tt", j))
                a.vmem(f"buffer_store_dwordx4 v[{b}:{b+3}], v{vST}, s[{SWS}:{SWS+3}], s{sT1} offen", "st")
        stamp(a, 9)
        if DBG: a.i("s_waitcnt vmcnt(0)")
        stamp(a, 10)
        stamp_flush(a, 11, SWS, sW, 0)
        rt_end(a, 0)
        a.i("s_endpgm")

    path("QKV")
    a.label("K1_F")
    path("F")
    a.label("K1_END")
    a.i("s_endpgm")
    return a.text(), kdesc("k1_kernel", 168 + 128, 100, 168), 131072 + 4*5120

def gen_k2():
    a = Asm()
    a.raw(khead("k2_kernel"))
    a.i("s_cmp_ge_u32 s2, 256")
    a.i("s_cbranch_scc1 K2_END")
    rt_start(a, 1)
    SWS = 8
    a.i(f"s_load_dwordx2 s[8:9], s[0:1], 80")
    srd(a, SWS, WS_BYTES)
    sW, sH, sQT, sT0, sT1, sCNT, sNMAX, sFIRST = 12, 13, 14, 15, 16, 17, 18, 19
    sVM = 20
    vL, vT, vLO, vKA, vVA, vG, vM, vT2 = 1, 2, 3, 4, 5, 6, 7, 8
    Q = 12
    NEGM = 16
    S = [32, 48]
    O = 64
    P = 80
    KF = [88, 92]
    VF = [96, 104]
    NV = 112
    a.i(f"v_and_b32 v{vL}, 63, v0")
    a.i(f"v_lshrrev_b32 v{vT}, 6, v0")
    a.i(f"s_and_b32 s{sT0}, s2, 7")
    a.i(f"v_readfirstlane_b32 s{sW}, v{vT}")
    a.i(f"s_lshl_b32 s{sT0}, s{sT0}, 2")
    a.i(f"s_bfe_u32 s{sT1}, s2, 0x20003")
    a.i(f"s_add_u32 s{sH}, s{sT0}, s{sT1}")
    a.i(f"s_lshr_b32 s{sQT}, s2, 5")
    a.i(f"s_lshl_b32 s{sQT}, s{sQT}, 3")
    a.i(f"s_add_u32 s{sQT}, s{sQT}, s{sW}")
    a.i(f"v_lshlrev_b32 v{vLO}, 4, v{vL}")
    a.i(f"s_mov_b32 s{sVM}, 0xffff")
    a.i(f"s_mov_b32 s{sVM+1}, 0xffff")
    a.i(f"s_lshl_b32 s{sT0}, s{sH}, 6")
    a.i(f"s_add_u32 s{sT0}, s{sT0}, s{sQT}")
    a.i(f"s_lshl_b32 s{sT0}, s{sT0}, 10")
    if QF_OFF: a.i(f"s_add_u32 s{sT0}, s{sT0}, {QF_OFF}")
    a.i(f"s_lshl_b32 s22, s{sH}, 17")
    a.i(f"s_lshl_b32 s23, s{sW}, 10")
    a.i(f"s_add_u32 s22, s22, s23")
    a.i("s_waitcnt lgkmcnt(0)")
    stamp(a, 0)
    a.vmem(f"buffer_load_dwordx4 v[{Q}:{Q+3}], v{vLO}, s[{SWS}:{SWS+3}], s{sT0} offen", "q")
    for t in range(16):
        a.i(f"s_add_u32 m0, s23, {8192*t}")
        a.i(f"s_add_u32 s{sT1}, s22, {KV_OFF + 8192*t}")
        a.vmem(f"buffer_load_dwordx4 v{vLO}, s[{SWS}:{SWS+3}], s{sT1} offen lds", ("kv", t))
    a.i(f"v_and_b32 v{vT}, 31, v{vL}")
    a.i(f"v_lshlrev_b32 v{vT}, 2, v{vT}")
    a.i(f"s_lshl_b32 s{sT0}, s{sQT}, 7")
    a.i(f"s_add_u32 s{sT0}, s{sT0}, {G_OFF}")
    a.vmem(f"buffer_load_dword v{vG}, v{vT}, s[{SWS}:{SWS+3}], s{sT0} offen", "g")
    for r in range(16):
        a.i(f"v_mov_b32 v{VF[0]+r}, 0x3f803f80")
    a.i(f"s_mov_b32 s{sNMAX}, 1")
    a.i(f"s_mov_b32 s{sFIRST}, 1")
    a.wait(vm=("kv", 2))
    a.i("s_barrier")
    a.vm = []
    stamp(a, 1)
    a.label("K2_MAXPASS")
    a.i(f"v_mov_b32 v{vKA}, v{vLO}")
    a.i(f"v_mov_b32 v{vM}, 0xff800000")
    a.i(f"s_mov_b32 s{sCNT}, s{sNMAX}")
    a.label("K2_MAXLOOP")
    a.i(f"ds_read_b128 v[{KF[0]}:{KF[0]+3}], v{vKA}")
    a.i(f"v_add_u32 v{vKA}, 2048, v{vKA}")
    a.i("s_waitcnt lgkmcnt(0)")
    a.i(f"v_mfma_f32_32x32x16_bf16 v[{S[0]}:{S[0]+15}], v[{KF[0]}:{KF[0]+3}], v[{Q}:{Q+3}], 0")
    a.i("s_nop 11")
    for r in range(8):
        a.i(f"v_max3_f32 v{vM}, v{S[0]+2*r}, v{S[0]+2*r+1}, v{vM}")
    a.i(f"s_sub_u32 s{sCNT}, s{sCNT}, 1")
    a.i(f"s_cmp_lg_u32 s{sCNT}, 0")
    a.i("s_cbranch_scc1 K2_MAXLOOP")
    a.i(f"v_mov_b32 v{vT}, v{vM}")
    a.i("s_nop 1")
    a.i(f"v_permlane32_swap_b32 v{vM}, v{vT}")
    a.i("s_nop 1")
    a.i(f"v_max_f32 v{vM}, v{vM}, v{vT}")
    for r in range(16):
        a.i(f"v_sub_f32 v{NEGM+r}, 0, v{vM}")
    stamp(a, 2)
    a.i(f"v_mov_b32 v{vKA}, v{vLO}")
    a.i(f"v_and_b32 v{vT}, 15, v{vL}")
    a.i(f"v_lshlrev_b32 v{vVA}, 4, v{vT}")
    a.i(f"v_lshrrev_b32 v{vT}, 5, v{vL}")
    a.i(f"v_lshl_add_u32 v{vVA}, v{vT}, 8, v{vVA}")
    a.i(f"v_add_u32 v{vVA}, 1024, v{vVA}")
    def rdK(t, buf):
        a.i(f"ds_read_b128 v[{KF[buf]}:{KF[buf]+3}], v{vKA} offset:{2048*t}")
    def rdV(t, buf):
        a.i(f"s_mov_b64 exec, s[{sVM}:{sVM+1}]")
        a.i(f"ds_read_b128 v[{VF[buf]}:{VF[buf]+3}], v{vVA} offset:{2048*t}")
        a.i(f"ds_read_b128 v[{VF[buf]+4}:{VF[buf]+7}], v{vVA} offset:{2048*t+512}")
        a.i(f"s_mov_b64 exec, -1")
    rdK(0, 0); rdK(1, 1); rdV(0, 0)
    for r in range(16):
        a.i(f"v_mov_b32 v{O+r}, 0")
    for r in range(4, 8):
        a.i(f"v_mov_b32 v{P+r}, 0")
    a.i("s_waitcnt lgkmcnt(3)")
    a.i(f"v_mfma_f32_32x32x16_bf16 v[{S[0]}:{S[0]+15}], v[{KF[0]}:{KF[0]+3}], v[{Q}:{Q+3}], v[{NEGM}:{NEGM+15}]")
    a.i(f"s_mov_b32 s{sCNT}, 8")
    a.i("s_nop 9")
    a.label("K2_LOOP")
    for t in range(8):
        cur, nxt = t % 2, (t + 1) % 2
        sc = S[cur]
        e = lambda k: a.i(f"v_exp_f32 v{sc+k}, v{sc+k}")
        c = lambda k: a.i(f"v_cvt_pk_bf16_f32 v{P+k}, v{sc+2*k}, v{sc+2*k+1}")
        a.i("s_waitcnt lgkmcnt(2)")
        a.i(f"v_mfma_f32_32x32x16_bf16 v[{S[nxt]}:{S[nxt]+15}], v[{KF[nxt]}:{KF[nxt]+3}], v[{Q}:{Q+3}], v[{NEGM}:{NEGM+15}]")
        rdK(t + 2, cur)
        e(0); e(1); e(2); c(0); e(3); e(4); c(1)
        a.i(f"v_mfma_f32_32x32x16_bf16 v[{O}:{O+15}], v[{VF[nxt]+4}:{VF[nxt]+7}], v[{P+4}:{P+7}], v[{O}:{O+15}]")
        rdV(t + 1, nxt)
        e(5); e(6); c(2); e(7); e(8); c(3); e(9); e(10)
        a.i("s_waitcnt lgkmcnt(3)")
        a.i(f"v_mfma_f32_32x32x16_bf16 v[{O}:{O+15}], v[{VF[cur]}:{VF[cur]+3}], v[{P}:{P+3}], v[{O}:{O+15}]")
        c(4); e(11); e(12); c(5); e(13); e(14); c(6); e(15)
        if t == 7:
            a.i(f"v_add_u32 v{vKA}, 0x4000, v{vKA}")
            c(7)
            a.i(f"v_add_u32 v{vVA}, 0x4000, v{vVA}")
        else:
            a.i("s_nop 0")
            c(7)
    a.i(f"s_cmp_eq_u32 s{sFIRST}, 0")
    a.i("s_cbranch_scc1 K2_NOBAR")
    a.i(f"s_mov_b32 s{sFIRST}, 0")
    if DBG:
        a.i("s_memtime s[94:95]")
    a.i("s_waitcnt vmcnt(0)")
    a.i("s_barrier")
    if DBG:
        a.i("s_memtime s[96:97]")
        a.i("s_waitcnt lgkmcnt(0)")
        a.i("s_mov_b32 s67, s94")
        a.i("s_mov_b32 s68, s96")
    a.label("K2_NOBAR")
    a.i(f"s_sub_u32 s{sCNT}, s{sCNT}, 1")
    a.i(f"s_cmp_lg_u32 s{sCNT}, 0")
    a.i("s_cbranch_scc1 K2_LOOP")
    a.i(f"v_mfma_f32_32x32x16_bf16 v[{O}:{O+15}], v[{VF[1]+4}:{VF[1]+7}], v[{P+4}:{P+7}], v[{O}:{O+15}]")
    a.i("s_waitcnt lgkmcnt(0)")
    a.i("s_nop 11")
    stamp(a, 5)
    a.i(f"v_mov_b32 v{vT}, v{O+8}")
    for r in range(8):
        a.i(f"v_fma_f32 v{vT}, v{O+r}, 0, v{vT}")
    a.i(f"v_cmp_gt_f32 vcc, {fhex(2.0**40)}, v{vT}")
    a.i(f"v_rcp_f32 v{vT2}, v{O+8}")
    a.i("s_nop 3")
    a.i(f"s_cmp_eq_u64 vcc, -1")
    a.i("s_cbranch_scc1 K2_OK")
    a.i(f"s_cmp_eq_u32 s{sNMAX}, 64")
    a.i("s_cbranch_scc1 K2_OK")
    a.i(f"s_mov_b32 s{sNMAX}, 64")
    a.i("s_branch K2_MAXPASS")
    a.label("K2_OK")
    a.i(f"v_mul_f32 v{vT2}, v{vT2}, v{vG}")
    for r in range(8):
        a.i(f"v_mul_f32 v{O+r}, v{O+r}, v{vT2}")
    for r in range(4):
        a.i(f"v_cvt_pk_bf16_f32 v{P+r}, v{O+2*r}, v{O+2*r+1}")
    a.i(f"s_mul_i32 s{sT0}, s{sQT}, 144")
    a.i(f"s_add_u32 s{sT0}, s{sT0}, s{sH}")
    a.i(f"s_lshl_b32 s{sT0}, s{sT0}, 10")
    a.i(f"s_add_u32 s{sT0}, s{sT0}, {AF_OFF}")
    a.i(f"buffer_store_dwordx4 v[{P}:{P+3}], v{vLO}, s[{SWS}:{SWS+3}], s{sT0} offen")
    if DBG: a.i("s_waitcnt vmcnt(0)")
    stamp(a, 6)
    stamp_flush(a, 7, SWS, sW, 1)
    rt_end(a, 1)
    a.label("K2_END")
    a.i("s_endpgm")
    return a.text(), kdesc("k2_kernel", NV, 100, NV), 131072 + 8192

def gen_k3():
    a = Asm()
    a.raw(khead("k3_kernel"))
    a.i("s_cmp_ge_u32 s2, 256")
    a.i("s_cbranch_scc1 K3_END")
    rt_start(a, 2)
    SWS, SO = 8, 12
    a.i(f"s_load_dwordx2 s[8:9], s[0:1], 80")
    a.i(f"s_load_dwordx2 s[12:13], s[0:1], 64")
    srd(a, SWS, WS_BYTES); srd(a, SO, 2048*512*2)
    sW, sRP, sCP, sT0, sT1 = 16, 17, 18, 19, 20
    sA, sB = 24, 28
    vL, vT, vLO, vG0, vG1, vT2 = 1, 2, 3, 4, 5, 6
    ACCH, ACCO, FR = 16, 80, 144
    D = 6
    a.i(f"v_and_b32 v{vL}, 63, v0")
    a.i(f"v_lshrrev_b32 v{vT}, 6, v0")
    a.i(f"s_and_b32 s{sT0}, s2, 7")
    a.i(f"v_readfirstlane_b32 s{sW}, v{vT}")
    a.i(f"s_lshl_b32 s{sT0}, s{sT0}, 2")
    a.i(f"s_bfe_u32 s{sT1}, s2, 0x20003")
    a.i(f"s_add_u32 s{sRP}, s{sT0}, s{sT1}")
    a.i(f"s_lshr_b32 s{sCP}, s2, 5")
    a.i(f"v_lshlrev_b32 v{vLO}, 4, v{vL}")
    a.i(f"s_mul_i32 s{sT0}, s{sCP}, {2*144*1024}")
    a.i(f"s_mul_i32 s{sT1}, s{sW}, {28*1024}")
    a.i(f"s_add_u32 s{sA}, s{sT0}, s{sT1}")
    a.i(f"s_add_u32 s{sA}, s{sA}, {WF_OFF + 32*1024}")
    a.i(f"s_add_u32 s{sA+1}, s{sA}, {144*1024}")
    a.i(f"s_lshl_b32 s21, s{sW}, 13")
    a.i(f"s_add_u32 s{sA+2}, s{sT0}, s21")
    a.i(f"s_add_u32 s{sA+2}, s{sA+2}, {WF_OFF}")
    a.i(f"s_add_u32 s{sA+3}, s{sA+2}, {144*1024}")
    a.i(f"s_mul_i32 s{sT0}, s{sRP}, {2*144*1024}")
    a.i(f"s_add_u32 s{sB}, s{sT0}, s{sT1}")
    a.i(f"s_add_u32 s{sB}, s{sB}, {AF_OFF + 32*1024}")
    a.i(f"s_add_u32 s{sB+1}, s{sB}, {144*1024}")
    a.i(f"s_add_u32 s{sB+2}, s{sT0}, s21")
    a.i(f"s_add_u32 s{sB+2}, s{sB+2}, {AF_OFF}")
    a.i(f"s_add_u32 s{sB+3}, s{sB+2}, {144*1024}")
    a.i(f"v_and_b32 v{vT}, 31, v{vL}")
    a.i(f"v_lshlrev_b32 v{vT}, 2, v{vT}")
    a.i(f"s_lshl_b32 s{sT0}, s{sRP}, 8")
    a.i(f"s_add_u32 s{sT0}, s{sT0}, {G_OFF}")
    a.i("s_waitcnt lgkmcnt(0)")
    stamp(a, 0)
    a.vmem(f"buffer_load_dword v{vG0}, v{vT}, s[{SWS}:{SWS+3}], s{sT0} offen", "g")
    a.vmem(f"buffer_load_dword v{vG1}, v{vT}, s[{SWS}:{SWS+3}], s{sT0} offen offset:128", "g")
    NS = 36
    def ld(s):
        part = 0 if s < 28 else 2
        k = s if s < 28 else s - 28
        if k % 4 == 0 and k > 0:
            for r in (sA+part, sA+part+1, sB+part, sB+part+1):
                a.i(f"s_add_u32 s{r}, s{r}, 4096")
        fb = FR + 16 * (s % D)
        off = 1024 * (k % 4)
        for q, r in enumerate((sA+part, sB+part, sA+part+1, sB+part+1)):
            a.vmem(f"buffer_load_dwordx4 v[{fb+4*q}:{fb+4*q+3}], v{vLO}, s[{SWS}:{SWS+3}], s{r} offen offset:{off}", ("f", s))
    for s in range(D - 1): ld(s)
    for s in range(NS):
        if s + D - 1 < NS: ld(s + D - 1)
        a.wait(vm=("f", s))
        if s in (0, 12, 24, 35): stamp(a, 1 + (0, 12, 24, 35).index(s))
        fb = FR + 16 * (s % D)
        A0, B0, A1, B1 = fb, fb+4, fb+8, fb+12
        base = ACCH if s < 28 else ACCO
        first = s == 0 or s == 28
        for ai, A in enumerate((A0, A1)):
            for bi, B in enumerate((B0, B1)):
                acc = base + 16 * (2*ai + bi)
                cin = "0" if first else f"v[{acc}:{acc+15}]"
                a.i(f"v_mfma_f32_32x32x16_bf16 v[{acc}:{acc+15}], v[{A}:{A+3}], v[{B}:{B+3}], {cin}")
    a.i(f"v_sub_f32 v{vG0}, 1.0, v{vG0}")
    a.i(f"v_sub_f32 v{vG1}, 1.0, v{vG1}")
    a.i(f"s_lshl_b32 s{sT0}, s{sW}, 12")
    a.i(f"v_add_u32 v{vT}, s{sT0}, v{vLO}")
    a.i(f"s_lshl_b32 s{sT0}, s{sW}, 14")
    a.i(f"v_add_u32 v{vT2}, s{sT0}, v{vLO}")
    a.i("s_nop 7")
    for tau in range(4):
        bi = tau & 1
        for r in range(16):
            a.i(f"v_fma_f32 v{ACCH+16*tau+r}, v{ACCH+16*tau+r}, v{vG0+bi}, v{ACCO+16*tau+r}")
        for q in range(4):
            b = ACCH + 16*tau + 4*q
            a.i(f"ds_write_b128 v{vT}, v[{b}:{b+3}] offset:{tau*16384 + q*1024}")
    a.i("s_waitcnt lgkmcnt(0)")
    a.i("s_barrier")
    stamp(a, 5)
    for ww in range(4):
        for q in range(4):
            b = FR + 16*ww + 4*q
            a.i(f"ds_read_b128 v[{b}:{b+3}], v{vT2} offset:{ww*4096 + q*1024}")
    a.i(f"s_and_b32 s{sT0}, s{sW}, 1")
    a.i(f"s_lshl_b32 s{sT1}, s{sRP}, 1")
    a.i(f"s_add_u32 s{sT0}, s{sT0}, s{sT1}")
    a.i(f"s_lshl_b32 s{sT0}, s{sT0}, 15")
    a.i(f"s_lshr_b32 s{sT1}, s{sW}, 1")
    a.i(f"s_lshl_b32 s21, s{sCP}, 1")
    a.i(f"s_add_u32 s{sT1}, s{sT1}, s21")
    a.i(f"s_lshl_b32 s{sT1}, s{sT1}, 6")
    a.i(f"s_add_u32 s{sT0}, s{sT0}, s{sT1}")
    a.i(f"v_and_b32 v{vT}, 31, v{vL}")
    a.i(f"v_lshlrev_b32 v{vT}, 10, v{vT}")
    a.i(f"v_lshrrev_b32 v{vT2}, 5, v{vL}")
    a.i(f"v_lshl_add_u32 v{vT}, v{vT2}, 5, v{vT}")
    a.i("s_waitcnt lgkmcnt(0)")
    for r in range(16):
        a.i(f"v_add_f32 v{FR+r}, v{FR+r}, v{FR+16+r}")
        a.i(f"v_add_f32 v{FR+32+r}, v{FR+32+r}, v{FR+48+r}")
    for r in range(16):
        a.i(f"v_add_f32 v{FR+r}, v{FR+r}, v{FR+32+r}")
    for r in range(8):
        a.i(f"v_cvt_pk_bf16_f32 v{ACCH+r}, v{FR+2*r}, v{FR+2*r+1}")
    a.i(f"buffer_store_dwordx4 v[{ACCH}:{ACCH+3}], v{vT}, s[{SO}:{SO+3}], s{sT0} offen")
    a.i(f"buffer_store_dwordx4 v[{ACCH+4}:{ACCH+7}], v{vT}, s[{SO}:{SO+3}], s{sT0} offen offset:16")
    if DBG: a.i("s_waitcnt vmcnt(0)")
    stamp(a, 6)
    stamp_flush(a, 7, SWS, sW, 2)
    rt_end(a, 2)
    a.label("K3_END")
    a.i("s_endpgm")
    return a.text(), kdesc("k3_kernel", 240, 100, 240), 65536

def main(out):
    ref = open(f"cdna_kernels/{NAME}.s.ref").read().splitlines()
    head = [l for l in ref if l.startswith(";") and "@launch" not in l and "Override launch" not in l and "grid=ceil" not in l and "TODO" not in l]
    head = head[:12]
    ks = [("k1_kernel", gen_k1(), 256), ("k2_kernel", gen_k2(), 512), ("k3_kernel", gen_k3(), 256)]
    s = "\n".join(head) + "\n"
    for n, (txt, kd, lds), blk in ks:
        s += f"; @launch kernel={n} grid=(256,1,1) block=({blk},1,1) lds={lds}\n"
    s += '.amdgcn_target "amdgcn-amd-amdhsa--gfx950"\n.text\n'
    for n, (txt, kd, lds), blk in ks:
        s += txt
    s += '.section .rodata,"a"\n'
    for n, (txt, kd, lds), blk in ks:
        s += kd
    open(out, "w").write(s)

if __name__ == "__main__":
    main(sys.argv[1] if len(sys.argv) > 1 and not sys.argv[1].startswith("--") else f"cdna_kernels/{NAME}.s")
```

```python
import sys, math
from asmlib import *
NAME = "gated_mix__mha_block__dense_activation_mish__prompt"
QF_OFF = 0
KV_OFF = 2 << 20
AF_OFF = 6 << 20
WF_OFF = 16 << 20
G_OFF = 19 << 20
BP_OFF = 20 << 20
OF_OFF = 20 << 20
FL_OFF = (19 << 20) + 65536
WS_BYTES = 32 << 20
LOG2E = 1.4426950408889634
QSCALE = 0.25 * LOG2E
DBG = "--dbg" in sys.argv
DBG_OFF = 24 << 20
def opt(name, default):
    for x in sys.argv:
        if x.startswith(name + "="):
            return type(default)(x.split("=")[1])
    return default
def stamp(a, idx):
    if not DBG: return
    a.i("s_memtime s[90:91]")
    if idx == 0: a.i("s_memrealtime s[88:89]")
    a.i("s_waitcnt lgkmcnt(0)")
    a.lg = []
    a.i(f"s_mov_b32 s{64+idx}, s90")
def stamp_flush(a, n, SWS, sW, kid):
    if not DBG: return
    a.i("s_memrealtime s[92:93]")
    a.i("s_waitcnt lgkmcnt(0)")
    a.i(f"s_mov_b32 s{64+n}, s92")
    a.i(f"s_mov_b32 s{65+n}, s88")
    a.i(f"s_getreg_b32 s{66+n}, hwreg(HW_REG_HW_ID)")
    a.i(f"s_getreg_b32 s{67+n}, hwreg(HW_REG_XCC_ID)")
    a.i(f"s_lshl_b32 s90, s2, 4")
    a.i(f"s_add_u32 s90, s90, s{sW}")
    a.i(f"s_lshl_b32 s90, s90, 6")
    a.i(f"s_add_u32 s90, s90, {DBG_OFF + kid*(1<<20)}")
    a.i("v_mov_b32 v1, 0")
    for k in range(n+4):
        a.i(f"v_mov_b32 v2, s{64+k}")
        a.i(f"buffer_store_dword v2, v1, s[{SWS}:{SWS+3}], s90 offen offset:{4*k}")
        a.i("s_nop 1")
def srd(a, s, nbytes):
    a.i(f"s_mov_b32 s{s+2}, {nbytes}")
    a.i(f"s_mov_b32 s{s+3}, 0x00020000")
def write_file(out, ks):
    ref = open(f"cdna_kernels/{NAME}.s.ref").read().splitlines()
    head = [l for l in ref if l.startswith(";") and "@launch" not in l and "Override launch" not in l and "grid=ceil" not in l and "TODO" not in l]
    head = head[:12]
    s = "\n".join(head) + "\n"
    for n, (txt, kd, lds), blk in ks:
        s += f"; @launch kernel={n} grid=(256,1,1) block=({blk},1,1) lds={lds}\n"
    s += '.amdgcn_target "amdgcn-amd-amdhsa--gfx950"\n.text\n'
    for n, (txt, kd, lds), blk in ks:
        s += txt
    s += '.section .rodata,"a"\n'
    for n, (txt, kd, lds), blk in ks:
        s += kd
    open(out, "w").write(s)

PFC = opt("--pfc", 1)
def code_prefetch(a, end_label, nwaves, nrep, tag, vt=250, start_label=None):
    if not PFC: return
    a.i("s_getpc_b64 s[82:83]")
    a.label(f"PFC_{tag}")
    base = f"PFC_{tag}"
    if start_label:
        a.i(f"s_add_u32 s82, s82, {start_label}-PFC_{tag}")
        a.i(f"s_addc_u32 s83, s83, 0")
        base = start_label
    a.i(f"v_lshlrev_b32 v{vt}, 7, v0")
    for r in range(nrep):
        a.i(f"v_min_u32 v{vt+1}, {end_label}-{base}-4, v{vt}")
        a.i(f"global_load_dword v{vt+2}, v{vt+1}, s[82:83]")
        if r + 1 < nrep: a.i(f"v_add_u32 v{vt}, {nwaves*8192}, v{vt}")
```

```python
from common import *
PKMISH = opt("--pkmish", 1)
NPRE = opt("--npre", 6)

def gen_k1():
    a = Asm()
    a.raw(khead("k1_kernel"))
    a.i("s_cmp_ge_u32 s2, 256")
    a.i("s_cbranch_scc1 K1_END")
    code_prefetch(a, "K3_END", 4, 2, "k1", vt=200)
    SX, SWQ, SWO, SW1, SB1, SW2, SG, SWS = 8, 12, 16, 20, 24, 28, 32, 36
    for s, off in [(SX, 0), (SWQ, 8), (SWO, 16), (SW1, 32), (SB1, 40), (SW2, 48), (SG, 56), (SWS, 80)]:
        a.i(f"s_load_dwordx2 s[{s}:{s+1}], s[0:1], {off}")
    srd(a, SX, 2048*512*2); srd(a, SWQ, 512*1536*2); srd(a, SWO, 512*512*2); srd(a, SW1, 512*1792*2)
    srd(a, SB1, 1792*2); srd(a, SW2, 1792*512*2); srd(a, SG, 512*2); srd(a, SWS, WS_BYTES)
    sW, sCB, sRB, sRT, sM0W, sT0, sT1, sT2, sROT, sODD = 40, 41, 42, 43, 44, 45, 46, 47, 48, 49
    sL2E, sTWO, sQS = 50, 52, 54
    sXQ = 56
    sWQ = 60
    sPC, sSC, sOUT, sTR, sSD = 4, 5, 6, 94, 87
    vL = 1
    t0, t1, t2, t3 = 2, 3, 4, 5
    vXE, vXO, vWP, vWS, vST, vSV, vTS = 6, 7, 8, 9, 10, 11, 12
    vXR = [13, 14, 15, 16]
    vTRP = [[17, 18, 19], [20, 21, 22]]
    vTT = [23, 24]
    vTD = 25
    vG0, vG1 = 26, 27
    ACC = [32, 48, 64, 80]
    WF = [96 + 4*k for k in range(6)]
    TMP = 120
    PK = 152
    BIAS, BONE, GX, GW = 168, 184, 188, 196
    NV = 204
    I = a.i
    I(f"v_and_b32 v{vL}, 63, v0")
    I(f"v_lshrrev_b32 v{t0}, 6, v0")
    I(f"s_and_b32 s{sT0}, s2, 1")
    I(f"v_readfirstlane_b32 s{sW}, v{t0}")
    I(f"s_lshl_b32 s{sT0}, s{sT0}, 3")
    I(f"s_bfe_u32 s{sT1}, s2, 0x30003")
    I(f"s_add_u32 s{sRB}, s{sT0}, s{sT1}")
    I(f"s_and_b32 s{sCB}, s2, 6")
    I(f"s_bfe_u32 s{sODD}, s2, 0x10006")
    I(f"s_add_u32 s{sCB}, s{sCB}, s{sODD}")
    I(f"s_lshr_b32 s{sT2}, s2, 6")
    I(f"s_add_u32 s{sROT}, s{sT2}, s{sT1}")
    I(f"s_and_b32 s{sROT}, s{sROT}, 3")
    I(f"s_mov_b32 s{sL2E}, {fhex(LOG2E)}")
    I(f"s_mov_b32 s{sL2E+1}, {fhex(LOG2E)}")
    I(f"s_mov_b32 s{sTWO}, 2.0")
    I(f"s_mov_b32 s{sTWO+1}, 2.0")
    I(f"s_mov_b32 s{sQS}, {fhex(QSCALE)}")
    I(f"s_lshl_b32 s{sRT}, s{sRB}, 2")
    I(f"s_add_u32 s{sRT}, s{sRT}, s{sW}")
    I(f"s_lshl_b32 s{sM0W}, s{sW}, 12")
    I(f"s_lshl_b32 s{sT0}, s{sRT}, 15")
    for q in range(4):
        I(f"s_add_u32 s{sT1}, s{sROT}, {q}")
        I(f"s_and_b32 s{sWQ+q}, s{sT1}, 3")
        I(f"s_lshl_b32 s{sT1}, s{sWQ+q}, 8")
        I(f"s_add_u32 s{sXQ+q}, s{sT0}, s{sT1}")
    I(f"v_lshrrev_b32 v{t0}, 3, v{vL}")
    I(f"v_and_b32 v{t1}, 7, v{vL}")
    I(f"v_lshrrev_b32 v{t2}, 1, v{t0}")
    I(f"v_xor_b32 v{t3}, v{t1}, v{t2}")
    I(f"v_lshlrev_b32 v{vXE}, 10, v{t0}")
    I(f"v_lshl_add_u32 v{vXE}, v{t3}, 4, v{vXE}")
    I(f"v_xor_b32 v{vXO}, 64, v{vXE}")
    I(f"v_and_b32 v{t2}, 1, v{t2}")
    I(f"v_lshlrev_b32 v{t2}, 2, v{t2}")
    I(f"v_xor_b32 v{t3}, v{t1}, v{t2}")
    I(f"v_lshlrev_b32 v{vWP}, 4, v{t3}")
    I(f"v_lshl_add_u32 v{vTD}, v{t0}, 10, v{vWP}")
    I(f"v_mov_b32 v28, v{t0}")
    I(f"v_and_b32 v{t0}, 31, v{vL}")
    I(f"v_lshrrev_b32 v{t1}, 5, v{vL}")
    I(f"v_bfe_u32 v{t2}, v{t0}, 1, 3")
    I(f"v_xor_b32 v{t2}, v{t2}, v{t1}")
    I(f"v_lshlrev_b32 v{t3}, 7, v{t0}")
    I(f"v_add_u32 v{t3}, s{sM0W}, v{t3}")
    I(f"v_lshl_add_u32 v{vXR[0]}, v{t2}, 4, v{t3}")
    for sp in range(1, 4):
        I(f"v_xor_b32 v{vXR[sp]}, {32*sp}, v{vXR[0]}")
    I(f"v_bfe_u32 v{t0}, v{vL}, 2, 2")
    I(f"v_and_b32 v{t2}, 3, v{vL}")
    I(f"v_bfe_u32 v{t3}, v{vL}, 4, 1")
    p0 = vTRP[0][0]
    I(f"v_lshlrev_b32 v{p0}, 10, v{t1}")
    I(f"v_lshl_add_u32 v{p0}, v{t0}, 7, v{p0}")
    I(f"v_lshl_add_u32 v{p0}, v{t3}, 5, v{p0}")
    I(f"v_lshl_add_u32 v{p0}, v{t2}, 3, v{p0}")
    I(f"v_lshrrev_b32 v29, 1, v{t0}")
    I(f"v_lshl_add_u32 v{p0}, v29, 6, v{p0}")
    I(f"v_xor_b32 v{vTRP[1][0]}, 64, v{p0}")
    for ct in range(2):
        I(f"v_add_u32 v{vTRP[ct][1]}, 0x10000, v{vTRP[ct][0]}")
        I(f"v_add_u32 v{vTRP[ct][2]}, 0x20000, v{vTRP[ct][0]}")
    I(f"v_lshlrev_b32 v{vTS}, 9, v{t1}")
    I(f"v_lshl_add_u32 v{vTS}, v{t0}, 6, v{vTS}")
    I(f"v_lshl_add_u32 v{vTS}, v{t3}, 5, v{vTS}")
    I(f"v_lshl_add_u32 v{vTS}, v{t2}, 3, v{vTS}")
    T0 = vTT[0]
    I(f"v_lshlrev_b32 v{T0}, 9, v{t1}")
    I(f"v_lshl_add_u32 v{T0}, v{t0}, 7, v{T0}")
    I(f"v_lshl_add_u32 v{T0}, v29, 6, v{T0}")
    I(f"v_lshl_add_u32 v{T0}, v{t3}, 4, v{T0}")
    I(f"v_and_b32 v29, 1, v{t2}")
    I(f"v_lshl_add_u32 v{T0}, v29, 5, v{T0}")
    I(f"v_lshrrev_b32 v29, 1, v{t2}")
    I(f"v_lshl_add_u32 v{T0}, v29, 3, v{T0}")
    I(f"s_lshl_b32 s{sT0}, s{sW}, 13")
    I(f"v_add_u32 v{T0}, s{sT0}, v{T0}")
    I(f"v_xor_b32 v{vTT[1]}, 64, v{T0}")
    I(f"v_lshlrev_b32 v{vST}, 4, v{vL}")
    I(f"v_and_b32 v29, 15, v{vL}")
    I(f"v_lshlrev_b32 v{vSV}, 4, v29")
    I(f"v_lshl_add_u32 v{vSV}, v{t1}, 8, v{vSV}")
    I(f"v_lshl_add_u32 v{vSV}, v{t3}, 17, v{vSV}")
    I(f"v_add_u32 v{vSV}, 1024, v{vSV}")
    I("s_waitcnt lgkmcnt(0)")
    stamp(a, 0)
    I(f"s_cmp_ge_u32 s2, 128")
    I("s_cbranch_scc1 K1_F")

    def path(kind):
        isF = kind == "F"
        ldw = 3584 if isF else 3072
        SW = SW1 if isF else SWQ
        a.vm = []; a.lg = []
        I(f"v_mul_u32_u24 v{t0}, {ldw}, v28")
        I(f"v_add_u32 v{vWP}, v{t0}, v{vWP}")
        I(f"s_mul_i32 s{sT0}, s{sW}, {32*ldw}")
        for q in range(4):
            I(f"s_mul_i32 s{sWQ+q}, s{sWQ+q}, {128*ldw}")
            I(f"s_add_u32 s{sWQ+q}, s{sWQ+q}, s{sT0}")
        if isF:
            I(f"s_mul_i32 s{sT0}, s{sCB}, 448")
            I(f"s_lshl_b32 s{sT1}, s{sODD}, 6")
            I(f"s_add_u32 s{sPC}, s{sT0}, s{sT1}")
            I(f"s_add_u32 s{sSC}, s{sT0}, 384")
            I(f"s_cmp_eq_u32 s{sODD}, 1")
            I(f"s_cselect_b32 s{sSC}, s{sT0}, s{sSC}")
            pcol = [0, 128, 256]
            I(f"v_lshrrev_b32 v{t0}, 2, v{vL}")
            I(f"v_mul_u32_u24 v{vWS}, {ldw}, v{t0}")
            I(f"v_and_b32 v{t0}, 3, v{vL}")
            I(f"v_lshl_add_u32 v{vWS}, v{t0}, 4, v{vWS}")
        else:
            I(f"s_lshl_b32 s{sPC}, s{sCB}, 7")
            pcol = [0, 1024, 2048]
        blocks = []
        for q in range(4): blocks += [("W", 0, q), ("X", 2*q), ("X", 2*q+1)]
        for p in (1, 2): blocks += [("W", p, q) for q in range(4)]
        if isF: blocks += [("S", 0), ("S", 1)]
        slot_of = {b: j % 10 for j, b in enumerate(blocks)}
        def issue_list(b):
            sl = slot_of[b] * 16384
            L = []
            def mk(m0s, m0c, so, oc, vo, S_):
                def f():
                    I(f"s_add_u32 m0, s{m0s}, {m0c}")
                    if isinstance(so, tuple):
                        I(f"s_add_u32 s55, s{so[0]}, s{so[1]}")
                        I(f"s_add_u32 s55, s55, {oc}")
                    else:
                        I(f"s_add_u32 s55, s{so}, {oc}")
                    a.vmem(f"buffer_load_dwordx4 v{vo}, s[{S_}:{S_+3}], s55 offen lds", b)
                L.append(f)
            if b[0] == "W":
                _, p, q = b
                for i in range(4): mk(sM0W, sl + 1024*i, sWQ+q, pcol[p] + 8*i*ldw, vWP, SW)
            elif b[0] == "X":
                c = b[1]
                for i in range(4): mk(sM0W, sl + 1024*i, sXQ + c//2, 8192*i + 128*(c%2), vXO if i%2 else vXE, SX)
            else:
                hb = b[1]
                for sub in range(2):
                    q = 2*hb + sub
                    for i in range(2): mk(97, sl + 8192*sub + 1024*i, (sWQ+q, sSD), 16*i*ldw, vWS, SW)
            return L
        def issue(b):
            for f in issue_list(b): f()
        for q in range(4): I(f"s_add_u32 s{sWQ+q}, s{sWQ+q}, s{sPC}")
        if isF:
            I(f"s_sub_u32 s{sSD}, s{sSC}, s{sPC}")
            I(f"s_lshr_b32 s97, s{sM0W}, 1")
        for b in blocks[:3]: issue(b)
        if isF:
            I(f"v_and_b32 v{t0}, 31, v{vL}")
            I(f"v_lshlrev_b32 v{t0}, 1, v{t0}")
            for r in range(16):
                if r % 2 == 1 or r >= 14: I(f"v_mov_b32 v{BIAS+r}, 0")
            for t in range(6):
                a.vmem(f"buffer_load_ushort v{BIAS+2*t}, v{t0}, s[{SB1}:{SB1+3}], s{sPC} offen offset:{64*t}", "bias")
            a.vmem(f"buffer_load_ushort v{BIAS+12}, v{t0}, s[{SB1}:{SB1+3}], s{sSC} offen", "bias")
            I(f"v_cmp_gt_u32 vcc, 32, v{vL}")
            I(f"v_mov_b32 v{BONE+1}, 0")
            I(f"v_mov_b32 v{BONE+2}, 0")
            I(f"v_mov_b32 v{BONE+3}, 0")
            I(f"v_mov_b32 v{t0}, 0x3f80")
            I(f"v_cndmask_b32 v{BONE}, 0, v{t0}, vcc")
        for b in blocks[3:NPRE]: issue(b)
        I(f"s_lshl_b32 s{sT1}, s2, 3")
        I(f"s_lshl_b32 s{sT2}, s{sW}, 1")
        I(f"s_add_u32 s{sT1}, s{sT1}, s{sT2}")
        I(f"s_lshl_b32 s{sT1}, s{sT1}, 10")
        I(f"v_lshlrev_b32 v{vG0}, 5, v{vL}")
        I(f"v_and_b32 v{vG1}, 0x3ff, v{vG0}")
        a.vmem(f"buffer_load_dwordx4 v[{GX}:{GX+3}], v{vG0}, s[{SX}:{SX+3}], s{sT1} offen", "g")
        a.vmem(f"buffer_load_dwordx4 v[{GX+4}:{GX+7}], v{vG0}, s[{SX}:{SX+3}], s{sT1} offen offset:16", "g")
        a.vmem(f"buffer_load_dwordx4 v[{GW}:{GW+3}], v{vG1}, s[{SG}:{SG+3}], 0 offen", "g")
        a.vmem(f"buffer_load_dwordx4 v[{GW+4}:{GW+7}], v{vG1}, s[{SG}:{SG+3}], 0 offen offset:16", "g")
        if isF:
            I(f"s_mul_i32 s{sOUT}, s{sRT}, {144*1024}")
            I(f"s_add_u32 s{sOUT}, s{sOUT}, {AF_OFF + 32*1024}")
        nxt = [NPRE]
        dq = []
        def issue_more(n):
            for _ in range(n):
                if nxt[0] < len(blocks):
                    dq.extend(issue_list(blocks[nxt[0]])); nxt[0] += 1

        kinds = ["F"]*3 if isF else ["Q", "K", "V"]
        def epilogue(kindt, p, ct, acc, pk):
            F = []
            def J(s):
                f = lambda s=s: a.i(s)
                f.acc = acc; F.append(f)
            def ST(s):
                f = lambda s=s: a.vmem(s, "st")
                f.acc = acc; F.append(f)
            if kindt == "F":
                if PKMISH:
                    for gq in range(2):
                        prs = [4*gq + e for e in range(4)]
                        T = lambda e, k: TMP + 8*k + 2*(e % 4)
                        vp = lambda r: f"v[{r}:{r+1}]"
                        for e in prs: J(f"v_pk_mul_f32 {vp(T(e,0))}, {vp(acc+2*e)}, s[{sL2E}:{sL2E+1}]")
                        for e in prs:
                            for u in range(2): J(f"v_min_f32 v{T(e,0)+u}, 0x41f00000, v{T(e,0)+u}")
                        for e in prs:
                            for u in range(2): J(f"v_exp_f32 v{T(e,0)+u}, v{T(e,0)+u}")
                        for e in prs: J(f"v_pk_add_f32 {vp(T(e,1))}, {vp(T(e,0))}, s[{sTWO}:{sTWO+1}]")
                        for e in prs: J(f"v_pk_mul_f32 {vp(T(e,1))}, {vp(T(e,0))}, {vp(T(e,1))}")
                        for e in prs: J(f"v_pk_add_f32 {vp(T(e,2))}, {vp(T(e,1))}, s[{sTWO}:{sTWO+1}]")
                        for e in prs:
                            for u in range(2): J(f"v_rcp_f32 v{T(e,2)+u}, v{T(e,2)+u}")
                        for e in prs: J(f"v_pk_mul_f32 {vp(T(e,1))}, {vp(T(e,1))}, {vp(T(e,2))}")
                        for e in prs: J(f"v_pk_mul_f32 {vp(T(e,0))}, {vp(acc+2*e)}, {vp(T(e,1))}")
                        for e in prs: J(f"v_cvt_pk_bf16_f32 v{pk+e}, v{T(e,0)}, v{T(e,0)+1}")
                else:
                    for gq in range(4):
                        els = [4*gq + e for e in range(4)]
                        T = lambda e, k: TMP + 12*(gq % 2) + 3*(e % 4) + k
                        for e in els: J(f"v_mul_f32 v{T(e,0)}, s{sL2E}, v{acc+e}")
                        for e in els: J(f"v_min_f32 v{T(e,0)}, 0x41f00000, v{T(e,0)}")
                        for e in els: J(f"v_exp_f32 v{T(e,0)}, v{T(e,0)}")
                        for e in els: J(f"v_add_f32 v{T(e,1)}, 2.0, v{T(e,0)}")
                        for e in els: J(f"v_mul_f32 v{T(e,1)}, v{T(e,0)}, v{T(e,1)}")
                        for e in els: J(f"v_add_f32 v{T(e,2)}, 2.0, v{T(e,1)}")
                        for e in els: J(f"v_rcp_f32 v{T(e,2)}, v{T(e,2)}")
                        for e in els: J(f"v_mul_f32 v{T(e,1)}, v{T(e,1)}, v{T(e,2)}")
                        for e in els: J(f"v_mul_f32 v{T(e,0)}, v{acc+e}, v{T(e,1)}")
                        J(f"v_cvt_pk_bf16_f32 v{pk+2*gq}, v{T(els[0],0)}, v{T(els[1],0)}")
                        J(f"v_cvt_pk_bf16_f32 v{pk+2*gq+1}, v{T(els[2],0)}, v{T(els[3],0)}")
                if p == "S":
                    J(f"s_lshl_b32 s7, s{sSC}, 5")
                    J(f"s_add_u32 s7, s7, s{sOUT}")
                else:
                    J(f"s_lshl_b32 s7, s{sPC}, 5")
                    J(f"s_add_u32 s7, s7, s{sOUT}")
                    J(f"s_add_u32 s7, s7, {(128*p + 64*ct)*32}")
                ST(f"buffer_store_dwordx4 v[{pk}:{pk+3}], v{vST}, s[{SWS}:{SWS+3}], s7 offen")
                ST(f"buffer_store_dwordx4 v[{pk+4}:{pk+7}], v{vST}, s[{SWS}:{SWS+3}], s7 offen offset:1024")
            else:
                j = ct
                if kindt == "Q":
                    for e in range(16): J(f"v_mul_f32 v{TMP+e}, s{sQS}, v{acc+e}")
                    src = TMP
                else:
                    src = acc
                for e in range(8): J(f"v_cvt_pk_bf16_f32 v{pk+e}, v{src+2*e}, v{src+2*e+1}")
                if kindt == "Q":
                    J(f"s_lshl_b32 s7, s{sCB}, 18")
                    J(f"s_lshl_b32 s3, s{sRT}, 10")
                    J(f"s_add_u32 s7, s7, s3")
                    J(f"s_add_u32 s7, s7, {QF_OFF + 2*j*65536}")
                    J(f"s_add_u32 s3, s7, 65536")
                    ST(f"buffer_store_dwordx4 v[{pk}:{pk+3}], v{vST}, s[{SWS}:{SWS+3}], s7 offen")
                    ST(f"buffer_store_dwordx4 v[{pk+4}:{pk+7}], v{vST}, s[{SWS}:{SWS+3}], s3 offen")
                else:
                    J(f"s_lshl_b32 s7, s{sCB}, 19")
                    J(f"s_lshl_b32 s3, s{sRT}, 11")
                    J(f"s_add_u32 s7, s7, s3")
                    J(f"s_add_u32 s7, s7, {KV_OFF + 2*j*131072}")
                    if kindt == "K":
                        J(f"s_add_u32 s3, s7, 131072")
                        ST(f"buffer_store_dwordx4 v[{pk}:{pk+3}], v{vST}, s[{SWS}:{SWS+3}], s7 offen")
                        ST(f"buffer_store_dwordx4 v[{pk+4}:{pk+7}], v{vST}, s[{SWS}:{SWS+3}], s3 offen")
                    else:
                        ST(f"buffer_store_dwordx4 v[{pk}:{pk+3}], v{vSV}, s[{SWS}:{SWS+3}], s7 offen")
                        ST(f"buffer_store_dwordx4 v[{pk+4}:{pk+7}], v{vSV}, s[{SWS}:{SWS+3}], s7 offen offset:512")
            return F

        def mfma(kindt, acc, wf, ks, first):
            cin = "0" if first else f"v[{acc}:{acc+15}]"
            if kindt == "V":
                I(f"v_mfma_f32_32x32x16_bf16 v[{acc}:{acc+15}], a[{4*ks}:{4*ks+3}], v[{wf}:{wf+3}], {cin}")
            else:
                I(f"v_mfma_f32_32x32x16_bf16 v[{acc}:{acc+15}], v[{wf}:{wf+3}], a[{4*ks}:{4*ks+3}], {cin}")
        def rd_pair(p, ct, ks, buf, tag):
            q, s = ks // 8, ks % 8
            sl = slot_of[("W", p, q)]
            base = vTRP[ct][sl // 4]
            off = (sl % 4) * 16384 + 2048 * s
            a.lds(f"ds_read_b64_tr_b16 v[{buf}:{buf+1}], v{base} offset:{off}", tag)
            a.lds(f"ds_read_b64_tr_b16 v[{buf+2}:{buf+3}], v{base} offset:{off+512}", tag)
        def rd_single(ks, buf, tag):
            sl = slot_of[("S", ks // 16)]
            assert sl < 4
            off = sl * 16384 + 1024 * (ks % 16)
            a.lds(f"ds_read_b64_tr_b16 v[{buf}:{buf+1}], v{vTS} offset:{off}", tag)
            a.lds(f"ds_read_b64_tr_b16 v[{buf+2}:{buf+3}], v{vTS} offset:{off+256}", tag)
        def bias_mfma(acc, t):
            I(f"v_mfma_f32_32x32x16_bf16 v[{acc}:{acc+15}], v[{BIAS+2*t}:{BIAS+2*t+3}], v[{BONE}:{BONE+3}], 0")

        for q in range(4):
            a.c(f"---- phase1 step {q}")
            a.wait(vm=("X", 2*q+1))
            a.wait(vm=("W", 0, q))
            I("s_barrier")
            stamp(a, 1 + q)
            for c in (2*q, 2*q+1):
                sl = slot_of[("X", c)]
                for sp in range(4):
                    ks = 4*c + sp
                    if sl < 4:
                        a.lds(f"ds_read_b128 a[{4*ks}:{4*ks+3}], v{vXR[sp]} offset:{sl*16384}", ("x", ks))
                    else:
                        I(f"v_add_u32 v{t0+sp}, {(sl//4)*65536}, v{vXR[sp]}")
                        a.lds(f"ds_read_b128 a[{4*ks}:{4*ks+3}], v{t0+sp} offset:{(sl%4)*16384}", ("x", ks))
                if c == 2*q:
                    for u in range(2): rd_pair(0, u, 8*q, WF[u], ("w", 8*q))
            issue_more(3 if q > 0 else 10 - NPRE)
            if q == 0 and isF:
                a.wait(vm="bias")
                bias_mfma(ACC[0], 0); bias_mfma(ACC[1], 1)
            for u in range(2): rd_pair(0, u, 8*q+1, WF[2+u], ("w", 8*q+1))
            for s in range(8):
                ks = 8*q + s
                if s + 2 < 8:
                    for u in range(2): rd_pair(0, u, ks+2, WF[2*((s+2) % 3) + u], ("w", ks+2))
                a.wait(lg=[("w", ks), ("x", ks)])
                for u in range(2):
                    mfma(kinds[0], ACC[u], WF[2*(s % 3) + u], ks, first=(ks == 0 and not isF))
                    if dq: dq.pop(0)()
            while dq: dq.pop(0)()
        last = a.n
        fill = epilogue(kinds[0], 0, 0, ACC[0], PK) + epilogue(kinds[0], 0, 1, ACC[1], PK + 8)
        seq = [1, 2] + (["S"] if isF else [])
        for n, p in enumerate(seq):
            accs = [ACC[2*((n+1) % 2)], ACC[2*((n+1) % 2) + 1]]
            kindt = "F" if isF else kinds[p]
            a.c(f"---- phase2 {p}")
            while any(f.acc in accs for f in fill):
                print("WARNING: forced flush", kind, n)
                fill.pop(0)()
            a.wait(vm=(("W", p, 3) if p != "S" else ("S", 1)))
            I("s_barrier")
            stamp(a, 5 + n)
            if p != "S":
                ops = [(u, ks) for ks in range(32) for u in range(2)]
                rd = lambda k, buf: rd_pair(p, ops[k][0], ops[k][1], buf, ("w", k))
            else:
                ops = [(ks % 2, ks) for ks in range(32)]
                rd = lambda k, buf: rd_single(ops[k][1], buf, ("w", k))
            for k in range(4): rd(k, WF[k])
            if p == 1:
                issue_more(3)
                if not isF:
                    I(f"s_lshl_b32 s86, s{sW}, 13")
                    I(f"s_lshl_b32 s85, s{sCB}, 7")
                    I(f"s_and_b32 s{sTR}, s{sW}, 1")
                    I(f"s_lshl_b32 s{sT1}, s{sRB}, 1")
                    I(f"s_add_u32 s{sTR}, s{sTR}, s{sT1}")
                    I(f"s_mul_i32 s{sT1}, s{sRB}, 7")
                    I(f"s_add_u32 s{sTR+1}, s{sT1}, s{sW}")
                    I(f"s_add_u32 s{sTR+2}, s{sW}, 4")
                    I(f"s_min_u32 s{sTR+2}, s{sTR+2}, 6")
                    I(f"s_add_u32 s{sTR+2}, s{sTR+2}, s{sT1}")
                    for u in range(3):
                        S_ = SWO if u == 0 else SW2
                        for i in range(2):
                            def f(u=u, i=i, S_=S_):
                                I(f"s_add_u32 m0, s86, {2048*u + 1024*i}")
                                I(f"s_lshl_b32 s55, s{sTR+u}, 14")
                                I(f"s_add_u32 s55, s55, s85")
                                I(f"s_add_u32 s55, s55, {8192*i}")
                                a.vmem(f"buffer_load_dwordx4 v{vTD}, s[{S_}:{S_+3}], s55 offen lds", "tr")
                            dq.append(f)
            started = [False, False]
            if isF:
                if p == "S":
                    bias_mfma(accs[0], 6); started[0] = True
                else:
                    bias_mfma(accs[0], 2*p); bias_mfma(accs[1], 2*p + 1); started = [True, True]
            NO = len(ops)
            per = -(-len(fill) // (NO - 3))
            for k, (u, ks) in enumerate(ops):
                if k % 2 == 0:
                    for kk in (k + 4, k + 5):
                        if kk < NO: rd(kk, WF[kk % 6])
                    a.wait(lg=("w", k + 1))
                mfma(kindt, accs[u], WF[k % 6], ks, first=not started[u])
                started[u] = True
                if dq and k % 3 == 0: dq.pop(0)()
                if a.n - last >= 14:
                    for _ in range(per):
                        if fill: fill.pop(0)()
            assert not dq
            last = a.n
            if p == "S":
                pre = []
                for e in range(16):
                    f = lambda e=e: a.i(f"v_add_f32 v{accs[0]+e}, v{accs[0]+e}, v{accs[1]+e}")
                    f.acc = accs[0]; pre.append(f)
                fill = fill + pre + epilogue(kindt, p, 0, accs[0], PK)
            else:
                fill = fill + epilogue(kindt, p, 0, accs[0], PK) + epilogue(kindt, p, 1, accs[1], PK + 8)
        stamp(a, 8)
        a.c("---- gate")
        a.wait(vm="g")
        I(f"v_mov_b32 v{vG0}, 0")
        I(f"v_mov_b32 v{vG1}, 0")
        for k in range(8):
            I(f"v_dot2_f32_bf16 v{vG0+k%2}, v{GX+k}, v{GW+k}, v{vG0+k%2}")
        I("s_nop 2")
        I(f"v_add_f32 v{vG0}, v{vG0}, v{vG1}")
        for d in ("quad_perm:[1,0,3,2]", "quad_perm:[2,3,0,1]", "row_half_mirror", "row_mirror"):
            I("s_nop 1")
            I(f"v_add_f32_dpp v{vG0}, v{vG0}, v{vG0} {d} row_mask:0xf bank_mask:0xf")
        a.lds(f"ds_swizzle_b32 v{vG1}, v{vG0} offset:0x401F", "sw")
        if not isF:
            a.wait(vm="tr")
            for u in range(3):
                for ct in range(2):
                    b = WF[2*u + ct]
                    a.lds(f"ds_read_b64_tr_b16 v[{b}:{b+1}], v{vTT[ct]} offset:{2048*u}", ("tt", u, ct))
                    a.lds(f"ds_read_b64_tr_b16 v[{b+2}:{b+3}], v{vTT[ct]} offset:{2048*u+1024}", ("tt", u, ct))
        while fill: fill.pop(0)()
        a.wait(lg="sw")
        I(f"v_add_f32 v{vG0}, v{vG0}, v{vG1}")
        I(f"v_mul_f32 v{vG0}, s{sL2E}, v{vG0}")
        I(f"v_exp_f32 v{vG0}, -v{vG0}")
        I("s_nop 0")
        I(f"v_add_f32 v{vG0}, 1.0, v{vG0}")
        I(f"v_rcp_f32 v{vG0}, v{vG0}")
        I(f"s_lshl_b32 s{sT1}, s2, 3")
        I(f"s_lshl_b32 s{sT2}, s{sW}, 1")
        I(f"s_add_u32 s{sT1}, s{sT1}, s{sT2}")
        I(f"s_lshl_b32 s{sT1}, s{sT1}, 2")
        I(f"s_add_u32 s{sT1}, s{sT1}, {G_OFF}")
        I(f"v_lshrrev_b32 v{vG1}, 5, v{vL}")
        I(f"v_lshlrev_b32 v{vG1}, 2, v{vG1}")
        I(f"s_mov_b32 s98, 1")
        I(f"s_mov_b32 s99, 1")
        I(f"s_mov_b64 exec, s[98:99]")
        a.vmem(f"buffer_store_dword v{vG0}, v{vG1}, s[{SWS}:{SWS+3}], s{sT1} offen", "st")
        I(f"s_mov_b64 exec, -1")
        if not isF:
            I(f"s_mul_i32 s{sT2}, s{sCB}, 288")
            for u in range(3):
                I(f"s_add_u32 s{sT1}, s{sT2}, s{sTR+u}")
                I(f"s_lshl_b32 s{sT1}, s{sT1}, 10")
                for ct in range(2):
                    b = WF[2*u + ct]
                    I(f"s_add_u32 s3, s{sT1}, {WF_OFF + (32*1024 if u else 0) + ct*144*1024}")
                    a.wait(lg=("tt", u, ct))
                    a.vmem(f"buffer_store_dwordx4 v[{b}:{b+3}], v{vST}, s[{SWS}:{SWS+3}], s3 offen", "st")
        stamp(a, 9)
        if DBG: I("s_waitcnt vmcnt(0)")
        stamp(a, 10)
        stamp_flush(a, 11, SWS, sW, 0)
        I("s_endpgm")

    path("QKV")
    a.label("K1_F")
    path("F")
    a.label("K1_END")
    I("s_endpgm")
    return a.text(), kdesc("k1_kernel", NV + 128, 100, NV), 163840
```

```python
from common import *
SHPRIO = opt("--shprio", 0)
SHPRIO2 = opt("--shprio2", 3)
ATPRIO = opt("--atprio", 1)
ZROWS = opt("--zrows", 1)
XBASE = 131072

def gen_k2():
    a = Asm()
    I = a.i
    a.raw(khead("k2_kernel"))
    I("s_cmp_ge_u32 s2, 256")
    I("s_cbranch_scc1 K2_END")
    SWS = 8
    I(f"s_load_dwordx2 s[8:9], s[0:1], 80")
    srd(a, SWS, WS_BYTES)
    sW, sH, sQT, sT0, sT1, sCNT, sNMAX, sFIRST = 12, 13, 14, 15, 16, 17, 18, 19
    sVM = 20
    vL, vT, vLO, vKA, vVA, vG, vM, vT2 = 1, 2, 3, 4, 5, 6, 7, 8
    Q, NEGM, S, O, P, KF, VF = 12, 16, [32, 48], 64, 80, [88, 92], [96, 104]
    NV = 144
    I(f"v_and_b32 v{vL}, 63, v0")
    I(f"v_lshrrev_b32 v{vT}, 6, v0")
    I(f"s_and_b32 s{sT0}, s2, 7")
    I(f"v_readfirstlane_b32 s{sW}, v{vT}")
    I(f"s_lshl_b32 s{sT0}, s{sT0}, 2")
    I(f"s_bfe_u32 s{sT1}, s2, 0x20003")
    I(f"s_add_u32 s{sH}, s{sT0}, s{sT1}")
    I(f"s_lshr_b32 s24, s2, 5")
    I(f"v_lshlrev_b32 v{vLO}, 4, v{vL}")
    I(f"s_lshl_b32 s22, s{sH}, 17")
    I(f"s_cmp_ge_u32 s{sW}, 8")
    I("s_cbranch_scc1 K2_SHADOW")
    I(f"s_lshl_b32 s{sQT}, s24, 3")
    I(f"s_add_u32 s{sQT}, s{sQT}, s{sW}")
    I(f"s_lshl_b32 s23, s{sW}, 10")
    I(f"s_add_u32 s22, s22, s23")
    I(f"s_lshl_b32 s{sT0}, s{sH}, 6")
    I(f"s_add_u32 s{sT0}, s{sT0}, s{sQT}")
    I(f"s_lshl_b32 s{sT0}, s{sT0}, 10")
    I("s_waitcnt lgkmcnt(0)")
    stamp(a, 0)
    for t in range(3):
        I(f"s_add_u32 m0, s23, {8192*t}")
        I(f"s_add_u32 s{sT1}, s22, {KV_OFF + 8192*t}")
        I(f"buffer_load_dwordx4 v{vLO}, s[{SWS}:{SWS+3}], s{sT1} offen lds")
        if t == 0:
            I(f"buffer_load_dwordx4 v[{Q}:{Q+3}], v{vLO}, s[{SWS}:{SWS+3}], s{sT0} offen")
    I(f"v_and_b32 v{vT}, 31, v{vL}")
    I(f"v_lshlrev_b32 v{vT2}, 2, v{vT}")
    I(f"s_lshl_b32 s{sT0}, s{sQT}, 7")
    I(f"s_add_u32 s{sT0}, s{sT0}, {G_OFF}")
    I(f"buffer_load_dword v{vG}, v{vT2}, s[{SWS}:{SWS+3}], s{sT0} offen")
    I(f"s_mov_b32 s{sVM}, 0xffff")
    I(f"s_mov_b32 s{sVM+1}, 0xffff")
    if ZROWS:
        I(f"v_and_b32 v{vT}, 27, v{vT}")
        I(f"v_cmp_eq_u32 vcc, 16, v{vT}")
        I(f"v_mov_b32 v{vT}, 0x3f803f80")
        I("s_nop 0")
        I(f"v_cndmask_b32 v{VF[0]}, 0, v{vT}, vcc")
        for r in range(1, 16): I(f"v_mov_b32 v{VF[0]+r}, v{VF[0]}")
    else:
        for r in range(16): I(f"v_mov_b32 v{VF[0]+r}, 0x3f803f80")
    I(f"s_mov_b32 s{sNMAX}, 1")
    I(f"s_mov_b32 s{sFIRST}, 1")
    if ATPRIO: I("s_setprio 2")
    I("s_waitcnt vmcnt(0)")
    I("s_barrier")
    stamp(a, 1)
    a.label("K2_MAXPASS")
    I(f"v_mov_b32 v{vKA}, v{vLO}")
    I(f"v_mov_b32 v{vM}, 0xff800000")
    I(f"s_mov_b32 s{sCNT}, s{sNMAX}")
    a.label("K2_MAXLOOP")
    I(f"ds_read_b128 v[{KF[0]}:{KF[0]+3}], v{vKA}")
    I(f"v_add_u32 v{vKA}, 2048, v{vKA}")
    I("s_waitcnt lgkmcnt(0)")
    I(f"v_mfma_f32_32x32x16_bf16 v[{S[0]}:{S[0]+15}], v[{KF[0]}:{KF[0]+3}], v[{Q}:{Q+3}], 0")
    I("s_nop 11")
    for r in range(8):
        I(f"v_max3_f32 v{vM}, v{S[0]+2*r}, v{S[0]+2*r+1}, v{vM}")
    I(f"s_sub_u32 s{sCNT}, s{sCNT}, 1")
    I(f"s_cmp_lg_u32 s{sCNT}, 0")
    I("s_cbranch_scc1 K2_MAXLOOP")
    I(f"v_mov_b32 v{vT}, v{vM}")
    I(f"v_mov_b32 v{vKA}, v{vLO}")
    I(f"v_and_b32 v{vT2}, 15, v{vL}")
    I(f"v_permlane32_swap_b32 v{vM}, v{vT}")
    I(f"v_lshlrev_b32 v{vVA}, 4, v{vT2}")
    I(f"v_lshrrev_b32 v{vT2}, 5, v{vL}")
    I(f"v_max_f32 v{vM}, v{vM}, v{vT}")
    I(f"v_lshl_add_u32 v{vVA}, v{vT2}, 8, v{vVA}")
    I(f"v_add_u32 v{vVA}, 1024, v{vVA}")
    def rdK(t, buf):
        I(f"ds_read_b128 v[{KF[buf]}:{KF[buf]+3}], v{vKA} offset:{2048*t}")
    def rdV(t, buf):
        I(f"s_mov_b64 exec, s[{sVM}:{sVM+1}]")
        I(f"ds_read_b128 v[{VF[buf]}:{VF[buf]+3}], v{vVA} offset:{2048*t}")
        I(f"ds_read_b128 v[{VF[buf]+4}:{VF[buf]+7}], v{vVA} offset:{2048*t+512}")
        I(f"s_mov_b64 exec, -1")
    rdK(0, 0); rdK(1, 1); rdV(0, 0)
    for r in range(16): I(f"v_sub_f32 v{NEGM+r}, 0, v{vM}")
    stamp(a, 2)
    for r in range(4, 8): I(f"v_mov_b32 v{P+r}, 0")
    I("s_waitcnt lgkmcnt(3)")
    I(f"v_mfma_f32_32x32x16_bf16 v[{S[0]}:{S[0]+15}], v[{KF[0]}:{KF[0]+3}], v[{Q}:{Q+3}], v[{NEGM}:{NEGM+15}]")
    for r in range(16): I(f"v_mov_b32 v{O+r}, 0")
    I(f"s_mov_b32 s{sCNT}, 8")
    a.label("K2_LOOP")
    for t in range(8):
        cur, nxt = t % 2, (t + 1) % 2
        sc = S[cur]
        e = lambda k: I(f"v_exp_f32 v{sc+k}, v{sc+k}")
        c = lambda k: I(f"v_cvt_pk_bf16_f32 v{P+k}, v{sc+2*k}, v{sc+2*k+1}")
        I("s_waitcnt lgkmcnt(2)")
        I(f"v_mfma_f32_32x32x16_bf16 v[{S[nxt]}:{S[nxt]+15}], v[{KF[nxt]}:{KF[nxt]+3}], v[{Q}:{Q+3}], v[{NEGM}:{NEGM+15}]")
        rdK(t + 2, cur)
        for k in range(5): e(k)
        I(f"v_mfma_f32_32x32x16_bf16 v[{O}:{O+15}], v[{VF[nxt]+4}:{VF[nxt]+7}], v[{P+4}:{P+7}], v[{O}:{O+15}]")
        rdV(t + 1, nxt)
        c(0); c(1)
        for k in range(5, 10): e(k)
        c(2); c(3); e(10); e(11)
        I("s_waitcnt lgkmcnt(3)")
        I(f"v_mfma_f32_32x32x16_bf16 v[{O}:{O+15}], v[{VF[cur]}:{VF[cur]+3}], v[{P}:{P+3}], v[{O}:{O+15}]")
        c(4); c(5)
        for k in range(12, 16): e(k)
        c(6); c(7)
    I(f"v_add_u32 v{vKA}, 0x4000, v{vKA}")
    I(f"v_add_u32 v{vVA}, 0x4000, v{vVA}")
    I(f"s_cmp_eq_u32 s{sFIRST}, 0")
    I("s_cbranch_scc1 K2_NOBAR")
    I(f"s_mov_b32 s{sFIRST}, 0")
    if DBG: I("s_memtime s[94:95]")
    I("s_barrier")
    if DBG:
        I("s_memtime s[96:97]")
        I("s_waitcnt lgkmcnt(0)")
        I("s_mov_b32 s67, s94")
        I("s_mov_b32 s68, s96")
    a.label("K2_NOBAR")
    if ATPRIO:
        I(f"s_cmp_lg_u32 s{sCNT}, 5")
        I("s_cbranch_scc1 K2_NP1")
        I("s_setprio 1")
        a.label("K2_NP1")
        I(f"s_cmp_lg_u32 s{sCNT}, 2")
        I("s_cbranch_scc1 K2_NP2")
        I("s_setprio 0")
        a.label("K2_NP2")
    I(f"s_sub_u32 s{sCNT}, s{sCNT}, 1")
    I(f"s_cmp_lg_u32 s{sCNT}, 0")
    I("s_cbranch_scc1 K2_LOOP")
    I(f"v_mfma_f32_32x32x16_bf16 v[{O}:{O+15}], v[{VF[1]+4}:{VF[1]+7}], v[{P+4}:{P+7}], v[{O}:{O+15}]")
    I("s_waitcnt lgkmcnt(0)")
    I(f"s_mul_i32 s{sT0}, s{sQT}, 144")
    I(f"s_add_u32 s{sT0}, s{sT0}, s{sH}")
    I(f"s_lshl_b32 s{sT0}, s{sT0}, 10")
    I(f"s_add_u32 s{sT0}, s{sT0}, {AF_OFF}")
    I("s_nop 7")
    stamp(a, 5)
    I(f"v_mov_b32 v{vT}, v{O+8}")
    I(f"v_rcp_f32 v{vT2}, v{O+8}")
    for r in range(8):
        I(f"v_fma_f32 v{vT}, v{O+r}, 0, v{vT}")
    I(f"v_cmp_gt_f32 vcc, {fhex(2.0**40)}, v{vT}")
    I(f"v_mul_f32 v{vT2}, v{vT2}, v{vG}")
    I("s_nop 3")
    I(f"s_cmp_eq_u64 vcc, -1")
    I("s_cbranch_scc1 K2_OK")
    I(f"s_cmp_eq_u32 s{sNMAX}, 64")
    I("s_cbranch_scc1 K2_OK")
    I(f"s_mov_b32 s{sNMAX}, 64")
    I("s_branch K2_MAXPASS")
    a.label("K2_OK")
    for r in range(8): I(f"v_mul_f32 v{O+r}, v{O+r}, v{vT2}")
    for r in range(4): I(f"v_cvt_pk_bf16_f32 v{P+r}, v{O+2*r}, v{O+2*r+1}")
    I(f"buffer_store_dwordx4 v[{P}:{P+3}], v{vLO}, s[{SWS}:{SWS+3}], s{sT0} offen")
    if DBG: I("s_waitcnt vmcnt(0)")
    stamp(a, 6)
    stamp_flush(a, 7, SWS, sW, 1)
    I("s_endpgm")

    a.label("K2_SHADOW")
    sJ, sA0, sA1, sB0, sB1 = 25, 26, 27, 28, 29
    ACC, FR = 16, 80
    I(f"s_sub_u32 s{sJ}, s{sW}, 8")
    if SHPRIO: I(f"s_setprio {SHPRIO}")
    I(f"v_lshlrev_b32 v{vT}, 2, v{vL}")
    I(f"v_add_u32 v{vT}, {XBASE + 16384}, v{vT}")
    I(f"v_mov_b32 v{vT2}, 0")
    I(f"ds_write_b32 v{vT}, v{vT2}")
    I(f"s_lshl_b32 s23, s{sJ}, 10")
    I(f"s_add_u32 s23, s23, {24*1024}")
    I(f"s_add_u32 s22, s22, s23")
    I(f"s_add_u32 s22, s22, {KV_OFF}")
    I("s_waitcnt lgkmcnt(0)")
    stamp(a, 0)
    I("s_barrier")
    stamp(a, 1)
    I(f"s_mov_b32 s{sCNT}, 26")
    a.label("K2_KVLOOP")
    I(f"s_mov_b32 m0, s23")
    I(f"s_add_u32 s23, s23, 4096")
    I(f"buffer_load_dwordx4 v{vLO}, s[{SWS}:{SWS+3}], s22 offen lds")
    I(f"s_add_u32 s22, s22, 4096")
    I(f"s_sub_u32 s{sCNT}, s{sCNT}, 1")
    I(f"s_cmp_lg_u32 s{sCNT}, 0")
    I("s_cbranch_scc1 K2_KVLOOP")
    I(f"s_lshr_b32 s{sT0}, s{sJ}, 1")
    I(f"s_lshl_b32 s{sT1}, s24, 1")
    I(f"s_add_u32 s{sA0}, s{sT1}, s{sT0}")
    I(f"s_xor_b32 s{sA1}, s{sA0}, 1")
    I(f"s_and_b32 s{sT0}, s{sJ}, 1")
    I(f"s_lshl_b32 s{sT1}, s{sH}, 1")
    I(f"s_add_u32 s{sB0}, s{sT1}, s{sT0}")
    I(f"s_xor_b32 s{sB1}, s{sB0}, 1")
    I(f"v_and_b32 v{vT}, 31, v{vL}")
    I(f"v_lshlrev_b32 v{vT}, 2, v{vT}")
    I(f"s_lshl_b32 s{sT0}, s{sB0}, 7")
    I(f"s_add_u32 s{sT0}, s{sT0}, {G_OFF}")
    I(f"buffer_load_dword v{vG}, v{vT}, s[{SWS}:{SWS+3}], s{sT0} offen")
    I(f"s_mul_i32 s{sT0}, s{sJ}, {28*1024}")
    for r, off in ((sA0, WF_OFF), (sA1, WF_OFF), (sB0, AF_OFF), (sB1, AF_OFF)):
        I(f"s_mul_i32 s{r}, s{r}, {144*1024}")
        I(f"s_add_u32 s{r}, s{r}, s{sT0}")
        I(f"s_add_u32 s{r}, s{r}, {off + 32*1024}")
    def ld(u):
        fb = FR + 16*u
        for q, r in enumerate((sA0, sB0, sA1, sB1)):
            I(f"buffer_load_dwordx4 v[{fb+4*q}:{fb+4*q+3}], v{vLO}, s[{SWS}:{SWS+3}], s{r} offen offset:{1024*u}")
    for u in range(4): ld(u)
    for r in range(64): I(f"v_mov_b32 v{ACC+r}, 0")
    I("s_waitcnt vmcnt(17)")
    stamp(a, 2)
    I("s_barrier")
    stamp(a, 3)
    I(f"s_mov_b32 s{sCNT}, 7")
    a.label("K2_GLOOP")
    for r in (sA0, sA1, sB0, sB1): I(f"s_add_u32 s{r}, s{r}, 4096")
    for u in range(4):
        fb = FR + 16*u
        A0, B0, A1, B1 = fb, fb+4, fb+8, fb+12
        I("s_waitcnt vmcnt(12)")
        for tau, (A, B) in enumerate(((A0, B0), (A0, B1), (A1, B0), (A1, B1))):
            acc = ACC + 16*tau
            I(f"v_mfma_f32_32x32x16_bf16 v[{acc}:{acc+15}], v[{A}:{A+3}], v[{B}:{B+3}], v[{acc}:{acc+15}]")
        ld(u)
    I(f"s_sub_u32 s{sCNT}, s{sCNT}, 1")
    I(f"s_cmp_lg_u32 s{sCNT}, 0")
    I("s_cbranch_scc1 K2_GLOOP")
    stamp(a, 4)
    I(f"s_setprio {SHPRIO2}")
    I("s_waitcnt vmcnt(0)")
    I(f"v_mov_b32 v{vT2}, 1")
    I("s_nop 7")
    for r, wx, rx in ((1, 0, 1), (2, 1, 3), (3, 3, 0)):
        I(f"s_xor_b32 s{sT0}, s{sJ}, {wx}")
        I(f"s_lshl_b32 s{sT0}, s{sT0}, 12")
        I(f"s_add_u32 s{sT0}, s{sT0}, {XBASE}")
        I(f"v_add_u32 v{vT}, s{sT0}, v{vLO}")
        for q in range(4):
            b = ACC + 16*r + 4*q
            I(f"ds_write_b128 v{vT}, v[{b}:{b+3}] offset:{1024*q}")
        I(f"s_lshl_b32 s{sT0}, s{sJ}, 2")
        I(f"s_add_u32 s{sT0}, s{sT0}, {XBASE + 16384 + 16*r}")
        I(f"v_mov_b32 v{vKA}, s{sT0}")
        I(f"s_xor_b32 s{sT0}, s{sT0}, {4*r}")
        I(f"v_mov_b32 v{vVA}, s{sT0}")
        I("s_waitcnt lgkmcnt(0)")
        I(f"ds_write_b32 v{vKA}, v{vT2}")
        I(f"s_xor_b32 s{sT0}, s{sJ}, {rx}")
        I(f"s_lshl_b32 s{sT0}, s{sT0}, 12")
        I(f"s_add_u32 s{sT0}, s{sT0}, {XBASE}")
        I(f"v_add_u32 v{vT}, s{sT0}, v{vLO}")
        a.label(f"K2_POLL{r}")
        I(f"ds_read_b32 v{vM}, v{vVA}")
        I("s_waitcnt lgkmcnt(0)")
        I(f"v_readfirstlane_b32 s{sT1}, v{vM}")
        I("s_nop 3")
        I(f"s_cmp_eq_u32 s{sT1}, 1")
        I(f"s_cbranch_scc1 K2_GOT{r}")
        I("s_sleep 2")
        I(f"s_branch K2_POLL{r}")
        a.label(f"K2_GOT{r}")
        for q in range(4):
            I(f"ds_read_b128 v[{FR+4*q}:{FR+4*q+3}], v{vT} offset:{1024*q}")
        I("s_waitcnt lgkmcnt(0)")
        for k in range(16): I(f"v_add_f32 v{ACC+k}, v{ACC+k}, v{FR+k}")
    stamp(a, 5)
    I(f"v_sub_f32 v{vG}, 1.0, v{vG}")
    I(f"s_lshl_b32 s{sT0}, s2, 2")
    I(f"s_add_u32 s{sT0}, s{sT0}, s{sJ}")
    I(f"s_lshl_b32 s{sT0}, s{sT0}, 12")
    I(f"s_add_u32 s{sT0}, s{sT0}, {BP_OFF}")
    for k in range(16): I(f"v_mul_f32 v{ACC+k}, v{ACC+k}, v{vG}")
    for q in range(4):
        I(f"buffer_store_dwordx4 v[{ACC+4*q}:{ACC+4*q+3}], v{vLO}, s[{SWS}:{SWS+3}], s{sT0} offen offset:{1024*q}")
    if DBG: I("s_waitcnt vmcnt(0)")
    stamp(a, 6)
    stamp_flush(a, 7, SWS, sW, 1)
    a.label("K2_END")
    I("s_endpgm")
    return a.text(), kdesc("k2_kernel", NV, 100, NV), 131072 + 16384 + 1024

def gen_k3():
    a = Asm()
    I = a.i
    a.raw(khead("k3_kernel"))
    I("s_cmp_ge_u32 s2, 256")
    I("s_cbranch_scc1 K3_END")
    SWS, SO = 8, 12
    I(f"s_load_dwordx2 s[8:9], s[0:1], 80")
    I(f"s_load_dwordx2 s[12:13], s[0:1], 64")
    srd(a, SWS, WS_BYTES); srd(a, SO, 2048*512*2)
    sJ, sRP, sCP, sT0, sT1 = 16, 17, 18, 19, 20
    sA0, sA1, sB0, sB1, sCT, sRT = 24, 25, 26, 27, 28, 29
    vL, vT, vLO, vT2 = 1, 2, 3, 4
    ACC, BP, FR = 16, 80, 96
    I(f"v_and_b32 v{vL}, 63, v0")
    I(f"v_lshrrev_b32 v{vT}, 6, v0")
    I(f"s_and_b32 s{sT0}, s2, 7")
    I(f"v_readfirstlane_b32 s{sJ}, v{vT}")
    I(f"s_lshl_b32 s{sT0}, s{sT0}, 2")
    I(f"s_bfe_u32 s{sT1}, s2, 0x20003")
    I(f"s_add_u32 s{sRP}, s{sT0}, s{sT1}")
    I(f"s_lshr_b32 s{sCP}, s2, 5")
    I(f"v_lshlrev_b32 v{vLO}, 4, v{vL}")
    I(f"s_lshr_b32 s{sT0}, s{sJ}, 1")
    I(f"s_lshl_b32 s{sT1}, s{sCP}, 1")
    I(f"s_add_u32 s{sCT}, s{sT1}, s{sT0}")
    I(f"s_xor_b32 s{sA1}, s{sCT}, 1")
    I(f"s_and_b32 s{sT0}, s{sJ}, 1")
    I(f"s_lshl_b32 s{sT1}, s{sRP}, 1")
    I(f"s_add_u32 s{sRT}, s{sT1}, s{sT0}")
    I(f"s_xor_b32 s{sB1}, s{sRT}, 1")
    I(f"s_lshl_b32 s{sT0}, s{sJ}, 13")
    for r, src, off in ((sA0, sCT, WF_OFF), (sA1, sA1, WF_OFF), (sB0, sRT, AF_OFF), (sB1, sB1, AF_OFF)):
        I(f"s_mul_i32 s{r}, s{src}, {144*1024}")
        I(f"s_add_u32 s{r}, s{r}, s{sT0}")
        I(f"s_add_u32 s{r}, s{r}, {off}")
    I(f"s_lshl_b32 s{sT0}, s2, 2")
    I(f"s_add_u32 s{sT0}, s{sT0}, s{sJ}")
    I(f"s_lshl_b32 s{sT0}, s{sT0}, 12")
    I(f"s_add_u32 s{sT0}, s{sT0}, {BP_OFF}")
    I("s_waitcnt lgkmcnt(0)")
    stamp(a, 0)
    for s in range(8):
        if s == 4:
            for r in (sA0, sA1, sB0, sB1): I(f"s_add_u32 s{r}, s{r}, 4096")
        fb = FR + 16*s
        for q, r in enumerate((sA0, sB0, sA1, sB1)):
            a.vmem(f"buffer_load_dwordx4 v[{fb+4*q}:{fb+4*q+3}], v{vLO}, s[{SWS}:{SWS+3}], s{r} offen offset:{1024*(s%4)}", ("f", s))
    for q in range(4):
        a.vmem(f"buffer_load_dwordx4 v[{BP+4*q}:{BP+4*q+3}], v{vLO}, s[{SWS}:{SWS+3}], s{sT0} offen offset:{1024*q}", "bp")
    I(f"s_mul_i32 s{sT0}, s{sJ}, 12288")
    I(f"v_add_u32 v{vT2}, s{sT0}, v{vLO}")
    for r in (1, 2, 3):
        I(f"s_xor_b32 s{sT0}, s{sJ}, {r}")
        I(f"s_mul_i32 s{sT0}, s{sT0}, 12288")
        I(f"v_add_u32 v{4+r}, s{sT0}, v{vLO}")
    for s in range(8):
        a.wait(vm=("f", s))
        if s in (0, 7): stamp(a, 1 + (s == 7))
        fb = FR + 16*s
        A0, B0, A1, B1 = fb, fb+4, fb+8, fb+12
        order = ((3, A1, B1), (2, A1, B0), (1, A0, B1), (0, A0, B0))
        for tau, A, B in order:
            acc = ACC + 16*tau
            cin = "0" if s == 0 else f"v[{acc}:{acc+15}]"
            I(f"v_mfma_f32_32x32x16_bf16 v[{acc}:{acc+15}], v[{A}:{A+3}], v[{B}:{B+3}], {cin}")
    I(f"s_lshl_b32 s{sT0}, s{sRT}, 15")
    I(f"s_lshl_b32 s{sT1}, s{sCT}, 6")
    I(f"s_add_u32 s{sT0}, s{sT0}, s{sT1}")
    I(f"v_and_b32 v{vT}, 31, v{vL}")
    I(f"v_lshlrev_b32 v{vT}, 10, v{vT}")
    I(f"v_lshrrev_b32 v8, 5, v{vL}")
    I(f"v_lshl_add_u32 v{vT}, v8, 5, v{vT}")
    I("s_nop 2")
    for r in (3, 2, 1):
        for q in range(4):
            b = ACC + 16*r + 4*q
            I(f"ds_write_b128 v{4+r}, v[{b}:{b+3}] offset:{(r-1)*4096 + q*1024}")
    a.wait(vm="bp")
    for k in range(16): I(f"v_add_f32 v{ACC+k}, v{ACC+k}, v{BP+k}")
    I("s_waitcnt lgkmcnt(0)")
    I("s_barrier")
    stamp(a, 5)
    for r in range(3):
        for q in range(4):
            b = FR + 16*r + 4*q
            I(f"ds_read_b128 v[{b}:{b+3}], v{vT2} offset:{r*4096 + q*1024}")
    for r in range(3):
        I(f"s_waitcnt lgkmcnt({8-4*r})")
        for k in range(16): I(f"v_add_f32 v{ACC+k}, v{ACC+k}, v{FR+16*r+k}")
    for r in range(8): I(f"v_cvt_pk_bf16_f32 v{BP+r}, v{ACC+2*r}, v{ACC+2*r+1}")
    I(f"buffer_store_dwordx4 v[{BP}:{BP+3}], v{vT}, s[{SO}:{SO+3}], s{sT0} offen")
    I(f"buffer_store_dwordx4 v[{BP+4}:{BP+7}], v{vT}, s[{SO}:{SO+3}], s{sT0} offen offset:16")
    if DBG: I("s_waitcnt vmcnt(0)")
    stamp(a, 6)
    stamp_flush(a, 7, SWS, sJ, 2)
    a.label("K3_END")
    I("s_endpgm")
    return a.text(), kdesc("k3_kernel", 224, 100, 224), 49152
```

```python
from common import *
PKMISH = opt("--pkmish", 1)
WT = opt("--wt", "sc0_sc1")
WTF = " " + WT.replace("_", " ") if WT and WT != "none" else ""
TRIT = opt("--trit", 2)
ROTX = opt("--rotx", 7)
ROTR = opt("--rotr", 0)
STG = 45056
TRB = 3 * STG

def gen_k1():
    a = Asm()
    I = a.i
    a.raw(khead("k1_kernel"))
    I("s_cmp_ge_u32 s2, 256")
    I("s_cbranch_scc1 K1_END")
    SX, SWQ, SWO, SW1, SB1, SW2, SG, SWS = 8, 12, 16, 20, 24, 28, 32, 36
    for s, off in [(SX, 0), (SWQ, 8), (SW1, 32), (SWO, 16), (SB1, 40), (SW2, 48), (SG, 56), (SWS, 80)]:
        I(f"s_load_dwordx2 s[{s}:{s+1}], s[0:1], {off}")
    srd(a, SX, 2048*512*2); srd(a, SWQ, 512*1536*2); srd(a, SW1, 512*1792*2)
    sW, sC, sRB, sRT, sT0, sT1, sT2, sHF, sIT = 40, 41, 42, 43, 44, 45, 46, 47, 48
    sKX, sKP, sKS = 49, [50, 51, 52], 53
    sMX, sMP, sMS = 54, 55, 56
    sDS, sRS = 57, 58
    sPCOL = [59, 60, 61]; sSCOL = 62
    sLO = 80
    sL2E, sTWO, sQS, s30 = 84, 86, 5, 6
    sTR = 94
    vL = 1
    t0, t1, t2, t3 = 2, 3, 4, 5
    vXE, vXO, vWQ, vWF, vWS, vST, vSV, vTS = 6, 7, 8, 9, 10, 11, 12, 13
    vXR = [14, 15, 16, 17]
    vTP = [18, 19]
    vTT = [20, 21]
    vTD = 22
    vG0, vG1 = 23, 24
    XF = [28, 32]
    WF = [[36, 40, 44, 48], [52, 56, 60, 64]]
    ACC = [68, 84, 100, 116]
    PK = 132
    BIAS, BONE, GX, GW = 148, 154, 158, 162
    NV = 168
    I(f"v_and_b32 v{vL}, 63, v0")
    I(f"v_lshrrev_b32 v{t0}, 6, v0")
    I(f"s_and_b32 s{sT0}, s2, 1")
    I(f"v_readfirstlane_b32 s{sW}, v{t0}")
    I(f"s_lshl_b32 s{sT0}, s{sT0}, 3")
    I(f"s_bfe_u32 s{sT1}, s2, 0x30003")
    I(f"s_add_u32 s{sRB}, s{sT0}, s{sT1}")
    I(f"s_and_b32 s{sC}, s2, 6")
    I(f"s_bfe_u32 s{sT0}, s2, 0x10006")
    I(f"s_add_u32 s{sC}, s{sC}, s{sT0}")
    I(f"s_lshr_b32 s{sHF}, s{sW}, 2")
    I(f"s_and_b32 s{sT0}, s{sW}, 3")
    I(f"s_lshl_b32 s{sRT}, s{sRB}, 2")
    I(f"s_add_u32 s{sRT}, s{sRT}, s{sT0}")
    I(f"v_lshrrev_b32 v{t0}, 3, v{vL}")
    I(f"v_and_b32 v{t1}, 7, v{vL}")
    I(f"v_lshrrev_b32 v{t2}, 1, v{t0}")
    I(f"v_xor_b32 v{t3}, v{t1}, v{t2}")
    I(f"v_lshlrev_b32 v{vXE}, 10, v{t0}")
    I(f"v_lshl_add_u32 v{vXE}, v{t3}, 4, v{vXE}")
    I(f"v_xor_b32 v{vXO}, 64, v{vXE}")
    I(f"v_and_b32 v{t2}, 1, v{t2}")
    I(f"v_lshlrev_b32 v{t2}, 2, v{t2}")
    I(f"v_xor_b32 v{t3}, v{t1}, v{t2}")
    I(f"v_lshlrev_b32 v{t3}, 4, v{t3}")
    I(f"v_mul_u32_u24 v{vWQ}, 3072, v{t0}")
    I(f"v_add_u32 v{vWQ}, v{vWQ}, v{t3}")
    I(f"v_mul_u32_u24 v{vWF}, 3584, v{t0}")
    I(f"v_add_u32 v{vWF}, v{vWF}, v{t3}")
    I(f"v_lshl_add_u32 v{vTD}, v{t0}, 10, v{t3}")
    I(f"s_cmp_ge_u32 s2, 128")
    I("s_cbranch_scc1 K1_B")

    def path(ty):
        isA = ty == "A"
        a.vm = []; a.lg = []
        if isA:
            pk_ = ["Q", "K", "F"]
            I(f"s_lshl_b32 s{sPCOL[0]}, s{sC}, 7")
            I(f"s_add_u32 s{sPCOL[1]}, s{sPCOL[0]}, 1024")
            I(f"s_add_u32 s{sPCOL[2]}, s{sPCOL[0]}, {16*128}")
            I(f"s_lshl_b32 s{sSCOL}, s{sC}, 6")
            I(f"s_add_u32 s{sSCOL}, s{sSCOL}, {24*128}")
            I(f"v_lshrrev_b32 v{t0}, 2, v{vL}")
            I(f"v_mul_u32_u24 v{vWS}, 3584, v{t0}")
            I(f"v_and_b32 v{t0}, 3, v{vL}")
            I(f"v_lshl_add_u32 v{vWS}, v{t0}, 4, v{vWS}")
        else:
            pk_ = ["V", "F", "F"]
            I(f"s_lshl_b32 s{sPCOL[0]}, s{sC}, 7")
            I(f"s_add_u32 s{sPCOL[0]}, s{sPCOL[0]}, 2048")
            I(f"s_lshl_b32 s{sPCOL[1]}, s{sC}, 8")
            I(f"s_add_u32 s{sPCOL[2]}, s{sPCOL[1]}, 128")
        I(f"s_cmp_ge_u32 s{sW}, 8")
        I(f"s_cbranch_scc0 K1{ty}_COMP")
        ND = 11 if isA else 10
        sJ, sCH, sSTG, sXB = 63, 57, 58, 53
        sPB = [50, 51, 52]; sSB = 49
        sKXl, sKQl, sKFl, sSXl, sSPl, sSSl = 72, 73, 74, 54, 55, 56
        I(f"s_sub_u32 s{sJ}, s{sW}, 8")
        I(f"s_and_b32 s{sCH}, s2, {ROTX}")
        if ROTR:
            I(f"s_bfe_u32 s{sT0}, s2, 0x30003")
            I(f"s_and_b32 s{sT0}, s{sT0}, {ROTR}")
            I(f"s_add_u32 s{sCH}, s{sCH}, s{sT0}")
            I(f"s_and_b32 s{sCH}, s{sCH}, 7")
        I(f"s_mov_b32 s{sSTG}, 0")
        I(f"s_lshl_b32 s{sXB}, s{sRB}, 2")
        I(f"s_add_u32 s{sXB}, s{sXB}, s{sJ}")
        I(f"s_lshl_b32 s{sXB}, s{sXB}, 15")
        I(f"s_mul_i32 s{sT1}, s{sJ}, {16*3072}")
        I(f"s_mul_i32 s{sT2}, s{sJ}, {16*3584}")
        for p in range(3):
            I(f"s_add_u32 s{sPB[p]}, s{sPCOL[p]}, s{sT2 if pk_[p] == 'F' else sT1}")
        if isA: I(f"s_add_u32 s{sSB}, s{sSCOL}, s{sT2}")
        I(f"s_mov_b32 s{sIT}, 0")
        I("s_waitcnt lgkmcnt(0)")
        a.label(f"K1{ty}_LD")
        I(f"s_lshl_b32 s{sKXl}, s{sCH}, 7")
        I(f"s_add_u32 s{sKXl}, s{sKXl}, s{sXB}")
        I(f"s_mul_i32 s{sKQl}, s{sCH}, {64*3072}")
        I(f"s_mul_i32 s{sKFl}, s{sCH}, {64*3584}")
        I(f"s_lshl_b32 s{sT0}, s{sJ}, 10")
        I(f"s_add_u32 s{sSSl}, s{sSTG}, s{sT0}")
        I(f"s_add_u32 s{sSPl}, s{sSSl}, s{sT0}")
        I(f"s_lshl_b32 s{sT0}, s{sT0}, 1")
        I(f"s_add_u32 s{sSXl}, s{sSPl}, s{sT0}")
        def dma(ms, mc, k, pb, oc, vo, S_):
            I(f"s_add_u32 m0, s{ms}, {mc}")
            if pb is None:
                I(f"s_add_u32 s7, s{k}, {oc}")
            else:
                I(f"s_add_u32 s7, s{k}, s{pb}")
                if oc: I(f"s_add_u32 s7, s7, {oc}")
            I(f"buffer_load_dwordx4 v{vo}, s[{S_}:{S_+3}], s7 offen lds")
        for i in range(4): dma(sSXl, 1024*i, sKXl, None, 8192*i, vXO if i % 2 else vXE, SX)
        for p in range(3):
            F = pk_[p] == "F"
            for i in range(2):
                dma(sSPl, 16384 + 8192*p + 1024*i, sKFl if F else sKQl, sPB[p], 8*i*(3584 if F else 3072), vWF if F else vWQ, SW1 if F else SWQ)
        if isA: dma(sSSl, 40960, sKFl, sSB, 0, vWS, SW1)
        I(f"s_add_u32 s{sCH}, s{sCH}, 1")
        I(f"s_and_b32 s{sCH}, s{sCH}, 7")
        I(f"s_add_u32 s{sSTG}, s{sSTG}, {STG}")
        I(f"s_cmp_eq_u32 s{sSTG}, {3*STG}")
        I(f"s_cselect_b32 s{sSTG}, 0, s{sSTG}")
        I(f"s_add_u32 s{sIT}, s{sIT}, 1")
        I(f"s_cmp_eq_u32 s{sIT}, 1")
        I(f"s_cbranch_scc1 K1{ty}_LD")
        I(f"s_waitcnt vmcnt({ND})")
        I("s_barrier")
        I(f"s_cmp_lt_u32 s{sIT}, 8")
        I(f"s_cbranch_scc1 K1{ty}_LD")
        I(f"s_waitcnt vmcnt(0)")
        I("s_barrier")
        I("s_endpgm")
        a.label(f"K1{ty}_COMP")
        I("s_waitcnt lgkmcnt(0)")
        stamp(a, 0)
        code_prefetch(a, "K3_END", 8, 1, "k1" + ty, vt=132)
        srd(a, SWO, 512*512*2); srd(a, SB1, 1792*2); srd(a, SW2, 1792*512*2); srd(a, SG, 512*2); srd(a, SWS, WS_BYTES)
        I(f"v_and_b32 v{t0}, 31, v{vL}")
        I(f"v_lshrrev_b32 v{t1}, 5, v{vL}")
        I(f"v_bfe_u32 v{t2}, v{t0}, 1, 3")
        I(f"v_xor_b32 v{t2}, v{t2}, v{t1}")
        I(f"v_lshlrev_b32 v{t3}, 7, v{t0}")
        I(f"s_and_b32 s{sT0}, s{sW}, 3")
        I(f"s_lshl_b32 s{sT0}, s{sT0}, 12")
        I(f"v_add_u32 v{t3}, s{sT0}, v{t3}")
        I(f"v_lshl_add_u32 v{t3}, v{t2}, 4, v{t3}")
        I(f"s_lshl_b32 s{sT1}, s{sHF}, 6")
        I(f"v_xor_b32 v{vXR[0]}, s{sT1}, v{t3}")
        for sp in range(1, 4): I(f"v_xor_b32 v{vXR[sp]}, {32*sp}, v{vXR[0]}")
        I(f"v_bfe_u32 v{t0}, v{vL}, 2, 2")
        I(f"v_and_b32 v{t2}, 3, v{vL}")
        I(f"v_bfe_u32 v{t3}, v{vL}, 4, 1")
        p0 = vTP[0]
        I(f"v_lshlrev_b32 v{p0}, 10, v{t1}")
        I(f"v_lshl_add_u32 v{p0}, v{t0}, 7, v{p0}")
        I(f"v_lshl_add_u32 v{p0}, v{t3}, 5, v{p0}")
        I(f"v_lshl_add_u32 v{p0}, v{t2}, 3, v{p0}")
        I(f"v_lshrrev_b32 v25, 1, v{t0}")
        I(f"v_lshl_add_u32 v{p0}, v25, 6, v{p0}")
        I(f"v_xor_b32 v{p0}, s{sT1}, v{p0}")
        I(f"v_add_u32 v{p0}, 16384, v{p0}")
        I(f"s_lshl_b32 s{sT2}, s{sHF}, 12")
        I(f"v_subrev_u32 v{vTP[1]}, s{sT2}, v{p0}")
        I(f"v_add_u32 v{p0}, s{sT2}, v{p0}")
        if isA:
            I(f"v_lshlrev_b32 v{vTS}, 9, v{t1}")
            I(f"v_lshl_add_u32 v{vTS}, v{t0}, 6, v{vTS}")
            I(f"v_lshl_add_u32 v{vTS}, v{t3}, 5, v{vTS}")
            I(f"v_lshl_add_u32 v{vTS}, v{t2}, 3, v{vTS}")
            I(f"s_lshl_b32 s{sT2}, s{sHF}, 5")
            I(f"v_xor_b32 v{vTS}, s{sT2}, v{vTS}")
            I(f"s_lshl_b32 s{sT2}, s{sHF}, 11")
            I(f"v_add_u32 v{vTS}, s{sT2}, v{vTS}")
        else:
            I(f"v_and_b32 v26, 15, v{vL}")
            I(f"v_lshlrev_b32 v{vSV}, 4, v26")
            I(f"v_lshl_add_u32 v{vSV}, v{t1}, 8, v{vSV}")
            I(f"v_lshl_add_u32 v{vSV}, v{t3}, 17, v{vSV}")
            I(f"v_add_u32 v{vSV}, 1024, v{vSV}")
        T0 = vTT[0]
        I(f"s_lshl_b32 s98, s{sW}, 11")
        I(f"s_add_u32 s98, s98, {TRB}")
        I(f"v_lshlrev_b32 v{T0}, 9, v{t1}")
        I(f"v_lshl_add_u32 v{T0}, v{t0}, 7, v{T0}")
        I(f"v_lshl_add_u32 v{T0}, v25, 6, v{T0}")
        I(f"v_lshl_add_u32 v{T0}, v{t3}, 4, v{T0}")
        I(f"v_and_b32 v25, 1, v{t2}")
        I(f"v_lshl_add_u32 v{T0}, v25, 5, v{T0}")
        I(f"v_lshrrev_b32 v25, 1, v{t2}")
        I(f"v_lshl_add_u32 v{T0}, v25, 3, v{T0}")
        I(f"v_add_u32 v{T0}, s98, v{T0}")
        I(f"v_xor_b32 v{vTT[1]}, 64, v{T0}")
        I(f"s_sub_u32 s{sTR}, 255, s2")
        I(f"v_lshlrev_b32 v{vST}, 4, v{vL}")
        I(f"v_cmp_gt_u32 vcc, 32, v{vL}")
        I(f"v_mov_b32 v{BONE+1}, 0")
        I(f"v_mov_b32 v{BONE+2}, 0")
        I(f"v_mov_b32 v{BONE+3}, 0")
        I(f"v_mov_b32 v{t0}, 0x3f80")
        I(f"v_cndmask_b32 v{BONE}, 0, v{t0}, vcc")
        I(f"s_mov_b32 s{sL2E}, {fhex(LOG2E)}")
        I(f"s_mov_b32 s{sL2E+1}, {fhex(LOG2E)}")
        I(f"s_mov_b32 s{sTWO}, 2.0")
        I(f"s_mov_b32 s{sTWO+1}, 2.0")
        I(f"s_mov_b32 s{sQS}, {fhex(QSCALE)}")
        I(f"s_mov_b32 s{s30}, {fhex(30.0)}")
        NA = 4 if isA else 3
        for k in range(16*NA): I(f"v_mov_b32 v{ACC[0]+k}, 0")
        for r in range(6): I(f"v_mov_b32 v{BIAS+r}, 0")
        for r in list(range(XF[1], XF[1]+4)) + list(range(WF[1][0], WF[1][0]+12)): I(f"v_mov_b32 v{r}, 0")
        I(f"s_mov_b32 s{sIT}, 0")
        I(f"s_mov_b32 s{sRS}, 0")
        a.label(f"K1{ty}_LOOP")
        I("s_barrier")
        if DBG:
            I("s_memtime s[90:91]")
            I("s_waitcnt lgkmcnt(0)")
            for n, it in enumerate((0, 1, 2, 4, 6, 7)):
                I(f"s_cmp_eq_u32 s{sIT}, {it}"); I(f"s_cselect_b32 s{65+n}, s90, s{65+n}")
        a.lg = []
        def rdx(s): a.lds(f"ds_read_b128 v[{XF[s%2]}:{XF[s%2]+3}], v{vXR[s]}", ("r", s))
        def rdw(s):
            for p in range(3):
                b = WF[s % 2][p]
                off = 8192*p + 2048*s
                a.lds(f"ds_read_b64_tr_b16 v[{b}:{b+1}], v{vTP[s//2]} offset:{off}", ("r", s))
                a.lds(f"ds_read_b64_tr_b16 v[{b+2}:{b+3}], v{vTP[s//2]} offset:{off+512}", ("r", s))
            if isA and s < 2:
                b = WF[s % 2][3]
                a.lds(f"ds_read_b64_tr_b16 v[{b}:{b+1}], v{vTS} offset:{40960 + 1024*s}", ("r", s))
                a.lds(f"ds_read_b64_tr_b16 v[{b+2}:{b+3}], v{vTS} offset:{40960 + 1024*s + 256}", ("r", s))
        rdx(0); rdw(0)
        I(f"s_cmp_lg_u32 s{sIT}, {TRIT}")
        I(f"s_cbranch_scc1 K1{ty}_NOX")
        I(f"s_lshl_b32 s{sT1}, s2, 3")
        I(f"s_add_u32 s{sT1}, s{sT1}, s{sW}")
        I(f"s_lshl_b32 s{sT1}, s{sT1}, 10")
        I(f"buffer_load_dwordx4 v[{GX}:{GX+3}], v{vST}, s[{SX}:{SX+3}], s{sT1} offen")
        I(f"buffer_load_dwordx4 v[{GW}:{GW+3}], v{vST}, s[{SG}:{SG+3}], 0 offen")
        I(f"v_and_b32 v{t0}, 31, v{vL}")
        I(f"v_lshlrev_b32 v{t0}, 1, v{t0}")
        I(f"s_lshl_b32 s{sT1}, s{sHF}, 6")
        fts = [p for p in range(3) if pk_[p] == "F"]
        for n, p in enumerate(fts):
            I(f"s_add_u32 s7, s{sPCOL[p]}, s{sT1}")
            I(f"buffer_load_ushort v{BIAS+2*n}, v{t0}, s[{SB1}:{SB1+3}], s7 offen")
        if isA:
            I(f"s_lshl_b32 s{sT1}, s{sHF}, 5")
            I(f"v_xor_b32 v{t1}, s{sT1}, v{t0}")
            I(f"buffer_load_ushort v{BIAS+2}, v{t1}, s[{SB1}:{SB1+3}], s{sSCOL} offen")
        I(f"s_cmp_ge_u32 s{sTR}, 144")
        I(f"s_cbranch_scc1 K1{ty}_NOX")
        I(f"s_lshl_b32 s{sT1}, s{sTR}, 14")
        I(f"s_lshl_b32 s{sT2}, s{sW}, 7")
        I(f"s_add_u32 s{sT1}, s{sT1}, s{sT2}")
        I(f"s_add_u32 s{sT2}, s{sT1}, 8192")
        I(f"s_cmp_ge_u32 s{sTR}, 32")
        I(f"s_cbranch_scc1 K1{ty}_TW2")
        I(f"s_mov_b32 m0, s98")
        I("s_nop 0")
        I(f"buffer_load_dwordx4 v{vTD}, s[{SWO}:{SWO+3}], s{sT1} offen lds")
        I(f"s_add_u32 m0, s98, 1024")
        I("s_nop 0")
        I(f"buffer_load_dwordx4 v{vTD}, s[{SWO}:{SWO+3}], s{sT2} offen lds")
        I(f"s_branch K1{ty}_NOX")
        a.label(f"K1{ty}_TW2")
        I(f"s_sub_u32 s{sT1}, s{sT1}, {32*16384}")
        I(f"s_mov_b32 m0, s98")
        I(f"s_sub_u32 s{sT2}, s{sT2}, {32*16384}")
        I(f"buffer_load_dwordx4 v{vTD}, s[{SW2}:{SW2+3}], s{sT1} offen lds")
        I(f"s_add_u32 m0, s98, 1024")
        I("s_nop 0")
        I(f"buffer_load_dwordx4 v{vTD}, s[{SW2}:{SW2+3}], s{sT2} offen lds")
        a.label(f"K1{ty}_NOX")
        def mm(s):
            np_ = 4 if (isA and s < 2) else 3
            for p in range(np_):
                kind = pk_[p] if p < 3 else "F"
                acc, xf, wf = ACC[p], XF[s % 2], WF[s % 2][p]
                if kind == "V":
                    I(f"v_mfma_f32_32x32x16_bf16 v[{acc}:{acc+15}], v[{xf}:{xf+3}], v[{wf}:{wf+3}], v[{acc}:{acc+15}]")
                else:
                    I(f"v_mfma_f32_32x32x16_bf16 v[{acc}:{acc+15}], v[{wf}:{wf+3}], v[{xf}:{xf+3}], v[{acc}:{acc+15}]")
        mm(3)
        for s in range(3):
            rdx(s + 1); rdw(s + 1)
            if s == 2:
                I(f"s_add_u32 s{sRS}, s{sRS}, 1")
                I(f"s_mov_b32 s{sT0}, {STG}")
                I(f"s_cmp_eq_u32 s{sRS}, 3")
                I(f"s_cselect_b32 s{sT0}, {(-2*STG) & 0xffffffff}, s{sT0}")
                I(f"s_cselect_b32 s{sRS}, 0, s{sRS}")
                for r in vXR + vTP + ([vTS] if isA else []): I(f"v_add_u32 v{r}, s{sT0}, v{r}")
            a.wait(lg=("r", s))
            mm(s)
        a.wait(lg=("r", 3))
        I(f"s_add_u32 s{sIT}, s{sIT}, 1")
        I(f"s_cmp_lt_u32 s{sIT}, 8")
        I(f"s_cbranch_scc1 K1{ty}_LOOP")
        mm(3)
        stamp(a, 7)
        I("s_waitcnt vmcnt(0)")
        for ct in range(2):
            b = 28 + 4*ct
            I(f"ds_read_b64_tr_b16 v[{b}:{b+1}], v{vTT[ct]}")
            I(f"ds_read_b64_tr_b16 v[{b+2}:{b+3}], v{vTT[ct]} offset:1024")
        for n, p in enumerate(fts):
            acc = ACC[p]
            I(f"v_mfma_f32_32x32x16_bf16 v[{acc}:{acc+15}], v[{BIAS+2*n}:{BIAS+2*n+3}], v[{BONE}:{BONE+3}], v[{acc}:{acc+15}]")
        I(f"v_mov_b32 v{vG0}, 0")
        I(f"v_mov_b32 v{vG1}, 0")
        for k in range(4): I(f"v_dot2_f32_bf16 v{vG0+k%2}, v{GX+k}, v{GW+k}, v{vG0+k%2}")
        I(f"v_add_u32 v{t0}, s98, v{vST}")
        I("s_waitcnt lgkmcnt(0)")
        if isA:
            I(f"ds_write_b128 v{t0}, v[{ACC[3]+8}:{ACC[3]+11}]")
            I(f"ds_write_b128 v{t0}, v[{ACC[3]+12}:{ACC[3]+15}] offset:1024")
            I(f"s_xor_b32 s{sT0}, s{sW}, 4")
            I(f"s_lshl_b32 s{sT0}, s{sT0}, 11")
            I(f"s_add_u32 s{sT0}, s{sT0}, {TRB}")
            I(f"v_add_u32 v{t1}, s{sT0}, v{vST}")
            acc = ACC[3]
            I(f"v_mfma_f32_32x32x16_bf16 v[{acc}:{acc+15}], v[{BIAS+2}:{BIAS+5}], v[{BONE}:{BONE+3}], v[{acc}:{acc+15}]")
        else:
            I("s_nop 1")
        I(f"v_add_f32 v{vG0}, v{vG0}, v{vG1}")
        I(f"s_cmp_ge_u32 s{sTR}, 144")
        I(f"s_cbranch_scc1 K1{ty}_NOT")
        I(f"s_mul_i32 s{sT2}, s{sW}, 288")
        I(f"s_add_u32 s{sT2}, s{sT2}, s{sTR}")
        I(f"s_lshl_b32 s{sT2}, s{sT2}, 10")
        for ct in range(2):
            b = 28 + 4*ct
            I(f"s_add_u32 s7, s{sT2}, {WF_OFF + ct*144*1024}")
            I(f"buffer_store_dwordx4 v[{b}:{b+3}], v{vST}, s[{SWS}:{SWS+3}], s7 offen{WTF}")
        a.label(f"K1{ty}_NOT")
        for d in ("quad_perm:[1,0,3,2]", "quad_perm:[2,3,0,1]", "row_half_mirror", "row_mirror"):
            I("s_nop 1")
            I(f"v_add_f32_dpp v{vG0}, v{vG0}, v{vG0} {d} row_mask:0xf bank_mask:0xf")
        if isA:
            I("s_waitcnt lgkmcnt(0)")
            I("s_barrier")
            I(f"ds_read_b128 v[36:39], v{t1}")
            I(f"ds_read_b128 v[40:43], v{t1} offset:1024")
        else:
            I("s_nop 0")
        for k in range(4): I(f"v_readlane_b32 s{76+k}, v{vG0}, {16*k}")
        npk = [0]
        def qkv_ep(p):
            kind = pk_[p]
            acc = ACC[p]
            pk = PK + 8*(npk[0] % 2); npk[0] += 1
            if kind == "Q":
                for e in range(16): I(f"v_mul_f32 v{acc+e}, s{sQS}, v{acc+e}")
            for e in range(8): I(f"v_cvt_pk_bf16_f32 v{pk+e}, v{acc+2*e}, v{acc+2*e+1}")
            I(f"s_lshl_b32 s7, s{sC}, 1")
            I(f"s_add_u32 s7, s7, s{sHF}")
            if kind == "Q":
                I(f"s_lshl_b32 s7, s7, 17")
                I(f"s_lshl_b32 s{sT0}, s{sRT}, 10")
                I(f"s_add_u32 s7, s7, s{sT0}")
                if QF_OFF: I(f"s_add_u32 s7, s7, {QF_OFF}")
                I(f"s_add_u32 s{sT0}, s7, 65536")
                I(f"buffer_store_dwordx4 v[{pk}:{pk+3}], v{vST}, s[{SWS}:{SWS+3}], s7 offen{WTF}")
                I(f"buffer_store_dwordx4 v[{pk+4}:{pk+7}], v{vST}, s[{SWS}:{SWS+3}], s{sT0} offen{WTF}")
            else:
                I(f"s_lshl_b32 s7, s7, 18")
                I(f"s_lshl_b32 s{sT0}, s{sRT}, 11")
                I(f"s_add_u32 s7, s7, s{sT0}")
                I(f"s_add_u32 s7, s7, {KV_OFF}")
                if kind == "K":
                    I(f"s_add_u32 s{sT0}, s7, 131072")
                    I(f"buffer_store_dwordx4 v[{pk}:{pk+3}], v{vST}, s[{SWS}:{SWS+3}], s7 offen{WTF}")
                    I(f"buffer_store_dwordx4 v[{pk+4}:{pk+7}], v{vST}, s[{SWS}:{SWS+3}], s{sT0} offen{WTF}")
                else:
                    I(f"buffer_store_dwordx4 v[{pk}:{pk+3}], v{vSV}, s[{SWS}:{SWS+3}], s7 offen{WTF}")
                    I(f"buffer_store_dwordx4 v[{pk+4}:{pk+7}], v{vSV}, s[{SWS}:{SWS+3}], s7 offen offset:512{WTF}")
        for p in range(3):
            if pk_[p] != "F": qkv_ep(p)
        I(f"v_mov_b32 v{vG0}, s76")
        I(f"v_add_f32 v{vG0}, s77, v{vG0}")
        I(f"v_add_f32 v{vG0}, s78, v{vG0}")
        I(f"v_add_f32 v{vG0}, s79, v{vG0}")
        I(f"v_mul_f32 v{vG0}, s{sL2E}, v{vG0}")
        I(f"v_exp_f32 v{vG0}, -v{vG0}")
        I(f"s_lshl_b32 s{sT1}, s2, 3")
        I(f"v_add_f32 v{vG0}, 1.0, v{vG0}")
        I(f"v_rcp_f32 v{vG0}, v{vG0}")
        I(f"s_add_u32 s{sT1}, s{sT1}, s{sW}")
        I(f"s_lshl_b32 s{sT1}, s{sT1}, 2")
        I(f"s_add_u32 s{sT1}, s{sT1}, {G_OFF}")
        I(f"v_mov_b32 v{vG1}, 0")
        I(f"s_mov_b64 exec, 1")
        I(f"buffer_store_dword v{vG0}, v{vG1}, s[{SWS}:{SWS+3}], s{sT1} offen")
        I(f"s_mov_b64 exec, -1")
        stamp(a, 8)
        I(f"s_mul_i32 s{sT2}, s{sRT}, {144*1024}")
        I(f"s_add_u32 s{sT2}, s{sT2}, {AF_OFF + 32*1024}")
        tb = [ACC[0], ACC[0] + 8, 52]
        def mish8(acc, pk):
            if PKMISH:
                vp = lambda r: f"v[{r}:{r+1}]"
                prs = range(4)
                T = lambda e, kk: tb[kk] + 2*e
                for e in prs: I(f"v_pk_mul_f32 {vp(T(e,0))}, {vp(acc+2*e)}, s[{sL2E}:{sL2E+1}]")
                for e in range(8): I(f"v_min_f32 v{tb[0]+e}, s{s30}, v{tb[0]+e}")
                for e in range(8): I(f"v_exp_f32 v{tb[0]+e}, v{tb[0]+e}")
                for e in prs: I(f"v_pk_add_f32 {vp(T(e,1))}, {vp(T(e,0))}, s[{sTWO}:{sTWO+1}]")
                for e in prs: I(f"v_pk_mul_f32 {vp(T(e,1))}, {vp(T(e,0))}, {vp(T(e,1))}")
                for e in prs: I(f"v_pk_add_f32 {vp(T(e,2))}, {vp(T(e,1))}, s[{sTWO}:{sTWO+1}]")
                for e in range(8): I(f"v_rcp_f32 v{tb[2]+e}, v{tb[2]+e}")
                for e in prs: I(f"v_pk_mul_f32 {vp(T(e,1))}, {vp(T(e,1))}, {vp(T(e,2))}")
                for e in prs: I(f"v_pk_mul_f32 {vp(T(e,0))}, {vp(acc+2*e)}, {vp(T(e,1))}")
            else:
                els = range(8)
                T = lambda e, kk: tb[kk] + e
                for e in els: I(f"v_mul_f32 v{T(e,0)}, s{sL2E}, v{acc+e}")
                for e in els: I(f"v_min_f32 v{T(e,0)}, s{s30}, v{T(e,0)}")
                for e in els: I(f"v_exp_f32 v{T(e,0)}, v{T(e,0)}")
                for e in els: I(f"v_add_f32 v{T(e,1)}, 2.0, v{T(e,0)}")
                for e in els: I(f"v_mul_f32 v{T(e,1)}, v{T(e,0)}, v{T(e,1)}")
                for e in els: I(f"v_add_f32 v{T(e,2)}, 2.0, v{T(e,1)}")
                for e in els: I(f"v_rcp_f32 v{T(e,2)}, v{T(e,2)}")
                for e in els: I(f"v_mul_f32 v{T(e,1)}, v{T(e,1)}, v{T(e,2)}")
                for e in els: I(f"v_mul_f32 v{T(e,0)}, v{acc+e}, v{T(e,1)}")
            for e in range(4): I(f"v_cvt_pk_bf16_f32 v{pk+e}, v{tb[0]+2*e}, v{tb[0]+2*e+1}")
        I(f"s_lshl_b32 s{sT1}, s{sHF}, 11")
        I(f"s_add_u32 s{sT1}, s{sT1}, s{sT2}")
        for p in fts:
            pk = PK + 8*(npk[0] % 2); npk[0] += 1
            I(f"s_lshl_b32 s7, s{sPCOL[p]}, 5")
            I(f"s_add_u32 s7, s7, s{sT1}")
            for hh in range(2):
                mish8(ACC[p] + 8*hh, pk + 4*hh)
                I(f"buffer_store_dwordx4 v[{pk+4*hh}:{pk+4*hh+3}], v{vST}, s[{SWS}:{SWS+3}], s7 offen offset:{1024*hh}{WTF}")
        if isA:
            pk = PK + 8*(npk[0] % 2); npk[0] += 1
            I("s_waitcnt lgkmcnt(0)")
            for e in range(8): I(f"v_add_f32 v{ACC[3]+e}, v{ACC[3]+e}, v{36+e}")
            I(f"s_lshl_b32 s7, s{sSCOL}, 5")
            I(f"s_add_u32 s7, s7, s{sT2}")
            I(f"s_lshl_b32 s{sT1}, s{sHF}, 10")
            I(f"s_add_u32 s7, s7, s{sT1}")
            mish8(ACC[3], pk)
            I(f"buffer_store_dwordx4 v[{pk}:{pk+3}], v{vST}, s[{SWS}:{SWS+3}], s7 offen{WTF}")
        stamp(a, 9)
        if DBG: I("s_waitcnt vmcnt(0)")
        stamp(a, 10)
        stamp_flush(a, 11, SWS, sW, 0)
        I("s_endpgm")

    path("A")
    a.label("K1_B")
    path("B")
    a.label("K1_END")
    I("s_endpgm")
    return a.text(), kdesc("k1_kernel", NV, 100, NV), 163840
```

```python
from common import *
PKMISH = opt("--pkmish", 1)
WT = opt("--wt", "sc0_sc1")
WTF = " " + WT.replace("_", " ") if WT and WT != "none" else ""
TRIT = opt("--trit", 2)
ROTX = opt("--rotx", 7)
ROTR = opt("--rotr", 0)
LASTLAB = opt("--last", "K3_END")
STG = 45056
TRB = 3 * STG

def gen_k1():
    a = Asm()
    I = a.i
    a.raw(khead("k1_kernel"))
    I("s_cmp_ge_u32 s2, 256")
    I("s_cbranch_scc1 K1_END")
    SX, SWQ, SWO, SW1, SB1, SW2, SG, SWS = 8, 12, 16, 20, 24, 28, 32, 36
    for s, off in [(SX, 0), (SWQ, 8), (SW1, 32), (SWO, 16), (SB1, 40), (SW2, 48), (SG, 56), (SWS, 80)]:
        I(f"s_load_dwordx2 s[{s}:{s+1}], s[0:1], {off}")
    srd(a, SX, 2048*512*2); srd(a, SWQ, 512*1536*2); srd(a, SW1, 512*1792*2)
    sW, sC, sRB, sRT, sT0, sT1, sT2, sHF, sIT = 40, 41, 42, 43, 44, 45, 46, 47, 48
    sKX, sKP, sKS = 49, [50, 51, 52], 53
    sMX, sMP, sMS = 54, 55, 56
    sDS, sRS = 57, 58
    sPCOL = [59, 60, 61]; sSCOL = 62
    sLO = 80
    sL2E, sTWO, sQS, s30 = 84, 86, 5, 6
    sTR = 94
    vL = 1
    t0, t1, t2, t3 = 2, 3, 4, 5
    vXE, vXO, vWQ, vWF, vWS, vST, vSV, vTS = 6, 7, 8, 9, 10, 11, 12, 13
    vXR = [14, 15, 16, 17]
    vTP = [18, 19]
    vTT = [20, 21]
    vTD = 22
    vG0, vG1 = 23, 24
    XF = [28, 32]
    WF = [[36, 40, 44, 48], [52, 56, 60, 64]]
    ACC = [68, 84, 100, 116]
    PK = 132
    BIAS, BONE, GX, GW = 148, 154, 158, 162
    NV = 168
    I(f"v_and_b32 v{vL}, 63, v0")
    I(f"v_lshrrev_b32 v{t0}, 6, v0")
    I(f"s_and_b32 s{sT0}, s2, 1")
    I(f"v_readfirstlane_b32 s{sW}, v{t0}")
    I(f"s_lshl_b32 s{sT0}, s{sT0}, 3")
    I(f"s_bfe_u32 s{sT1}, s2, 0x30003")
    I(f"s_add_u32 s{sRB}, s{sT0}, s{sT1}")
    I(f"s_and_b32 s{sC}, s2, 6")
    I(f"s_bfe_u32 s{sT0}, s2, 0x10006")
    I(f"s_add_u32 s{sC}, s{sC}, s{sT0}")
    I(f"s_lshr_b32 s{sHF}, s{sW}, 2")
    I(f"s_and_b32 s{sT0}, s{sW}, 3")
    I(f"s_lshl_b32 s{sRT}, s{sRB}, 2")
    I(f"s_add_u32 s{sRT}, s{sRT}, s{sT0}")
    I(f"v_lshrrev_b32 v{t0}, 3, v{vL}")
    I(f"v_and_b32 v{t1}, 7, v{vL}")
    I(f"v_lshrrev_b32 v{t2}, 1, v{t0}")
    I(f"v_xor_b32 v{t3}, v{t1}, v{t2}")
    I(f"v_lshlrev_b32 v{vXE}, 10, v{t0}")
    I(f"v_lshl_add_u32 v{vXE}, v{t3}, 4, v{vXE}")
    I(f"v_xor_b32 v{vXO}, 64, v{vXE}")
    I(f"v_and_b32 v{t2}, 1, v{t2}")
    I(f"v_lshlrev_b32 v{t2}, 2, v{t2}")
    I(f"v_xor_b32 v{t3}, v{t1}, v{t2}")
    I(f"v_lshlrev_b32 v{t3}, 4, v{t3}")
    I(f"v_mul_u32_u24 v{vWQ}, 3072, v{t0}")
    I(f"v_add_u32 v{vWQ}, v{vWQ}, v{t3}")
    I(f"v_mul_u32_u24 v{vWF}, 3584, v{t0}")
    I(f"v_add_u32 v{vWF}, v{vWF}, v{t3}")
    I(f"v_lshl_add_u32 v{vTD}, v{t0}, 10, v{t3}")
    I(f"s_cmp_ge_u32 s2, 128")
    I("s_cbranch_scc1 K1_B")

    def path(ty):
        isA = ty == "A"
        a.vm = []; a.lg = []
        if isA:
            pk_ = ["Q", "K", "F"]
            I(f"s_lshl_b32 s{sPCOL[0]}, s{sC}, 7")
            I(f"s_add_u32 s{sPCOL[1]}, s{sPCOL[0]}, 1024")
            I(f"s_add_u32 s{sPCOL[2]}, s{sPCOL[0]}, {16*128}")
            I(f"s_lshl_b32 s{sSCOL}, s{sC}, 6")
            I(f"s_add_u32 s{sSCOL}, s{sSCOL}, {24*128}")
            I(f"v_lshrrev_b32 v{t0}, 2, v{vL}")
            I(f"v_mul_u32_u24 v{vWS}, 3584, v{t0}")
            I(f"v_and_b32 v{t0}, 3, v{vL}")
            I(f"v_lshl_add_u32 v{vWS}, v{t0}, 4, v{vWS}")
        else:
            pk_ = ["V", "F", "F"]
            I(f"s_lshl_b32 s{sPCOL[0]}, s{sC}, 7")
            I(f"s_add_u32 s{sPCOL[0]}, s{sPCOL[0]}, 2048")
            I(f"s_lshl_b32 s{sPCOL[1]}, s{sC}, 8")
            I(f"s_add_u32 s{sPCOL[2]}, s{sPCOL[1]}, 128")
        I(f"s_cmp_ge_u32 s{sW}, 8")
        I(f"s_cbranch_scc0 K1{ty}_COMP")
        ND = 11 if isA else 10
        sJ, sCH, sSTG, sXB = 63, 57, 58, 53
        sPB = [50, 51, 52]; sSB = 49
        sKXl, sKQl, sKFl, sSXl, sSPl, sSSl = 72, 73, 74, 54, 55, 56
        I(f"s_sub_u32 s{sJ}, s{sW}, 8")
        I(f"s_and_b32 s{sCH}, s2, {ROTX}")
        if ROTR:
            I(f"s_bfe_u32 s{sT0}, s2, 0x30003")
            I(f"s_and_b32 s{sT0}, s{sT0}, {ROTR}")
            I(f"s_add_u32 s{sCH}, s{sCH}, s{sT0}")
            I(f"s_and_b32 s{sCH}, s{sCH}, 7")
        I(f"s_mov_b32 s{sSTG}, 0")
        I(f"s_lshl_b32 s{sXB}, s{sRB}, 2")
        I(f"s_add_u32 s{sXB}, s{sXB}, s{sJ}")
        I(f"s_lshl_b32 s{sXB}, s{sXB}, 15")
        I(f"s_mul_i32 s{sT1}, s{sJ}, {16*3072}")
        I(f"s_mul_i32 s{sT2}, s{sJ}, {16*3584}")
        for p in range(3):
            I(f"s_add_u32 s{sPB[p]}, s{sPCOL[p]}, s{sT2 if pk_[p] == 'F' else sT1}")
        if isA: I(f"s_add_u32 s{sSB}, s{sSCOL}, s{sT2}")
        I(f"s_mov_b32 s{sIT}, 0")
        I("s_waitcnt lgkmcnt(0)")
        a.label(f"K1{ty}_LD")
        I(f"s_lshl_b32 s{sKXl}, s{sCH}, 7")
        I(f"s_add_u32 s{sKXl}, s{sKXl}, s{sXB}")
        I(f"s_mul_i32 s{sKQl}, s{sCH}, {64*3072}")
        I(f"s_mul_i32 s{sKFl}, s{sCH}, {64*3584}")
        I(f"s_lshl_b32 s{sT0}, s{sJ}, 10")
        I(f"s_add_u32 s{sSSl}, s{sSTG}, s{sT0}")
        I(f"s_add_u32 s{sSPl}, s{sSSl}, s{sT0}")
        I(f"s_lshl_b32 s{sT0}, s{sT0}, 1")
        I(f"s_add_u32 s{sSXl}, s{sSPl}, s{sT0}")
        def dma(ms, mc, k, pb, oc, vo, S_):
            I(f"s_add_u32 m0, s{ms}, {mc}")
            if pb is None:
                I(f"s_add_u32 s7, s{k}, {oc}")
            else:
                I(f"s_add_u32 s7, s{k}, s{pb}")
                if oc: I(f"s_add_u32 s7, s7, {oc}")
            I(f"buffer_load_dwordx4 v{vo}, s[{S_}:{S_+3}], s7 offen lds")
        for i in range(4): dma(sSXl, 1024*i, sKXl, None, 8192*i, vXO if i % 2 else vXE, SX)
        for p in range(3):
            F = pk_[p] == "F"
            for i in range(2):
                dma(sSPl, 16384 + 8192*p + 1024*i, sKFl if F else sKQl, sPB[p], 8*i*(3584 if F else 3072), vWF if F else vWQ, SW1 if F else SWQ)
        if isA: dma(sSSl, 40960, sKFl, sSB, 0, vWS, SW1)
        I(f"s_add_u32 s{sCH}, s{sCH}, 1")
        I(f"s_and_b32 s{sCH}, s{sCH}, 7")
        I(f"s_add_u32 s{sSTG}, s{sSTG}, {STG}")
        I(f"s_cmp_eq_u32 s{sSTG}, {3*STG}")
        I(f"s_cselect_b32 s{sSTG}, 0, s{sSTG}")
        I(f"s_add_u32 s{sIT}, s{sIT}, 1")
        I(f"s_cmp_eq_u32 s{sIT}, 1")
        I(f"s_cbranch_scc1 K1{ty}_LD")
        I(f"s_waitcnt vmcnt({ND})")
        I("s_barrier")
        I(f"s_cmp_lt_u32 s{sIT}, 8")
        I(f"s_cbranch_scc1 K1{ty}_LD")
        srd(a, SWS, WS_BYTES)
        I(f"s_lshl_b32 s{sT0}, s2, 2")
        I(f"s_add_u32 s{sT0}, s{sT0}, s{sJ}")
        I(f"s_lshl_b32 s{sT0}, s{sT0}, 11")
        I(f"s_add_u32 s{sT0}, s{sT0}, {OF_OFF}")
        I(f"v_lshlrev_b32 v{vST}, 4, v{vL}")
        for r in range(4): I(f"v_mov_b32 v{28+r}, -1")
        I(f"s_waitcnt vmcnt(0)")
        I("s_barrier")
        I(f"buffer_store_dwordx4 v[28:31], v{vST}, s[{SWS}:{SWS+3}], s{sT0} offen{WTF}")
        I(f"buffer_store_dwordx4 v[28:31], v{vST}, s[{SWS}:{SWS+3}], s{sT0} offen offset:1024{WTF}")
        I("s_endpgm")
        a.label(f"K1{ty}_COMP")
        I("s_waitcnt lgkmcnt(0)")
        stamp(a, 0)
        code_prefetch(a, LASTLAB, 8, 1, "k1" + ty, vt=132)
        srd(a, SWO, 512*512*2); srd(a, SB1, 1792*2); srd(a, SW2, 1792*512*2); srd(a, SG, 512*2); srd(a, SWS, WS_BYTES)
        I(f"v_and_b32 v{t0}, 31, v{vL}")
        I(f"v_lshrrev_b32 v{t1}, 5, v{vL}")
        I(f"v_bfe_u32 v{t2}, v{t0}, 1, 3")
        I(f"v_xor_b32 v{t2}, v{t2}, v{t1}")
        I(f"v_lshlrev_b32 v{t3}, 7, v{t0}")
        I(f"s_and_b32 s{sT0}, s{sW}, 3")
        I(f"s_lshl_b32 s{sT0}, s{sT0}, 12")
        I(f"v_add_u32 v{t3}, s{sT0}, v{t3}")
        I(f"v_lshl_add_u32 v{t3}, v{t2}, 4, v{t3}")
        I(f"s_lshl_b32 s{sT1}, s{sHF}, 6")
        I(f"v_xor_b32 v{vXR[0]}, s{sT1}, v{t3}")
        for sp in range(1, 4): I(f"v_xor_b32 v{vXR[sp]}, {32*sp}, v{vXR[0]}")
        I(f"v_bfe_u32 v{t0}, v{vL}, 2, 2")
        I(f"v_and_b32 v{t2}, 3, v{vL}")
        I(f"v_bfe_u32 v{t3}, v{vL}, 4, 1")
        p0 = vTP[0]
        I(f"v_lshlrev_b32 v{p0}, 10, v{t1}")
        I(f"v_lshl_add_u32 v{p0}, v{t0}, 7, v{p0}")
        I(f"v_lshl_add_u32 v{p0}, v{t3}, 5, v{p0}")
        I(f"v_lshl_add_u32 v{p0}, v{t2}, 3, v{p0}")
        I(f"v_lshrrev_b32 v25, 1, v{t0}")
        I(f"v_lshl_add_u32 v{p0}, v25, 6, v{p0}")
        I(f"v_xor_b32 v{p0}, s{sT1}, v{p0}")
        I(f"v_add_u32 v{p0}, 16384, v{p0}")
        I(f"s_lshl_b32 s{sT2}, s{sHF}, 12")
        I(f"v_subrev_u32 v{vTP[1]}, s{sT2}, v{p0}")
        I(f"v_add_u32 v{p0}, s{sT2}, v{p0}")
        if isA:
            I(f"v_lshlrev_b32 v{vTS}, 9, v{t1}")
            I(f"v_lshl_add_u32 v{vTS}, v{t0}, 6, v{vTS}")
            I(f"v_lshl_add_u32 v{vTS}, v{t3}, 5, v{vTS}")
            I(f"v_lshl_add_u32 v{vTS}, v{t2}, 3, v{vTS}")
            I(f"s_lshl_b32 s{sT2}, s{sHF}, 5")
            I(f"v_xor_b32 v{vTS}, s{sT2}, v{vTS}")
            I(f"s_lshl_b32 s{sT2}, s{sHF}, 11")
            I(f"v_add_u32 v{vTS}, s{sT2}, v{vTS}")
        else:
            I(f"v_and_b32 v26, 15, v{vL}")
            I(f"v_lshlrev_b32 v{vSV}, 4, v26")
            I(f"v_lshl_add_u32 v{vSV}, v{t1}, 8, v{vSV}")
            I(f"v_lshl_add_u32 v{vSV}, v{t3}, 17, v{vSV}")
            I(f"v_add_u32 v{vSV}, 1024, v{vSV}")
        T0 = vTT[0]
        I(f"s_lshl_b32 s98, s{sW}, 11")
        I(f"s_add_u32 s98, s98, {TRB}")
        I(f"v_lshlrev_b32 v{T0}, 9, v{t1}")
        I(f"v_lshl_add_u32 v{T0}, v{t0}, 7, v{T0}")
        I(f"v_lshl_add_u32 v{T0}, v25, 6, v{T0}")
        I(f"v_lshl_add_u32 v{T0}, v{t3}, 4, v{T0}")
        I(f"v_and_b32 v25, 1, v{t2}")
        I(f"v_lshl_add_u32 v{T0}, v25, 5, v{T0}")
        I(f"v_lshrrev_b32 v25, 1, v{t2}")
        I(f"v_lshl_add_u32 v{T0}, v25, 3, v{T0}")
        I(f"v_add_u32 v{T0}, s98, v{T0}")
        I(f"v_xor_b32 v{vTT[1]}, 64, v{T0}")
        I(f"s_sub_u32 s{sTR}, 255, s2")
        I(f"v_lshlrev_b32 v{vST}, 4, v{vL}")
        I(f"v_cmp_gt_u32 vcc, 32, v{vL}")
        I(f"v_mov_b32 v{BONE+1}, 0")
        I(f"v_mov_b32 v{BONE+2}, 0")
        I(f"v_mov_b32 v{BONE+3}, 0")
        I(f"v_mov_b32 v{t0}, 0x3f80")
        I(f"v_cndmask_b32 v{BONE}, 0, v{t0}, vcc")
        I(f"s_mov_b32 s{sL2E}, {fhex(LOG2E)}")
        I(f"s_mov_b32 s{sL2E+1}, {fhex(LOG2E)}")
        I(f"s_mov_b32 s{sTWO}, 2.0")
        I(f"s_mov_b32 s{sTWO+1}, 2.0")
        I(f"s_mov_b32 s{sQS}, {fhex(QSCALE)}")
        I(f"s_mov_b32 s{s30}, {fhex(30.0)}")
        NA = 4 if isA else 3
        for k in range(16*NA): I(f"v_mov_b32 v{ACC[0]+k}, 0")
        for r in range(6): I(f"v_mov_b32 v{BIAS+r}, 0")
        for r in list(range(XF[1], XF[1]+4)) + list(range(WF[1][0], WF[1][0]+12)): I(f"v_mov_b32 v{r}, 0")
        I(f"s_mov_b32 s{sIT}, 0")
        I(f"s_mov_b32 s{sRS}, 0")
        a.label(f"K1{ty}_LOOP")
        I("s_barrier")
        if DBG:
            I("s_memtime s[90:91]")
            I("s_waitcnt lgkmcnt(0)")
            for n, it in enumerate((0, 1, 2, 4, 6, 7)):
                I(f"s_cmp_eq_u32 s{sIT}, {it}"); I(f"s_cselect_b32 s{65+n}, s90, s{65+n}")
        a.lg = []
        def rdx(s): a.lds(f"ds_read_b128 v[{XF[s%2]}:{XF[s%2]+3}], v{vXR[s]}", ("r", s))
        def rdw(s):
            for p in range(3):
                b = WF[s % 2][p]
                off = 8192*p + 2048*s
                a.lds(f"ds_read_b64_tr_b16 v[{b}:{b+1}], v{vTP[s//2]} offset:{off}", ("r", s))
                a.lds(f"ds_read_b64_tr_b16 v[{b+2}:{b+3}], v{vTP[s//2]} offset:{off+512}", ("r", s))
            if isA and s < 2:
                b = WF[s % 2][3]
                a.lds(f"ds_read_b64_tr_b16 v[{b}:{b+1}], v{vTS} offset:{40960 + 1024*s}", ("r", s))
                a.lds(f"ds_read_b64_tr_b16 v[{b+2}:{b+3}], v{vTS} offset:{40960 + 1024*s + 256}", ("r", s))
        rdx(0); rdw(0)
        I(f"s_cmp_lg_u32 s{sIT}, {TRIT}")
        I(f"s_cbranch_scc1 K1{ty}_NOX")
        I(f"s_lshl_b32 s{sT1}, s2, 3")
        I(f"s_add_u32 s{sT1}, s{sT1}, s{sW}")
        I(f"s_lshl_b32 s{sT1}, s{sT1}, 10")
        I(f"buffer_load_dwordx4 v[{GX}:{GX+3}], v{vST}, s[{SX}:{SX+3}], s{sT1} offen")
        I(f"buffer_load_dwordx4 v[{GW}:{GW+3}], v{vST}, s[{SG}:{SG+3}], 0 offen")
        I(f"v_and_b32 v{t0}, 31, v{vL}")
        I(f"v_lshlrev_b32 v{t0}, 1, v{t0}")
        I(f"s_lshl_b32 s{sT1}, s{sHF}, 6")
        fts = [p for p in range(3) if pk_[p] == "F"]
        for n, p in enumerate(fts):
            I(f"s_add_u32 s7, s{sPCOL[p]}, s{sT1}")
            I(f"buffer_load_ushort v{BIAS+2*n}, v{t0}, s[{SB1}:{SB1+3}], s7 offen")
        if isA:
            I(f"s_lshl_b32 s{sT1}, s{sHF}, 5")
            I(f"v_xor_b32 v{t1}, s{sT1}, v{t0}")
            I(f"buffer_load_ushort v{BIAS+2}, v{t1}, s[{SB1}:{SB1+3}], s{sSCOL} offen")
        I(f"s_cmp_ge_u32 s{sTR}, 144")
        I(f"s_cbranch_scc1 K1{ty}_NOX")
        I(f"s_lshl_b32 s{sT1}, s{sTR}, 14")
        I(f"s_lshl_b32 s{sT2}, s{sW}, 7")
        I(f"s_add_u32 s{sT1}, s{sT1}, s{sT2}")
        I(f"s_add_u32 s{sT2}, s{sT1}, 8192")
        I(f"s_cmp_ge_u32 s{sTR}, 32")
        I(f"s_cbranch_scc1 K1{ty}_TW2")
        I(f"s_mov_b32 m0, s98")
        I("s_nop 0")
        I(f"buffer_load_dwordx4 v{vTD}, s[{SWO}:{SWO+3}], s{sT1} offen lds")
        I(f"s_add_u32 m0, s98, 1024")
        I("s_nop 0")
        I(f"buffer_load_dwordx4 v{vTD}, s[{SWO}:{SWO+3}], s{sT2} offen lds")
        I(f"s_branch K1{ty}_NOX")
        a.label(f"K1{ty}_TW2")
        I(f"s_sub_u32 s{sT1}, s{sT1}, {32*16384}")
        I(f"s_mov_b32 m0, s98")
        I(f"s_sub_u32 s{sT2}, s{sT2}, {32*16384}")
        I(f"buffer_load_dwordx4 v{vTD}, s[{SW2}:{SW2+3}], s{sT1} offen lds")
        I(f"s_add_u32 m0, s98, 1024")
        I("s_nop 0")
        I(f"buffer_load_dwordx4 v{vTD}, s[{SW2}:{SW2+3}], s{sT2} offen lds")
        a.label(f"K1{ty}_NOX")
        def mm(s):
            np_ = 4 if (isA and s < 2) else 3
            for p in range(np_):
                kind = pk_[p] if p < 3 else "F"
                acc, xf, wf = ACC[p], XF[s % 2], WF[s % 2][p]
                if kind == "V":
                    I(f"v_mfma_f32_32x32x16_bf16 v[{acc}:{acc+15}], v[{xf}:{xf+3}], v[{wf}:{wf+3}], v[{acc}:{acc+15}]")
                else:
                    I(f"v_mfma_f32_32x32x16_bf16 v[{acc}:{acc+15}], v[{wf}:{wf+3}], v[{xf}:{xf+3}], v[{acc}:{acc+15}]")
        mm(3)
        for s in range(3):
            rdx(s + 1); rdw(s + 1)
            if s == 2:
                I(f"s_add_u32 s{sRS}, s{sRS}, 1")
                I(f"s_mov_b32 s{sT0}, {STG}")
                I(f"s_cmp_eq_u32 s{sRS}, 3")
                I(f"s_cselect_b32 s{sT0}, {(-2*STG) & 0xffffffff}, s{sT0}")
                I(f"s_cselect_b32 s{sRS}, 0, s{sRS}")
                for r in vXR + vTP + ([vTS] if isA else []): I(f"v_add_u32 v{r}, s{sT0}, v{r}")
            a.wait(lg=("r", s))
            mm(s)
        a.wait(lg=("r", 3))
        I(f"s_add_u32 s{sIT}, s{sIT}, 1")
        I(f"s_cmp_lt_u32 s{sIT}, 8")
        I(f"s_cbranch_scc1 K1{ty}_LOOP")
        mm(3)
        stamp(a, 7)
        I("s_waitcnt vmcnt(0)")
        for ct in range(2):
            b = 28 + 4*ct
            I(f"ds_read_b64_tr_b16 v[{b}:{b+1}], v{vTT[ct]}")
            I(f"ds_read_b64_tr_b16 v[{b+2}:{b+3}], v{vTT[ct]} offset:1024")
        for n, p in enumerate(fts):
            acc = ACC[p]
            I(f"v_mfma_f32_32x32x16_bf16 v[{acc}:{acc+15}], v[{BIAS+2*n}:{BIAS+2*n+3}], v[{BONE}:{BONE+3}], v[{acc}:{acc+15}]")
        I(f"v_mov_b32 v{vG0}, 0")
        I(f"v_mov_b32 v{vG1}, 0")
        for k in range(4): I(f"v_dot2_f32_bf16 v{vG0+k%2}, v{GX+k}, v{GW+k}, v{vG0+k%2}")
        I(f"v_add_u32 v{t0}, s98, v{vST}")
        I("s_waitcnt lgkmcnt(0)")
        if isA:
            I(f"ds_write_b128 v{t0}, v[{ACC[3]+8}:{ACC[3]+11}]")
            I(f"ds_write_b128 v{t0}, v[{ACC[3]+12}:{ACC[3]+15}] offset:1024")
            I(f"s_xor_b32 s{sT0}, s{sW}, 4")
            I(f"s_lshl_b32 s{sT0}, s{sT0}, 11")
            I(f"s_add_u32 s{sT0}, s{sT0}, {TRB}")
            I(f"v_add_u32 v{t1}, s{sT0}, v{vST}")
            acc = ACC[3]
            I(f"v_mfma_f32_32x32x16_bf16 v[{acc}:{acc+15}], v[{BIAS+2}:{BIAS+5}], v[{BONE}:{BONE+3}], v[{acc}:{acc+15}]")
        else:
            I("s_nop 1")
        I(f"v_add_f32 v{vG0}, v{vG0}, v{vG1}")
        I(f"s_cmp_ge_u32 s{sTR}, 144")
        I(f"s_cbranch_scc1 K1{ty}_NOT")
        I(f"s_mul_i32 s{sT2}, s{sW}, 288")
        I(f"s_add_u32 s{sT2}, s{sT2}, s{sTR}")
        I(f"s_lshl_b32 s{sT2}, s{sT2}, 10")
        for ct in range(2):
            b = 28 + 4*ct
            I(f"s_add_u32 s7, s{sT2}, {WF_OFF + ct*144*1024}")
            I(f"buffer_store_dwordx4 v[{b}:{b+3}], v{vST}, s[{SWS}:{SWS+3}], s7 offen{WTF}")
        a.label(f"K1{ty}_NOT")
        for d in ("quad_perm:[1,0,3,2]", "quad_perm:[2,3,0,1]", "row_half_mirror", "row_mirror"):
            I("s_nop 1")
            I(f"v_add_f32_dpp v{vG0}, v{vG0}, v{vG0} {d} row_mask:0xf bank_mask:0xf")
        if isA:
            I("s_waitcnt lgkmcnt(0)")
            I("s_barrier")
            I(f"ds_read_b128 v[36:39], v{t1}")
            I(f"ds_read_b128 v[40:43], v{t1} offset:1024")
        else:
            I("s_nop 0")
        for k in range(4): I(f"v_readlane_b32 s{76+k}, v{vG0}, {16*k}")
        npk = [0]
        def qkv_ep(p):
            kind = pk_[p]
            acc = ACC[p]
            pk = PK + 8*(npk[0] % 2); npk[0] += 1
            if kind == "Q":
                for e in range(16): I(f"v_mul_f32 v{acc+e}, s{sQS}, v{acc+e}")
            for e in range(8): I(f"v_cvt_pk_bf16_f32 v{pk+e}, v{acc+2*e}, v{acc+2*e+1}")
            I(f"s_lshl_b32 s7, s{sC}, 1")
            I(f"s_add_u32 s7, s7, s{sHF}")
            if kind == "Q":
                I(f"s_lshl_b32 s7, s7, 17")
                I(f"s_lshl_b32 s{sT0}, s{sRT}, 10")
                I(f"s_add_u32 s7, s7, s{sT0}")
                if QF_OFF: I(f"s_add_u32 s7, s7, {QF_OFF}")
                I(f"s_add_u32 s{sT0}, s7, 65536")
                I(f"buffer_store_dwordx4 v[{pk}:{pk+3}], v{vST}, s[{SWS}:{SWS+3}], s7 offen{WTF}")
                I(f"buffer_store_dwordx4 v[{pk+4}:{pk+7}], v{vST}, s[{SWS}:{SWS+3}], s{sT0} offen{WTF}")
            else:
                I(f"s_lshl_b32 s7, s7, 18")
                I(f"s_lshl_b32 s{sT0}, s{sRT}, 11")
                I(f"s_add_u32 s7, s7, s{sT0}")
                I(f"s_add_u32 s7, s7, {KV_OFF}")
                if kind == "K":
                    I(f"s_add_u32 s{sT0}, s7, 131072")
                    I(f"buffer_store_dwordx4 v[{pk}:{pk+3}], v{vST}, s[{SWS}:{SWS+3}], s7 offen{WTF}")
                    I(f"buffer_store_dwordx4 v[{pk+4}:{pk+7}], v{vST}, s[{SWS}:{SWS+3}], s{sT0} offen{WTF}")
                else:
                    I(f"buffer_store_dwordx4 v[{pk}:{pk+3}], v{vSV}, s[{SWS}:{SWS+3}], s7 offen{WTF}")
                    I(f"buffer_store_dwordx4 v[{pk+4}:{pk+7}], v{vSV}, s[{SWS}:{SWS+3}], s7 offen offset:512{WTF}")
        for p in range(3):
            if pk_[p] != "F": qkv_ep(p)
        I(f"v_mov_b32 v{vG0}, s76")
        I(f"v_add_f32 v{vG0}, s77, v{vG0}")
        I(f"v_add_f32 v{vG0}, s78, v{vG0}")
        I(f"v_add_f32 v{vG0}, s79, v{vG0}")
        I(f"v_mul_f32 v{vG0}, s{sL2E}, v{vG0}")
        I(f"v_exp_f32 v{vG0}, -v{vG0}")
        I(f"s_lshl_b32 s{sT1}, s2, 3")
        I(f"v_add_f32 v{vG0}, 1.0, v{vG0}")
        I(f"v_rcp_f32 v{vG0}, v{vG0}")
        I(f"s_add_u32 s{sT1}, s{sT1}, s{sW}")
        I(f"s_lshl_b32 s{sT1}, s{sT1}, 2")
        I(f"s_add_u32 s{sT1}, s{sT1}, {G_OFF}")
        I(f"v_mov_b32 v{vG1}, 0")
        I(f"s_mov_b64 exec, 1")
        I(f"buffer_store_dword v{vG0}, v{vG1}, s[{SWS}:{SWS+3}], s{sT1} offen")
        I(f"s_mov_b64 exec, -1")
        stamp(a, 8)
        I(f"s_mul_i32 s{sT2}, s{sRT}, {144*1024}")
        I(f"s_add_u32 s{sT2}, s{sT2}, {AF_OFF + 32*1024}")
        tb = [ACC[0], ACC[0] + 8, 52]
        def mish8(acc, pk):
            if PKMISH:
                vp = lambda r: f"v[{r}:{r+1}]"
                prs = range(4)
                T = lambda e, kk: tb[kk] + 2*e
                for e in prs: I(f"v_pk_mul_f32 {vp(T(e,0))}, {vp(acc+2*e)}, s[{sL2E}:{sL2E+1}]")
                for e in range(8): I(f"v_min_f32 v{tb[0]+e}, s{s30}, v{tb[0]+e}")
                for e in range(8): I(f"v_exp_f32 v{tb[0]+e}, v{tb[0]+e}")
                for e in prs: I(f"v_pk_add_f32 {vp(T(e,1))}, {vp(T(e,0))}, s[{sTWO}:{sTWO+1}]")
                for e in prs: I(f"v_pk_mul_f32 {vp(T(e,1))}, {vp(T(e,0))}, {vp(T(e,1))}")
                for e in prs: I(f"v_pk_add_f32 {vp(T(e,2))}, {vp(T(e,1))}, s[{sTWO}:{sTWO+1}]")
                for e in range(8): I(f"v_rcp_f32 v{tb[2]+e}, v{tb[2]+e}")
                for e in prs: I(f"v_pk_mul_f32 {vp(T(e,1))}, {vp(T(e,1))}, {vp(T(e,2))}")
                for e in prs: I(f"v_pk_mul_f32 {vp(T(e,0))}, {vp(acc+2*e)}, {vp(T(e,1))}")
            else:
                els = range(8)
                T = lambda e, kk: tb[kk] + e
                for e in els: I(f"v_mul_f32 v{T(e,0)}, s{sL2E}, v{acc+e}")
                for e in els: I(f"v_min_f32 v{T(e,0)}, s{s30}, v{T(e,0)}")
                for e in els: I(f"v_exp_f32 v{T(e,0)}, v{T(e,0)}")
                for e in els: I(f"v_add_f32 v{T(e,1)}, 2.0, v{T(e,0)}")
                for e in els: I(f"v_mul_f32 v{T(e,1)}, v{T(e,0)}, v{T(e,1)}")
                for e in els: I(f"v_add_f32 v{T(e,2)}, 2.0, v{T(e,1)}")
                for e in els: I(f"v_rcp_f32 v{T(e,2)}, v{T(e,2)}")
                for e in els: I(f"v_mul_f32 v{T(e,1)}, v{T(e,1)}, v{T(e,2)}")
                for e in els: I(f"v_mul_f32 v{T(e,0)}, v{acc+e}, v{T(e,1)}")
            for e in range(4): I(f"v_cvt_pk_bf16_f32 v{pk+e}, v{tb[0]+2*e}, v{tb[0]+2*e+1}")
        I(f"s_lshl_b32 s{sT1}, s{sHF}, 11")
        I(f"s_add_u32 s{sT1}, s{sT1}, s{sT2}")
        for p in fts:
            pk = PK + 8*(npk[0] % 2); npk[0] += 1
            I(f"s_lshl_b32 s7, s{sPCOL[p]}, 5")
            I(f"s_add_u32 s7, s7, s{sT1}")
            for hh in range(2):
                mish8(ACC[p] + 8*hh, pk + 4*hh)
                I(f"buffer_store_dwordx4 v[{pk+4*hh}:{pk+4*hh+3}], v{vST}, s[{SWS}:{SWS+3}], s7 offen offset:{1024*hh}{WTF}")
        if isA:
            pk = PK + 8*(npk[0] % 2); npk[0] += 1
            I("s_waitcnt lgkmcnt(0)")
            for e in range(8): I(f"v_add_f32 v{ACC[3]+e}, v{ACC[3]+e}, v{36+e}")
            I(f"s_lshl_b32 s7, s{sSCOL}, 5")
            I(f"s_add_u32 s7, s7, s{sT2}")
            I(f"s_lshl_b32 s{sT1}, s{sHF}, 10")
            I(f"s_add_u32 s7, s7, s{sT1}")
            mish8(ACC[3], pk)
            I(f"buffer_store_dwordx4 v[{pk}:{pk+3}], v{vST}, s[{SWS}:{SWS+3}], s7 offen{WTF}")
        stamp(a, 9)
        if DBG: I("s_waitcnt vmcnt(0)")
        stamp(a, 10)
        stamp_flush(a, 11, SWS, sW, 0)
        I("s_endpgm")

    path("A")
    a.label("K1_B")
    path("B")
    a.label("K1_END")
    I("s_endpgm")
    return a.text(), kdesc("k1_kernel", NV, 100, NV), 163840
```

```python
from common import *
SHPRIO = opt("--shprio", 0)
SHPRIO2 = opt("--shprio2", 3)
ATPRIO = opt("--atprio", 1)
ZROWS = opt("--zrows", 1)
POLLS = opt("--polls", 4)
XBASE = 131072

def gen_k2():
    a = Asm()
    I = a.i
    a.raw(khead("k2_kernel"))
    I("s_cmp_ge_u32 s2, 256")
    I("s_cbranch_scc1 K2_END")
    SWS = 8
    I(f"s_load_dwordx2 s[8:9], s[0:1], 80")
    I(f"s_load_dwordx2 s[32:33], s[0:1], 64")
    srd(a, SWS, WS_BYTES)
    srd(a, 32, 2048*512*2)
    sW, sH, sQT, sT0, sT1, sCNT, sNMAX, sFIRST = 12, 13, 14, 15, 16, 17, 18, 19
    sVM = 20
    vL, vT, vLO, vKA, vVA, vG, vM, vT2 = 1, 2, 3, 4, 5, 6, 7, 8
    Q, NEGM, S, O, P, KF, VF = 12, 16, [32, 48], 64, 80, [88, 92], [96, 104]
    NV = 168
    I(f"v_and_b32 v{vL}, 63, v0")
    I(f"v_lshrrev_b32 v{vT}, 6, v0")
    I(f"s_and_b32 s{sT0}, s2, 7")
    I(f"v_readfirstlane_b32 s{sW}, v{vT}")
    I(f"s_lshl_b32 s{sT0}, s{sT0}, 2")
    I(f"s_bfe_u32 s{sT1}, s2, 0x20003")
    I(f"s_add_u32 s{sH}, s{sT0}, s{sT1}")
    I(f"s_lshr_b32 s24, s2, 5")
    I(f"v_lshlrev_b32 v{vLO}, 4, v{vL}")
    I(f"s_lshl_b32 s22, s{sH}, 17")
    I(f"s_cmp_ge_u32 s{sW}, 8")
    I("s_cbranch_scc1 K2_SHADOW")
    I(f"s_lshl_b32 s{sQT}, s24, 3")
    I(f"s_add_u32 s{sQT}, s{sQT}, s{sW}")
    I(f"s_lshl_b32 s23, s{sW}, 10")
    I(f"s_add_u32 s22, s22, s23")
    I(f"s_lshl_b32 s{sT0}, s{sH}, 6")
    I(f"s_add_u32 s{sT0}, s{sT0}, s{sQT}")
    I(f"s_lshl_b32 s{sT0}, s{sT0}, 10")
    I("s_waitcnt lgkmcnt(0)")
    stamp(a, 0)
    for t in range(3):
        I(f"s_add_u32 m0, s23, {8192*t}")
        I(f"s_add_u32 s{sT1}, s22, {KV_OFF + 8192*t}")
        I(f"buffer_load_dwordx4 v{vLO}, s[{SWS}:{SWS+3}], s{sT1} offen lds")
        if t == 0:
            I(f"buffer_load_dwordx4 v[{Q}:{Q+3}], v{vLO}, s[{SWS}:{SWS+3}], s{sT0} offen")
    I(f"v_and_b32 v{vT}, 31, v{vL}")
    I(f"v_lshlrev_b32 v{vT2}, 2, v{vT}")
    I(f"s_lshl_b32 s{sT0}, s{sQT}, 7")
    I(f"s_add_u32 s{sT0}, s{sT0}, {G_OFF}")
    I(f"buffer_load_dword v{vG}, v{vT2}, s[{SWS}:{SWS+3}], s{sT0} offen")
    I(f"s_mov_b32 s{sVM}, 0xffff")
    I(f"s_mov_b32 s{sVM+1}, 0xffff")
    if ZROWS:
        I(f"v_and_b32 v{vT}, 27, v{vT}")
        I(f"v_cmp_eq_u32 vcc, 16, v{vT}")
        I(f"v_mov_b32 v{vT}, 0x3f803f80")
        I("s_nop 0")
        I(f"v_cndmask_b32 v{VF[0]}, 0, v{vT}, vcc")
        for r in range(1, 16): I(f"v_mov_b32 v{VF[0]+r}, v{VF[0]}")
    else:
        for r in range(16): I(f"v_mov_b32 v{VF[0]+r}, 0x3f803f80")
    I(f"s_mov_b32 s{sNMAX}, 1")
    I(f"s_mov_b32 s{sFIRST}, 1")
    if ATPRIO: I("s_setprio 2")
    I("s_waitcnt vmcnt(0)")
    I("s_barrier")
    stamp(a, 1)
    a.label("K2_MAXPASS")
    I(f"v_mov_b32 v{vKA}, v{vLO}")
    I(f"v_mov_b32 v{vM}, 0xff800000")
    I(f"s_mov_b32 s{sCNT}, s{sNMAX}")
    a.label("K2_MAXLOOP")
    I(f"ds_read_b128 v[{KF[0]}:{KF[0]+3}], v{vKA}")
    I(f"v_add_u32 v{vKA}, 2048, v{vKA}")
    I("s_waitcnt lgkmcnt(0)")
    I(f"v_mfma_f32_32x32x16_bf16 v[{S[0]}:{S[0]+15}], v[{KF[0]}:{KF[0]+3}], v[{Q}:{Q+3}], 0")
    I("s_nop 11")
    for r in range(8):
        I(f"v_max3_f32 v{vM}, v{S[0]+2*r}, v{S[0]+2*r+1}, v{vM}")
    I(f"s_sub_u32 s{sCNT}, s{sCNT}, 1")
    I(f"s_cmp_lg_u32 s{sCNT}, 0")
    I("s_cbranch_scc1 K2_MAXLOOP")
    I(f"v_mov_b32 v{vT}, v{vM}")
    I(f"v_mov_b32 v{vKA}, v{vLO}")
    I(f"v_and_b32 v{vT2}, 15, v{vL}")
    I(f"v_permlane32_swap_b32 v{vM}, v{vT}")
    I(f"v_lshlrev_b32 v{vVA}, 4, v{vT2}")
    I(f"v_lshrrev_b32 v{vT2}, 5, v{vL}")
    I(f"v_max_f32 v{vM}, v{vM}, v{vT}")
    I(f"v_lshl_add_u32 v{vVA}, v{vT2}, 8, v{vVA}")
    I(f"v_add_u32 v{vVA}, 1024, v{vVA}")
    def rdK(t, buf):
        I(f"ds_read_b128 v[{KF[buf]}:{KF[buf]+3}], v{vKA} offset:{2048*t}")
    def rdV(t, buf):
        I(f"s_mov_b64 exec, s[{sVM}:{sVM+1}]")
        I(f"ds_read_b128 v[{VF[buf]}:{VF[buf]+3}], v{vVA} offset:{2048*t}")
        I(f"ds_read_b128 v[{VF[buf]+4}:{VF[buf]+7}], v{vVA} offset:{2048*t+512}")
        I(f"s_mov_b64 exec, -1")
    rdK(0, 0); rdK(1, 1); rdV(0, 0)
    for r in range(16): I(f"v_sub_f32 v{NEGM+r}, 0, v{vM}")
    stamp(a, 2)
    for r in range(4, 8): I(f"v_mov_b32 v{P+r}, 0")
    I("s_waitcnt lgkmcnt(3)")
    I(f"v_mfma_f32_32x32x16_bf16 v[{S[0]}:{S[0]+15}], v[{KF[0]}:{KF[0]+3}], v[{Q}:{Q+3}], v[{NEGM}:{NEGM+15}]")
    for r in range(16): I(f"v_mov_b32 v{O+r}, 0")
    I(f"s_mov_b32 s{sCNT}, 8")
    a.label("K2_LOOP")
    for t in range(8):
        cur, nxt = t % 2, (t + 1) % 2
        sc = S[cur]
        e = lambda k: I(f"v_exp_f32 v{sc+k}, v{sc+k}")
        c = lambda k: I(f"v_cvt_pk_bf16_f32 v{P+k}, v{sc+2*k}, v{sc+2*k+1}")
        I("s_waitcnt lgkmcnt(2)")
        I(f"v_mfma_f32_32x32x16_bf16 v[{S[nxt]}:{S[nxt]+15}], v[{KF[nxt]}:{KF[nxt]+3}], v[{Q}:{Q+3}], v[{NEGM}:{NEGM+15}]")
        rdK(t + 2, cur)
        for k in range(5): e(k)
        I(f"v_mfma_f32_32x32x16_bf16 v[{O}:{O+15}], v[{VF[nxt]+4}:{VF[nxt]+7}], v[{P+4}:{P+7}], v[{O}:{O+15}]")
        rdV(t + 1, nxt)
        c(0); c(1)
        for k in range(5, 10): e(k)
        c(2); c(3); e(10); e(11)
        I("s_waitcnt lgkmcnt(3)")
        I(f"v_mfma_f32_32x32x16_bf16 v[{O}:{O+15}], v[{VF[cur]}:{VF[cur]+3}], v[{P}:{P+3}], v[{O}:{O+15}]")
        c(4); c(5)
        for k in range(12, 16): e(k)
        c(6); c(7)
    I(f"v_add_u32 v{vKA}, 0x4000, v{vKA}")
    I(f"v_add_u32 v{vVA}, 0x4000, v{vVA}")
    I(f"s_cmp_eq_u32 s{sFIRST}, 0")
    I("s_cbranch_scc1 K2_NOBAR")
    I(f"s_mov_b32 s{sFIRST}, 0")
    if DBG: I("s_memtime s[94:95]")
    I("s_barrier")
    if DBG:
        I("s_memtime s[96:97]")
        I("s_waitcnt lgkmcnt(0)")
        I("s_mov_b32 s67, s94")
        I("s_mov_b32 s68, s96")
    a.label("K2_NOBAR")
    if ATPRIO:
        I(f"s_cmp_lg_u32 s{sCNT}, 5")
        I("s_cbranch_scc1 K2_NP1")
        I("s_setprio 1")
        a.label("K2_NP1")
        I(f"s_cmp_lg_u32 s{sCNT}, 2")
        I("s_cbranch_scc1 K2_NP2")
        I("s_setprio 0")
        a.label("K2_NP2")
    I(f"s_sub_u32 s{sCNT}, s{sCNT}, 1")
    I(f"s_cmp_lg_u32 s{sCNT}, 0")
    I("s_cbranch_scc1 K2_LOOP")
    I(f"v_mfma_f32_32x32x16_bf16 v[{O}:{O+15}], v[{VF[1]+4}:{VF[1]+7}], v[{P+4}:{P+7}], v[{O}:{O+15}]")
    I("s_waitcnt lgkmcnt(0)")
    I(f"s_lshl_b32 s{sT0}, s{sQT}, 5")
    I(f"s_add_u32 s{sT1}, s{sT0}, s{sH}")
    I(f"s_lshl_b32 s{sT0}, s{sT1}, 10")
    I(f"s_add_u32 s{sT0}, s{sT0}, {OF_OFF}")
    I(f"s_lshl_b32 s{sT1}, s{sT1}, 2")
    I(f"s_add_u32 s{sT1}, s{sT1}, {FL_OFF}")
    I("s_nop 5")
    stamp(a, 5)
    I(f"v_mov_b32 v{vT}, v{O+8}")
    I(f"v_rcp_f32 v{vT2}, v{O+8}")
    for r in range(8):
        I(f"v_fma_f32 v{vT}, v{O+r}, 0, v{vT}")
    I(f"v_cmp_gt_f32 vcc, {fhex(2.0**40)}, v{vT}")
    I(f"v_mul_f32 v{vT2}, v{vT2}, v{vG}")
    I("s_nop 3")
    I(f"s_cmp_eq_u64 vcc, -1")
    I("s_cbranch_scc1 K2_OK")
    I(f"s_cmp_eq_u32 s{sNMAX}, 64")
    I("s_cbranch_scc1 K2_OK")
    I(f"s_mov_b32 s{sNMAX}, 64")
    I("s_branch K2_MAXPASS")
    a.label("K2_OK")
    for r in range(8): I(f"v_mul_f32 v{O+r}, v{O+r}, v{vT2}")
    for r in range(4): I(f"v_cvt_pk_bf16_f32 v{P+r}, v{O+2*r}, v{O+2*r+1}")
    I(f"buffer_store_dwordx4 v[{P}:{P+3}], v{vLO}, s[{SWS}:{SWS+3}], s{sT0} offen sc0 sc1")
    if DBG: I("s_waitcnt vmcnt(0)")
    stamp(a, 6)
    stamp_flush(a, 7, SWS, sW, 1)
    I("s_endpgm")

    a.label("K2_SHADOW")
    sJ, sA0, sA1, sB0, sB1 = 25, 26, 27, 28, 29
    I(f"s_sub_u32 s{sJ}, s{sW}, 8")
    if SHPRIO: I(f"s_setprio {SHPRIO}")
    I(f"s_lshl_b32 s23, s{sJ}, 10")
    I(f"s_add_u32 s23, s23, {24*1024}")
    I(f"s_add_u32 s22, s22, s23")
    I(f"s_add_u32 s22, s22, {KV_OFF}")
    I("s_waitcnt lgkmcnt(0)")
    stamp(a, 0)
    I("s_barrier")
    stamp(a, 1)
    I(f"s_mov_b32 s{sCNT}, 26")
    a.label("K2_KVLOOP")
    I(f"s_mov_b32 m0, s23")
    I(f"s_add_u32 s23, s23, 4096")
    I(f"buffer_load_dwordx4 v{vLO}, s[{SWS}:{SWS+3}], s22 offen lds")
    I(f"s_add_u32 s22, s22, 4096")
    I(f"s_sub_u32 s{sCNT}, s{sCNT}, 1")
    I(f"s_cmp_lg_u32 s{sCNT}, 0")
    I("s_cbranch_scc1 K2_KVLOOP")
    I(f"s_lshr_b32 s{sT0}, s{sJ}, 1")
    I(f"s_lshl_b32 s{sT1}, s24, 1")
    I(f"s_add_u32 s{sA0}, s{sT1}, s{sT0}")
    I(f"s_xor_b32 s{sA1}, s{sA0}, 1")
    I(f"s_and_b32 s{sT0}, s{sJ}, 1")
    I(f"s_lshl_b32 s{sT1}, s{sH}, 1")
    I(f"s_add_u32 s{sB0}, s{sT1}, s{sT0}")
    I(f"s_xor_b32 s{sB1}, s{sB0}, 1")
    I(f"s_mov_b32 s36, s{sA0}")
    I(f"s_mov_b32 s37, s{sB0}")
    I(f"v_and_b32 v{vT}, 31, v{vL}")
    I(f"v_lshlrev_b32 v{vT}, 2, v{vT}")
    for r, vg in ((sB0, 4), (sB1, 5)):
        I(f"s_lshl_b32 s{sT0}, s{r}, 7")
        I(f"s_add_u32 s{sT0}, s{sT0}, {G_OFF}")
        I(f"buffer_load_dword v{vg}, v{vT}, s[{SWS}:{SWS+3}], s{sT0} offen")
    I(f"s_lshl_b32 s{sT0}, s{sJ}, 13")
    for d, r in ((38, sA0), (39, sA1)):
        I(f"s_mul_i32 s{d}, s{r}, {144*1024}")
        I(f"s_add_u32 s{d}, s{d}, s{sT0}")
        I(f"s_add_u32 s{d}, s{d}, {WF_OFF}")
    for d, r in ((40, sB0), (41, sB1)):
        I(f"s_lshl_b32 s{d}, s{r}, 15")
        I(f"s_add_u32 s{d}, s{d}, s{sT0}")
        I(f"s_add_u32 s{d}, s{d}, {OF_OFF}")
    I(f"s_mul_i32 s{sT0}, s{sJ}, {28*1024}")
    for r, off in ((sA0, WF_OFF), (sA1, WF_OFF), (sB0, AF_OFF), (sB1, AF_OFF)):
        I(f"s_mul_i32 s{r}, s{r}, {144*1024}")
        I(f"s_add_u32 s{r}, s{r}, s{sT0}")
        I(f"s_add_u32 s{r}, s{r}, {off + 32*1024}")
    ACC, FR = 8, 72
    def ld(u):
        fb = FR + 16*u
        for q, r in enumerate((sA0, sB0, sA1, sB1)):
            I(f"buffer_load_dwordx4 v[{fb+4*q}:{fb+4*q+3}], v{vLO}, s[{SWS}:{SWS+3}], s{r} offen offset:{1024*u}")
    def mm(fb):
        A0, B0, A1, B1 = fb, fb+4, fb+8, fb+12
        for tau, (A, B) in ((3, (A1, B1)), (2, (A1, B0)), (1, (A0, B1)), (0, (A0, B0))):
            acc = ACC + 16*tau
            I(f"v_mfma_f32_32x32x16_bf16 v[{acc}:{acc+15}], v[{A}:{A+3}], v[{B}:{B+3}], v[{acc}:{acc+15}]")
    for u in range(4): ld(u)
    for r in range(64): I(f"v_mov_b32 v{ACC+r}, 0")
    I("s_waitcnt vmcnt(18)")
    stamp(a, 2)
    I("s_barrier")
    stamp(a, 3)
    I(f"s_mov_b32 s{sCNT}, 6")
    a.label("K2_GLOOP")
    for r in (sA0, sA1, sB0, sB1): I(f"s_add_u32 s{r}, s{r}, 4096")
    for u in range(4):
        I("s_waitcnt vmcnt(12)")
        mm(FR + 16*u)
        ld(u)
    I(f"s_sub_u32 s{sCNT}, s{sCNT}, 1")
    I(f"s_cmp_lg_u32 s{sCNT}, 0")
    I("s_cbranch_scc1 K2_GLOOP")
    WA, OB = 72, 104
    for u in range(4):
        I(f"s_waitcnt vmcnt({12 - 4*u})")
        mm(FR + 16*u)
    for s_ in range(4):
        for q, r in ((0, 38), (1, 39)):
            b = WA + 8*s_ + 4*q
            I(f"buffer_load_dwordx4 v[{b}:{b+3}], v{vLO}, s[{SWS}:{SWS+3}], s{r} offen offset:{1024*s_}")
    I(f"s_lshl_b32 s42, s{sJ}, 13")
    I(f"s_add_u32 s42, s42, 131072")
    for q, r in ((0, 38), (1, 39)):
        I(f"s_add_u32 m0, s42, {4096*q}")
        I(f"s_add_u32 s{sT0}, s{r}, 4096")
        for s_ in range(4):
            I(f"buffer_load_dwordx4 v{vLO}, s[{SWS}:{SWS+3}], s{sT0} offen offset:{1024*s_} lds")
    stamp(a, 4)
    I(f"s_setprio {SHPRIO2}")
    I(f"v_sub_f32 v4, 1.0, v4")
    I(f"v_sub_f32 v5, 1.0, v5")
    for tau in (3, 2, 1, 0):
        for k in range(16): I(f"v_mul_f32 v{ACC+16*tau+k}, v{ACC+16*tau+k}, v{4 + (tau & 1)}")
    I(f"s_add_u32 s43, s40, 4096")
    I(f"s_add_u32 s44, s41, 4096")
    I(f"v_add_u32 v{vT}, s42, v{vLO}")
    I(f"s_mul_i32 s{sT0}, s{sJ}, 12288")
    I(f"v_add_u32 v4, s{sT0}, v{vLO}")
    for r in (1, 2, 3):
        I(f"s_xor_b32 s{sT0}, s{sJ}, {r}")
        I(f"s_mul_i32 s{sT0}, s{sT0}, 12288")
        I(f"v_add_u32 v{4+r}, s{sT0}, v{vLO}")
    I(f"s_mov_b32 s{sCNT}, 0x40000")
    I("s_waitcnt vmcnt(0)")
    I("s_barrier")
    stamp(a, 5)
    def ldo(s_):
        for q in range(2):
            r = (40, 41)[q] if s_ < 4 else (43, 44)[q]
            b = OB + 8*s_ + 4*q
            I(f"buffer_load_dwordx4 v[{b}:{b+3}], v{vLO}, s[{SWS}:{SWS+3}], s{r} offen offset:{1024*(s_%4)} sc0 sc1")
    for s_ in range(8): ldo(s_)
    for s_ in range(8):
        b = OB + 8*s_
        I(f"s_waitcnt vmcnt({14 - 2*s_})")
        a.label(f"K2_CHK{s_}")
        I(f"v_max3_u32 v0, v{b}, v{b+1}, v{b+2}")
        I(f"v_max3_u32 v0, v{b+3}, v{b+4}, v0")
        I(f"v_max3_u32 v0, v{b+5}, v{b+6}, v0")
        I(f"v_max_u32 v0, v{b+7}, v0")
        I(f"v_cmp_eq_u32 vcc, -1, v0")
        if s_ >= 4: I("s_waitcnt lgkmcnt(%d)" % (2*(7 - s_)))
        else: I("s_nop 0")
        I("s_nop 2")
        I(f"s_cbranch_vccnz K2_RETRY{s_}")
        a.label(f"K2_GO{s_}")
        wa = WA + 8*(s_ % 4)
        A0, A1, B0, B1 = wa, wa+4, b, b+4
        for tau, (A, B) in ((3, (A1, B1)), (2, (A1, B0)), (1, (A0, B1)), (0, (A0, B0))):
            acc = ACC + 16*tau
            I(f"v_mfma_f32_32x32x16_bf16 v[{acc}:{acc+15}], v[{A}:{A+3}], v[{B}:{B+3}], v[{acc}:{acc+15}]")
        if s_ < 4:
            for q in range(2):
                I(f"ds_read_b128 v[{wa+4*q}:{wa+4*q+3}], v{vT} offset:{4096*q + 1024*s_}")
    I(f"s_lshl_b32 s{sT0}, s37, 15")
    I(f"s_lshl_b32 s{sT1}, s36, 6")
    I(f"s_add_u32 s{sT0}, s{sT0}, s{sT1}")
    I(f"v_and_b32 v{vT}, 31, v{vL}")
    I(f"v_lshlrev_b32 v{vT}, 10, v{vT}")
    I(f"v_lshrrev_b32 v{vL}, 5, v{vL}")
    I(f"v_lshl_add_u32 v{vT}, v{vL}, 5, v{vT}")
    I("s_nop 2")
    for r in (3, 2, 1):
        for q in range(4):
            b = ACC + 16*r + 4*q
            I(f"ds_write_b128 v{4+r}, v[{b}:{b+3}] offset:{(r-1)*4096 + q*1024}")
    I("s_waitcnt lgkmcnt(0)")
    I("s_barrier")
    for r in range(3):
        for q in range(4):
            b = FR + 16*r + 4*q
            I(f"ds_read_b128 v[{b}:{b+3}], v4 offset:{r*4096 + q*1024}")
    for r in range(3):
        I(f"s_waitcnt lgkmcnt({8-4*r})")
        for k in range(16): I(f"v_add_f32 v{ACC+k}, v{ACC+k}, v{FR+16*r+k}")
    for r in range(8): I(f"v_cvt_pk_bf16_f32 v{FR+r}, v{ACC+2*r}, v{ACC+2*r+1}")
    I(f"buffer_store_dwordx4 v[{FR}:{FR+3}], v{vT}, s[32:35], s{sT0} offen")
    I(f"buffer_store_dwordx4 v[{FR+4}:{FR+7}], v{vT}, s[32:35], s{sT0} offen offset:16")
    if DBG: I("s_waitcnt vmcnt(0)")
    stamp(a, 6)
    stamp_flush(a, 7, SWS, sW, 1)
    a.label("K2_EXIT")
    I("s_endpgm")
    for s_ in range(8):
        a.label(f"K2_RETRY{s_}")
        I(f"s_cmp_eq_u32 s{sCNT}, 0")
        I(f"s_cbranch_scc1 K2_GO{s_}")
        I(f"s_sub_u32 s{sCNT}, s{sCNT}, 1")
        I(f"s_sleep {POLLS}")
        ldo(s_)
        I("s_waitcnt vmcnt(0)")
        I(f"s_branch K2_CHK{s_}")
    a.label("K2_END")
    I("s_endpgm")
    return a.text(), kdesc("k2_kernel", NV, 100, NV), 163840
```

```python
from common import *
PKMISH = opt("--pkmish", 1)
WTF = " sc0 sc1"
TRIT = opt("--trit", 4)
PFIT = opt("--pfit", 1)
TRIT2 = opt("--trit2", 6)
ROTX = opt("--rotx", 7)
ROTR = opt("--rotr", 1)
SHPRIO2 = opt("--shprio2", 3)
ATPRIO = opt("--atprio", 1)
POLLS = opt("--polls", 2)
MPF = opt("--mpf", 0)
DBG2 = opt('--dbg2', 0)
WT1 = opt('--wt1', 'sc0_sc1').replace('_', ' ')
EXP = opt('--exp', 0)
KV0 = opt('--kv0', 6)
STG = 32768
SB0 = 65536
XAB = 131072
QL = 147456
GL = 155648
F1IT = opt('--f1it', 2)
Y2IT = opt('--y2it', 6)
F2_OFF = FL_OFF + 16384
KN = NAME + "_kernel"
MF = "v_mfma_f32_32x32x16_bf16"

_stamp = stamp
def stamp(a, idx, comp=True):
    if DBG2 and 1 <= idx <= 7 and COMP[0]: return
    _stamp(a, idx)
COMP = [True]
def gen():
    a = Asm()
    I = a.i
    a.raw(khead(KN))
    I("s_cmp_ge_u32 s2, 256")
    I("s_cbranch_scc1 MK_END")
    SX, SWQ, SWO, SW1, SB1, SW2, SG, SWS = 8, 12, 16, 20, 24, 28, 32, 36
    for s, off in [(SX, 0), (SWQ, 8), (SW1, 32), (SWO, 16), (SB1, 40), (SW2, 48), (SG, 56), (SWS, 80), (100, 72)]:
        I(f"s_load_dwordx2 s[{s}:{s+1}], s[0:1], {off}")
    srd(a, SX, 2048*512*2); srd(a, SWQ, 512*1536*2); srd(a, SW1, 512*1792*2); srd(a, SWS, WS_BYTES)
    sW, sC, sRB, sRT, sT0, sT1, sT2, sHF, sIT = 40, 41, 42, 43, 44, 45, 46, 47, 48
    sRS = 58
    sCOL = [[59, 60], [61, 62]]
    sL2E, sTWO, sQS, s30 = 84, 86, 5, 6
    sTR = 94
    sH, sQB = 95, 96
    vL = 1
    t0, t1, t2, t3 = 2, 3, 4, 5
    vXE, vXO, vWQ, vWF, vWS, vST, vSV, vTS = 6, 7, 8, 9, 10, 11, 12, 13
    vXR = [14, 15, 16, 17]
    vTP = [18, 19]
    vTT = [20, 21]
    vTD = 22
    vG0, vG1 = 23, 24
    XF = [28, 32, 36, 40]
    WF = [[44 + 8*k, 48 + 8*k] for k in range(4)]
    ACC = [76, 92, 108, 124]
    PK = 44
    BIAS, BONE, GX, GW = 140, 146, 150, 154
    NV = 168
    HKR = [152, 156, 160, 164]
    I(f"v_and_b32 v{vL}, 63, v0")
    I(f"v_lshrrev_b32 v{t0}, 6, v0")
    I(f"s_and_b32 s{sT0}, s2, 1")
    I(f"v_readfirstlane_b32 s{sW}, v{t0}")
    I(f"s_lshl_b32 s{sT0}, s{sT0}, 3")
    I(f"s_bfe_u32 s{sT1}, s2, 0x30003")
    I(f"s_add_u32 s{sRB}, s{sT0}, s{sT1}")
    I(f"s_and_b32 s{sC}, s2, 6")
    I(f"s_bfe_u32 s{sT0}, s2, 0x10006")
    I(f"s_add_u32 s{sC}, s{sC}, s{sT0}")
    I(f"s_lshr_b32 s{sHF}, s{sW}, 2")
    I(f"s_and_b32 s{sT0}, s{sW}, 3")
    I(f"s_lshl_b32 s{sRT}, s{sRB}, 2")
    I(f"s_add_u32 s{sRT}, s{sRT}, s{sT0}")
    I(f"v_lshrrev_b32 v{t0}, 3, v{vL}")
    I(f"v_and_b32 v{t1}, 7, v{vL}")
    I(f"v_lshrrev_b32 v{t2}, 1, v{t0}")
    I(f"v_xor_b32 v{t3}, v{t1}, v{t2}")
    I(f"v_lshlrev_b32 v{vXE}, 10, v{t0}")
    I(f"v_lshl_add_u32 v{vXE}, v{t3}, 4, v{vXE}")
    I(f"v_xor_b32 v{vXO}, 64, v{vXE}")
    I(f"v_and_b32 v{t2}, 1, v{t2}")
    I(f"v_lshlrev_b32 v{t2}, 2, v{t2}")
    I(f"v_xor_b32 v{t3}, v{t1}, v{t2}")
    I(f"v_lshlrev_b32 v{t3}, 4, v{t3}")
    I(f"v_mul_u32_u24 v{vWQ}, 3072, v{t0}")
    I(f"v_add_u32 v{vWQ}, v{vWQ}, v{t3}")
    I(f"v_mul_u32_u24 v{vWF}, 3584, v{t0}")
    I(f"v_add_u32 v{vWF}, v{vWF}, v{t3}")
    I(f"v_lshl_add_u32 v{vTD}, v{t0}, 10, v{t3}")
    I(f"v_lshlrev_b32 v{vST}, 4, v{vL}")
    I(f"s_and_b32 s{sT0}, s2, 7")
    I(f"s_lshl_b32 s{sT0}, s{sT0}, 2")
    I(f"s_bfe_u32 s{sT1}, s2, 0x20003")
    I(f"s_add_u32 s{sH}, s{sT0}, s{sT1}")
    I(f"s_lshr_b32 s{sQB}, s2, 5")
    I(f"s_cmp_ge_u32 s2, 128")
    I("s_cbranch_scc1 P1_B")

    def path(ty):
        isA = ty == "A"
        a.vm = []; a.lg = []
        if isA:
            sw = [["Q", "K"], ["F", "S"]]
            I(f"s_lshl_b32 s{sCOL[0][0]}, s{sC}, 7")
            I(f"s_add_u32 s{sCOL[0][1]}, s{sCOL[0][0]}, 1024")
            I(f"s_add_u32 s{sCOL[1][0]}, s{sCOL[0][0]}, {16*128}")
            I(f"s_lshl_b32 s{sCOL[1][1]}, s{sC}, 6")
            I(f"s_add_u32 s{sCOL[1][1]}, s{sCOL[1][1]}, {24*128}")
            I(f"v_lshrrev_b32 v{t0}, 2, v{vL}")
            I(f"v_mul_u32_u24 v{vWS}, 3584, v{t0}")
            I(f"v_and_b32 v{t0}, 3, v{vL}")
            I(f"v_lshl_add_u32 v{vWS}, v{t0}, 4, v{vWS}")
        else:
            sw = [["V"], ["F", "F"]]
            I(f"s_lshl_b32 s{sCOL[0][0]}, s{sC}, 7")
            I(f"s_add_u32 s{sCOL[0][0]}, s{sCOL[0][0]}, 2048")
            I(f"s_lshl_b32 s{sCOL[1][0]}, s{sC}, 8")
            I(f"s_add_u32 s{sCOL[1][1]}, s{sCOL[1][0]}, 128")
        I(f"s_cmp_ge_u32 s{sW}, 8")
        I(f"s_cbranch_scc0 P1{ty}_COMP")
        sJ, sCH, sSTG, sXB = 63, 57, 58, 53
        sPB = [[49, 50], [51, 52]]
        sKXl, sKWl, sSXl, sSPl, sSSl = 97, 98, 54, 55, 56
        I(f"s_sub_u32 s{sJ}, s{sW}, 8")
        I(f"s_and_b32 s{sCH}, s2, {ROTX}")
        if ROTR:
            I(f"s_bfe_u32 s{sT0}, s2, 0x30003")
            I(f"s_and_b32 s{sT0}, s{sT0}, {ROTR}")
            I(f"s_add_u32 s{sCH}, s{sCH}, s{sT0}")
            I(f"s_and_b32 s{sCH}, s{sCH}, 7")
        I(f"s_mov_b32 s{sSTG}, {SB0}")
        I(f"s_lshl_b32 s{sXB}, s{sRB}, 2")
        I(f"s_add_u32 s{sXB}, s{sXB}, s{sJ}")
        I(f"s_lshl_b32 s{sXB}, s{sXB}, 15")
        I(f"s_mul_i32 s{sT1}, s{sJ}, {16*3072}")
        I(f"s_mul_i32 s{sT2}, s{sJ}, {16*3584}")
        for k in range(2):
            for p in range(len(sw[k])):
                I(f"s_add_u32 s{sPB[k][p]}, s{sCOL[k][p]}, s{sT2 if k else sT1}")
        I(f"s_mov_b32 s{sIT}, 0")
        I("s_waitcnt lgkmcnt(0)")
        stamp(a, 0)
        def dma(ms, mc, k, pb, oc, vo, S_):
            I(f"s_add_u32 m0, s{ms}, {mc}")
            if pb is None:
                I(f"s_add_u32 s7, s{k}, {oc}")
            else:
                I(f"s_add_u32 s7, s{k}, s{pb}")
                if oc: I(f"s_add_u32 s7, s7, {oc}")
            I(f"buffer_load_dwordx4 v{vo}, s[{S_}:{S_+3}], s7 offen lds")
        for k in range(2):
            ld = 3584 if k else 3072
            a.label(f"P1{ty}_LD{k}")
            I(f"s_lshl_b32 s{sKXl}, s{sCH}, 7")
            I(f"s_add_u32 s{sKXl}, s{sKXl}, s{sXB}")
            I(f"s_mul_i32 s{sKWl}, s{sCH}, {64*ld}")
            I(f"s_lshl_b32 s{sT0}, s{sJ}, 10")
            I(f"s_add_u32 s{sSSl}, s{sSTG}, s{sT0}")
            I(f"s_add_u32 s{sSPl}, s{sSSl}, s{sT0}")
            I(f"s_lshl_b32 s{sT0}, s{sT0}, 1")
            I(f"s_add_u32 s{sSXl}, s{sSPl}, s{sT0}")
            nd = 4
            for i in range(4): dma(sSXl, 1024*i, sKXl, None, 8192*i, vXO if i % 2 else vXE, SX)
            for p, kd in enumerate(sw[k]):
                if kd == "S":
                    dma(sSSl, 16384 + 8192*p, sKWl, sPB[k][p], 0, vWS, SW1); nd += 1
                else:
                    for i in range(2):
                        dma(sSPl, 16384 + 8192*p + 1024*i, sKWl, sPB[k][p], 8*i*ld, vWF if k else vWQ, SW1 if k else SWQ); nd += 1
            I(f"s_add_u32 s{sCH}, s{sCH}, 1")
            I(f"s_and_b32 s{sCH}, s{sCH}, 7")
            I(f"s_add_u32 s{sSTG}, s{sSTG}, {STG}")
            I(f"s_cmp_eq_u32 s{sSTG}, {SB0 + 3*STG}")
            I(f"s_cselect_b32 s{sSTG}, {SB0}, s{sSTG}")
            I(f"s_add_u32 s{sIT}, s{sIT}, 1")
            if k == 0:
                I(f"s_cmp_eq_u32 s{sIT}, 1")
                I(f"s_cbranch_scc1 P1{ty}_LD0")
            I(f"s_waitcnt vmcnt({nd})")
            I("s_barrier")
            I(f"s_cmp_lt_u32 s{sIT}, {8*(k+1)}")
            I(f"s_cbranch_scc1 P1{ty}_LD{k}")
        I(f"s_mov_b32 s{sIT}, {1 if isA else 0}")
        I("s_branch P2_SHADOW")
        a.label(f"P1{ty}_COMP")
        I("s_waitcnt lgkmcnt(0)")
        stamp(a, 0)
        code_prefetch(a, "MK_END", 8, 1, "p1" + ty, vt=25)
        srd(a, SWO, 512*512*2); srd(a, SB1, 1792*2); srd(a, SW2, 1792*512*2); srd(a, SG, 512*2)
        I(f"s_lshl_b32 s{sT0}, s{sQB}, 3")
        I(f"s_add_u32 s{sT0}, s{sT0}, s{sW}")
        I(f"s_lshl_b32 s{sT0}, s{sT0}, 5")
        I(f"s_add_u32 s{sT0}, s{sT0}, s{sH}")
        I(f"s_lshl_b32 s{sT0}, s{sT0}, 10")
        I(f"s_add_u32 s97, s{sT0}, {OF_OFF}")
        if isA:
            I(f"s_or_b32 s{sT0}, s2, s{sW}")
            I(f"s_cmp_lg_u32 s{sT0}, 0")
            I("s_cbranch_scc1 P1_NONONCE")
            I("s_memrealtime s[50:51]")
            I(f"v_mov_b32 v{t0}, 0")
            I("s_waitcnt lgkmcnt(0)")
            I("s_or_b32 s50, s50, 1")
            I(f"v_mov_b32 v{PK+8}, s50")
            I(f"v_mov_b32 v{PK+9}, s51")
            I("s_mov_b64 exec, 1")
            I(f"global_store_dwordx2 v{t0}, v[{PK+8}:{PK+9}], s[100:101] sc0 sc1")
            I("s_mov_b64 exec, -1")
            a.label("P1_NONONCE")
        for r in range(6): I(f"v_mov_b32 v{BIAS+r}, 0")
        I(f"s_lshl_b32 s{sT1}, s2, 3")
        I(f"s_add_u32 s{sT1}, s{sT1}, s{sW}")
        I(f"s_lshl_b32 s{sT1}, s{sT1}, 10")
        I(f"buffer_load_dwordx4 v[{GX}:{GX+3}], v{vST}, s[{SX}:{SX+3}], s{sT1} offen")
        I(f"buffer_load_dwordx4 v[{GW}:{GW+3}], v{vST}, s[{SG}:{SG+3}], 0 offen")
        I(f"v_and_b32 v{t0}, 31, v{vL}")
        I(f"v_lshlrev_b32 v{t0}, 1, v{t0}")
        I(f"s_lshl_b32 s{sT1}, s{sHF}, 6")
        for p, kd in enumerate(sw[1]):
            if kd == "F":
                I(f"s_add_u32 s7, s{sCOL[1][p]}, s{sT1}")
                I(f"buffer_load_ushort v{BIAS+2*p}, v{t0}, s[{SB1}:{SB1+3}], s7 offen")
            else:
                I(f"s_lshl_b32 s{sT2}, s{sHF}, 5")
                I(f"v_xor_b32 v{t1}, s{sT2}, v{t0}")
                I(f"buffer_load_ushort v{BIAS+2*p}, v{t1}, s[{SB1}:{SB1+3}], s{sCOL[1][p]} offen")
        I(f"v_and_b32 v{t0}, 31, v{vL}")
        I(f"v_lshrrev_b32 v{t1}, 5, v{vL}")
        I(f"v_bfe_u32 v{t2}, v{t0}, 1, 3")
        I(f"v_xor_b32 v{t2}, v{t2}, v{t1}")
        I(f"v_lshlrev_b32 v{t3}, 7, v{t0}")
        I(f"s_and_b32 s{sT0}, s{sW}, 3")
        I(f"s_lshl_b32 s{sT0}, s{sT0}, 12")
        I(f"s_add_u32 s{sT0}, s{sT0}, {SB0}")
        I(f"v_add_u32 v{t3}, s{sT0}, v{t3}")
        I(f"v_lshl_add_u32 v{t3}, v{t2}, 4, v{t3}")
        I(f"v_xor_b32 v{vXR[0]}, s{sT1}, v{t3}")
        for sp in range(1, 4): I(f"v_xor_b32 v{vXR[sp]}, {32*sp}, v{vXR[0]}")
        I(f"v_bfe_u32 v{t0}, v{vL}, 2, 2")
        I(f"v_and_b32 v{t2}, 3, v{vL}")
        I(f"v_bfe_u32 v{t3}, v{vL}, 4, 1")
        p0 = vTP[0]
        I(f"v_lshlrev_b32 v{p0}, 10, v{t1}")
        I(f"v_lshl_add_u32 v{p0}, v{t0}, 7, v{p0}")
        I(f"v_lshl_add_u32 v{p0}, v{t3}, 5, v{p0}")
        I(f"v_lshl_add_u32 v{p0}, v{t2}, 3, v{p0}")
        I(f"v_lshrrev_b32 v25, 1, v{t0}")
        I(f"v_lshl_add_u32 v{p0}, v25, 6, v{p0}")
        I(f"v_xor_b32 v{p0}, s{sT1}, v{p0}")
        I(f"v_add_u32 v{p0}, {SB0 + 16384}, v{p0}")
        I(f"s_lshl_b32 s{sT2}, s{sHF}, 12")
        I(f"v_subrev_u32 v{vTP[1]}, s{sT2}, v{p0}")
        I(f"v_add_u32 v{p0}, s{sT2}, v{p0}")
        if isA:
            I(f"v_lshlrev_b32 v{vTS}, 9, v{t1}")
            I(f"v_lshl_add_u32 v{vTS}, v{t0}, 6, v{vTS}")
            I(f"v_lshl_add_u32 v{vTS}, v{t3}, 5, v{vTS}")
            I(f"v_lshl_add_u32 v{vTS}, v{t2}, 3, v{vTS}")
            I(f"s_lshl_b32 s{sT2}, s{sHF}, 5")
            I(f"v_xor_b32 v{vTS}, s{sT2}, v{vTS}")
            I(f"s_lshl_b32 s{sT2}, s{sHF}, 11")
            I(f"s_add_u32 s{sT2}, s{sT2}, {SB0 + 24576}")
            I(f"v_add_u32 v{vTS}, s{sT2}, v{vTS}")
        else:
            I(f"v_and_b32 v26, 15, v{vL}")
            I(f"v_lshlrev_b32 v{vSV}, 4, v26")
            I(f"v_lshl_add_u32 v{vSV}, v{t1}, 8, v{vSV}")
            I(f"v_lshl_add_u32 v{vSV}, v{t3}, 17, v{vSV}")
            I(f"v_add_u32 v{vSV}, 1024, v{vSV}")
        T0 = vTT[0]
        I(f"s_lshl_b32 s98, s{sW}, 11")
        I(f"v_lshlrev_b32 v{T0}, 9, v{t1}")
        I(f"v_lshl_add_u32 v{T0}, v{t0}, 7, v{T0}")
        I(f"v_lshl_add_u32 v{T0}, v25, 6, v{T0}")
        I(f"v_lshl_add_u32 v{T0}, v{t3}, 4, v{T0}")
        I(f"v_and_b32 v25, 1, v{t2}")
        I(f"v_lshl_add_u32 v{T0}, v25, 5, v{T0}")
        I(f"v_lshrrev_b32 v25, 1, v{t2}")
        I(f"v_lshl_add_u32 v{T0}, v25, 3, v{T0}")
        I(f"v_add_u32 v{T0}, s98, v{T0}")
        I(f"v_xor_b32 v{vTT[1]}, 64, v{T0}")
        I(f"s_sub_u32 s{sTR}, 255, s2")
        I(f"v_cmp_gt_u32 vcc, 32, v{vL}")
        I(f"v_mov_b32 v{BONE+1}, 0")
        I(f"v_mov_b32 v{BONE+2}, 0")
        I(f"v_mov_b32 v{BONE+3}, 0")
        I(f"v_mov_b32 v{t0}, 0x3f80")
        I(f"v_cndmask_b32 v{BONE}, 0, v{t0}, vcc")
        I(f"s_mov_b32 s{sL2E}, {fhex(LOG2E)}")
        I(f"s_mov_b32 s{sL2E+1}, {fhex(LOG2E)}")
        I(f"s_mov_b32 s{sTWO}, 2.0")
        I(f"s_mov_b32 s{sTWO+1}, 2.0")
        I(f"s_mov_b32 s{sQS}, {fhex(QSCALE)}")
        I(f"s_mov_b32 s{s30}, {fhex(30.0)}")
        for k in range(64): I(f"v_mov_b32 v{ACC[0]+k}, 0")
        for r in list(range(XF[2], XF[2]+8)) + list(range(WF[2][0], WF[2][0]+16)): I(f"v_mov_b32 v{r}, 0")
        I(f"s_mov_b32 s{sRS}, 0")

        def sweep(k):
            kinds = sw[k]
            def reads(s):
                R = [(f"ds_read_b128 v[{XF[s]}:{XF[s]+3}], v{vXR[s]}", 0)]
                for p, kd in enumerate(kinds):
                    b = WF[s][p]
                    if kd == "S":
                        if s < 2:
                            R.append((f"ds_read_b64_tr_b16 v[{b}:{b+1}], v{vTS} offset:{1024*s}", p))
                            R.append((f"ds_read_b64_tr_b16 v[{b+2}:{b+3}], v{vTS} offset:{1024*s + 256}", p))
                    else:
                        off = 8192*p + 2048*s
                        R.append((f"ds_read_b64_tr_b16 v[{b}:{b+1}], v{vTP[s//2]} offset:{off}", p))
                        R.append((f"ds_read_b64_tr_b16 v[{b+2}:{b+3}], v{vTP[s//2]} offset:{off+512}", p))
                return R
            def mfs(s):
                M = []
                for p, kd in enumerate(kinds):
                    if kd == "S" and s >= 2: continue
                    acc, xf, wf = ACC[2*k + p], XF[s], WF[s][p]
                    if kd == "V": M.append((p, f"{MF} v[{acc}:{acc+15}], v[{xf}:{xf+3}], v[{wf}:{wf+3}], v[{acc}:{acc+15}]"))
                    else: M.append((p, f"{MF} v[{acc}:{acc+15}], v[{wf}:{wf+3}], v[{xf}:{xf+3}], v[{acc}:{acc+15}]"))
                return M
            L = f"P1{ty}_S{k}"
            I(f"s_mov_b32 s{sIT}, 0")
            a.label(f"{L}_LOOP")
            if k == 1:
                I(f"s_cmp_lg_u32 s{sIT}, {F1IT}")
                I(f"s_cbranch_scc1 {L}_NW")
                I("s_waitcnt vmcnt(0)")
                a.label(f"{L}_NW")
            I("s_barrier")
            if DBG and k == 1 and DBG2:
                I("s_memtime s[90:91]")
                I("s_waitcnt lgkmcnt(0)")
                for n_, it_ in enumerate((0, 1, 2, 3, 4, 5, 6)):
                    I(f"s_cmp_eq_u32 s{sIT}, {it_}"); I(f"s_cselect_b32 s{65+n_}, s90, s{65+n_}")
            if DBG and k == 0 and not DBG2:
                I(f"s_cmp_lg_u32 s{sIT}, 0")
                I(f"s_cbranch_scc1 {L}_NS")
                stamp(a, 1)
                a.label(f"{L}_NS")
            a.lg = []
            def rd(s):
                for t_, tag in reads(s): a.lds(t_, (s, tag))
            def mm(s, w):
                for p, m in mfs(s):
                    if w: a.wait(lg=(s, p))
                    I(m)
            M2 = mfs(2)
            I(M2[0][1]); rd(0)
            for p, m in M2[1:]: I(m)
            M3 = mfs(3)
            I(M3[0][1]); rd(1)
            for p, m in M3[1:]: I(m)
            rd(2)
            for it_, lab in (((PFIT, "PF"), (TRIT, "X1")) if k == 0 else ((F1IT, "F1"),)):
                I(f"s_cmp_eq_u32 s{sIT}, {it_}")
                I(f"s_cbranch_scc1 P1{ty}_{lab}")
            a.label(f"P1{ty}_BACK{k}")
            mm(0, True)
            rd(3)
            mm(1, True)
            I(f"s_add_u32 s{sRS}, s{sRS}, 1")
            I(f"s_mov_b32 s{sT0}, {STG}")
            I(f"s_cmp_eq_u32 s{sRS}, 3")
            I(f"s_cselect_b32 s{sT0}, {(-2*STG) & 0xffffffff}, s{sT0}")
            I(f"s_cselect_b32 s{sRS}, 0, s{sRS}")
            for r in vXR + vTP + ([vTS] if isA else []): I(f"v_add_u32 v{r}, s{sT0}, v{r}")
            I(f"s_add_u32 s{sIT}, s{sIT}, 1")
            I(f"s_cmp_lt_u32 s{sIT}, 8")
            a.wait(lg="all")
            I(f"s_cbranch_scc1 {L}_LOOP")
            for p, m in mfs(2) + mfs(3): I(m)

        sweep(0)
        stamp(a, 2)
        for r in range(8): I(f"v_mov_b32 v{XF[2]+r}, 0")
        I("s_waitcnt vmcnt(0)")
        I(f"v_mov_b32 v{vG0}, 0")
        I(f"v_mov_b32 v{vG1}, 0")
        for k in range(4): I(f"v_dot2_f32_bf16 v{vG0+k%2}, v{GX+k}, v{GW+k}, v{vG0+k%2}")
        I(f"s_lshl_b32 s7, s{sC}, 1")
        I(f"s_add_u32 s50, s7, s{sHF}")
        I(f"s_lshl_b32 s51, s50, 17")
        I(f"v_add_f32 v{vG0}, v{vG0}, v{vG1}")
        I(f"s_lshl_b32 s{sT0}, s{sRT}, 10")
        I(f"s_add_u32 s51, s51, s{sT0}")
        I(f"v_add_f32_dpp v{vG0}, v{vG0}, v{vG0} quad_perm:[1,0,3,2] row_mask:0xf bank_mask:0xf")
        I(f"s_lshl_b32 s52, s51, 1")
        I(f"s_add_u32 s52, s52, {KV_OFF}")
        I(f"v_add_f32_dpp v{vG0}, v{vG0}, v{vG0} quad_perm:[2,3,0,1] row_mask:0xf bank_mask:0xf")
        I(f"s_add_u32 s53, s51, 65536")
        I(f"s_add_u32 s54, s52, 131072")
        I(f"v_add_f32_dpp v{vG0}, v{vG0}, v{vG0} row_half_mirror row_mask:0xf bank_mask:0xf")
        I(f"v_mov_b32 v{t0}, 0")
        I(f"global_load_dwordx2 v[{GX}:{GX+1}], v{t0}, s[100:101] sc0 sc1")
        I(f"v_add_f32_dpp v{vG0}, v{vG0}, v{vG0} row_mirror row_mask:0xf bank_mask:0xf")
        if isA:
            acc = ACC[1]
            for e in range(8): I(f"v_cvt_pk_bf16_f32 v{PK+e}, v{acc+2*e}, v{acc+2*e+1}")
            I(f"buffer_store_dwordx4 v[{PK}:{PK+3}], v{vST}, s[{SWS}:{SWS+3}], s52 offen{WTF}")
            I(f"buffer_store_dwordx4 v[{PK+4}:{PK+7}], v{vST}, s[{SWS}:{SWS+3}], s54 offen{WTF}")
            acc = ACC[0]
            for e in range(16): I(f"v_mul_f32 v{acc+e}, s{sQS}, v{acc+e}")
            for e in range(8): I(f"v_cvt_pk_bf16_f32 v{PK+8+e}, v{acc+2*e}, v{acc+2*e+1}")
            I(f"buffer_store_dwordx4 v[{PK+8}:{PK+11}], v{vST}, s[{SWS}:{SWS+3}], s51 offen{WTF}")
            I(f"buffer_store_dwordx4 v[{PK+12}:{PK+15}], v{vST}, s[{SWS}:{SWS+3}], s53 offen{WTF}")
        else:
            acc = ACC[0]
            for e in range(8): I(f"v_cvt_pk_bf16_f32 v{PK+8+e}, v{acc+2*e}, v{acc+2*e+1}")
            I(f"buffer_store_dwordx4 v[{PK+8}:{PK+11}], v{vSV}, s[{SWS}:{SWS+3}], s52 offen{WTF}")
            I(f"buffer_store_dwordx4 v[{PK+12}:{PK+15}], v{vSV}, s[{SWS}:{SWS+3}], s52 offen offset:512{WTF}")
        for k in range(4): I(f"v_readlane_b32 s{50+k}, v{vG0}, {16*k}")
        for ct in range(2):
            b = ACC[1] + 4*ct
            I(f"ds_read_b64_tr_b16 v[{b}:{b+1}], v{vTT[ct]}")
            I(f"ds_read_b64_tr_b16 v[{b+2}:{b+3}], v{vTT[ct]} offset:1024")
        I(f"v_mov_b32 v{vG0}, s50")
        I(f"v_add_f32 v{vG0}, s51, v{vG0}")
        I(f"v_add_f32 v{vG0}, s52, v{vG0}")
        I(f"v_add_f32 v{vG0}, s53, v{vG0}")
        I(f"v_mul_f32 v{vG0}, s{sL2E}, v{vG0}")
        I(f"v_exp_f32 v{vG0}, -v{vG0}")
        I(f"s_lshl_b32 s{sT1}, s2, 3")
        I(f"v_add_f32 v{vG0}, 1.0, v{vG0}")
        I(f"v_rcp_f32 v{vG0}, v{vG0}")
        I(f"s_add_u32 s{sT1}, s{sT1}, s{sW}")
        I(f"s_lshl_b32 s{sT1}, s{sT1}, 2")
        I(f"s_add_u32 s{sT1}, s{sT1}, {G_OFF}")
        I(f"s_mov_b64 exec, 1")
        I(f"buffer_store_dword v{vG0}, v{t0}, s[{SWS}:{SWS+3}], s{sT1} offen{WTF}")
        I(f"s_mov_b64 exec, -1")
        I(f"s_mul_i32 s{sT2}, s{sW}, 288")
        I(f"s_add_u32 s{sT2}, s{sT2}, s{sTR}")
        I(f"s_lshl_b32 s{sT2}, s{sT2}, 10")
        I(f"s_cmp_ge_u32 s{sTR}, 144")
        I(f"s_cselect_b32 s{sT2}, 0x40000000, s{sT2}")
        I(f"s_add_u32 s56, s{sT2}, {WF_OFF}")
        I(f"s_add_u32 s57, s{sT2}, {WF_OFF + 144*1024}")
        I("s_waitcnt lgkmcnt(0)")
        sweep(1)
        I(f"s_branch P1{ty}_EPI")
        a.label(f"P1{ty}_F1")
        I(f"s_cmp_lg_u32 s{sW}, 0")
        I(f"s_cbranch_scc1 P1{ty}_F1C")
        I(f"s_mov_b32 s51, 0x40000")
        a.label(f"P1{ty}_F1A")
        I(f"v_readfirstlane_b32 s50, v{GX}")
        I(f"v_mov_b32 v{t0}, 0")
        I(f"s_lshl_b32 s{sT2}, s2, 6")
        I(f"s_add_u32 s{sT2}, s{sT2}, {FL_OFF}")
        I("s_nop 1")
        I(f"s_cmp_lg_u32 s50, 0")
        I(f"s_cbranch_scc1 P1{ty}_F1B")
        I(f"s_cmp_eq_u32 s51, 0")
        I(f"s_cbranch_scc1 P1{ty}_F1B")
        I(f"s_sub_u32 s51, s51, 1")
        I(f"global_load_dwordx2 v[{GX}:{GX+1}], v{t0}, s[100:101] sc0 sc1")
        I("s_waitcnt vmcnt(0)")
        I(f"s_branch P1{ty}_F1A")
        a.label(f"P1{ty}_F1B")
        I("s_mov_b64 exec, 1")
        I(f"buffer_store_dwordx2 v[{GX}:{GX+1}], v{t0}, s[{SWS}:{SWS+3}], s{sT2} offen sc0 sc1")
        I("s_mov_b64 exec, -1")
        a.label(f"P1{ty}_F1C")
        I(f"s_branch P1{ty}_BACK1")
        a.label(f"P1{ty}_X1")
        I(f"s_cmp_ge_u32 s{sTR}, 144")
        I(f"s_cbranch_scc1 P1{ty}_BACK0")
        I(f"s_lshl_b32 s{sT1}, s{sTR}, 14")
        I(f"s_lshl_b32 s{sT2}, s{sW}, 7")
        I(f"s_add_u32 s{sT1}, s{sT1}, s{sT2}")
        I(f"s_add_u32 s{sT2}, s{sT1}, 8192")
        I(f"s_cmp_ge_u32 s{sTR}, 32")
        I(f"s_cbranch_scc1 P1{ty}_TW2")
        I(f"s_mov_b32 m0, s98")
        I("s_nop 0")
        I(f"buffer_load_dwordx4 v{vTD}, s[{SWO}:{SWO+3}], s{sT1} offen lds")
        I(f"s_add_u32 m0, s98, 1024")
        I("s_nop 0")
        I(f"buffer_load_dwordx4 v{vTD}, s[{SWO}:{SWO+3}], s{sT2} offen lds")
        I(f"s_branch P1{ty}_BACK0")
        a.label(f"P1{ty}_TW2")
        I(f"s_sub_u32 s{sT1}, s{sT1}, {32*16384}")
        I(f"s_mov_b32 m0, s98")
        I(f"s_sub_u32 s{sT2}, s{sT2}, {32*16384}")
        I(f"buffer_load_dwordx4 v{vTD}, s[{SW2}:{SW2+3}], s{sT1} offen lds")
        I(f"s_add_u32 m0, s98, 1024")
        I("s_nop 0")
        I(f"buffer_load_dwordx4 v{vTD}, s[{SW2}:{SW2+3}], s{sT2} offen lds")
        I(f"s_branch P1{ty}_BACK0")
        a.label(f"P1{ty}_PF")
        I(f"s_cmp_ge_u32 s{sW}, 2")
        I(f"s_cbranch_scc1 P1{ty}_BACK0")
        I(f"s_cmp_eq_u32 s{sW}, 0")
        I(f"s_cselect_b32 s{sT1}, s{sCOL[1][0]}, s{sCOL[1][1]}")
        I(f"s_bfe_u32 s{sT2}, s2, 0x30003")
        I(f"s_mul_i32 s{sT2}, s{sT2}, {64*3584}")
        I(f"s_add_u32 s{sT1}, s{sT1}, s{sT2}")
        I(f"v_mul_u32_u24 v{t0}, 3584, v{vL}")
        I(f"buffer_load_dword v27, v{t0}, s[{SW1}:{SW1+3}], s{sT1} offen")
        I(f"s_branch P1{ty}_BACK0")
        a.label(f"P1{ty}_EPI")
        stamp(a, 3)
        if isA:
            I(f"s_add_u32 s{sT0}, s98, {XAB}")
            I(f"v_add_u32 v{t0}, s{sT0}, v{vST}")
            I(f"ds_write_b128 v{t0}, v[{ACC[3]+8}:{ACC[3]+11}]")
            I(f"ds_write_b128 v{t0}, v[{ACC[3]+12}:{ACC[3]+15}] offset:1024")
            I(f"v_xor_b32 v{t1}, 8192, v{t0}")
        for p in range(2):
            acc = ACC[2 + p]
            if p == 1:
                I(f"s_mul_i32 s{sT2}, s{sRT}, {144*1024}")
                I(f"s_add_u32 s{sT2}, s{sT2}, {AF_OFF + 32*1024}")
                I(f"s_lshl_b32 s{sT1}, s{sHF}, 11")
                I(f"s_add_u32 s{sT1}, s{sT1}, s{sT2}")
            I(f"{MF} v[{acc}:{acc+15}], v[{BIAS+2*p}:{BIAS+2*p+3}], v[{BONE}:{BONE+3}], v[{acc}:{acc+15}]")
        jobs = [(0, 0), (0, 1)] + ([("S", 0)] if isA else [(1, 0), (1, 1)])
        for n, (p, hh) in enumerate(jobs):
            if p == "S":
                I(f"s_lshl_b32 s7, s{sCOL[1][1]}, 5")
                I(f"s_add_u32 s7, s7, s{sT2}")
                I(f"s_lshl_b32 s{sT0}, s{sHF}, 10")
                I(f"s_add_u32 s{76+n}, s7, s{sT0}")
            else:
                I(f"s_lshl_b32 s7, s{sCOL[1][p]}, 5")
                I(f"s_add_u32 s7, s7, s{sT1}")
                I(f"s_add_u32 s{76+n}, s7, {1024*hh}")
        if isA: I(f"s_mov_b32 s79, 0x40000000")
        tb = [ACC[0], ACC[0] + 8, 44]
        def mish8(acc, pk):
            vp = lambda r: f"v[{r}:{r+1}]"
            prs = range(4)
            T = lambda e, kk: tb[kk] + 2*e
            for e in prs: I(f"v_pk_mul_f32 {vp(T(e,0))}, {vp(acc+2*e)}, s[{sL2E}:{sL2E+1}]")
            for e in range(8): I(f"v_min_f32 v{tb[0]+e}, s{s30}, v{tb[0]+e}")
            for e in range(8): I(f"v_exp_f32 v{tb[0]+e}, v{tb[0]+e}")
            for e in prs: I(f"v_pk_add_f32 {vp(T(e,1))}, {vp(T(e,0))}, s[{sTWO}:{sTWO+1}]")
            for e in prs: I(f"v_pk_mul_f32 {vp(T(e,1))}, {vp(T(e,0))}, {vp(T(e,1))}")
            for e in prs: I(f"v_pk_add_f32 {vp(T(e,2))}, {vp(T(e,1))}, s[{sTWO}:{sTWO+1}]")
            for e in range(8): I(f"v_rcp_f32 v{tb[2]+e}, v{tb[2]+e}")
            for e in prs: I(f"v_pk_mul_f32 {vp(T(e,1))}, {vp(T(e,1))}, {vp(T(e,2))}")
            for e in prs: I(f"v_pk_mul_f32 {vp(T(e,0))}, {vp(acc+2*e)}, {vp(T(e,1))}")
            for e in range(4): I(f"v_cvt_pk_bf16_f32 v{pk+e}, v{tb[0]+2*e}, v{tb[0]+2*e+1}")
        for n, (p, hh) in enumerate(jobs):
            pk = HKR[n]
            if isA and n == 1:
                I("s_waitcnt lgkmcnt(0)")
                I("s_barrier")
                I(f"ds_read_b128 v[36:39], v{t1}")
                I(f"ds_read_b128 v[40:43], v{t1} offset:1024")
            if p == "S":
                I("s_waitcnt lgkmcnt(0)")
                for e in range(8): I(f"v_add_f32 v{ACC[3]+e}, v{ACC[3]+e}, v{36+e}")
                mish8(ACC[3], pk)
            else:
                mish8(ACC[2 + p] + 8*hh, pk)
        for r in range(8): I(f"v_mov_b32 v{140+r}, v{ACC[1]+r}")
        stamp(a, 4)
        I("s_branch P2_ATT")

    path("A")
    a.label("P1_B")
    path("B")

    a.label("P2_ATT")
    sCNT, sNMAX, sFIRST, sVM = 50, 51, 52, 54
    vT, vLO, vKA, vVA, vG, vM, vT2 = 2, 11, 4, 5, 6, 7, 8
    Q, NEGM, S, O, P, KF, VF = 12, 16, [32, 48], 64, 80, [88, 92], [96, 104]
    I(f"s_mov_b32 s{sVM}, 0xffff")
    I(f"s_mov_b32 s{sVM+1}, 0xffff")
    I(f"v_and_b32 v{vT}, 27, v{vL}")
    I(f"v_cmp_eq_u32 vcc, 16, v{vT}")
    I(f"v_mov_b32 v{vT}, 0x3f803f80")
    I(f"s_lshl_b32 s{sT0}, s{sW}, 10")
    I(f"v_cndmask_b32 v{VF[0]}, 0, v{vT}, vcc")
    for r in range(1, 16): I(f"v_mov_b32 v{VF[0]+r}, v{VF[0]}")
    I(f"s_add_u32 s{sT0}, s{sT0}, {QL}")
    I(f"v_add_u32 v{vT}, s{sT0}, v{vLO}")
    I(f"v_and_b32 v{vT2}, 31, v{vL}")
    I(f"v_lshlrev_b32 v{vT2}, 2, v{vT2}")
    I(f"s_lshl_b32 s{sT0}, s{sW}, 7")
    I(f"s_add_u32 s{sT0}, s{sT0}, {GL}")
    I(f"v_add_u32 v{vT2}, s{sT0}, v{vT2}")
    for r in range(4): I(f"v_mov_b32 v{148+r}, -1")
    I(f"s_mov_b32 s{sNMAX}, 1")
    I(f"s_mov_b32 s53, 8")
    I(f"s_mov_b32 s{sFIRST}, {Y2IT}")
    if ATPRIO: I("s_setprio 2")
    I("s_barrier")
    stamp(a, 5)
    I(f"ds_read_b128 v[{Q}:{Q+3}], v{vT}")
    I(f"ds_read_b32 v{vG}, v{vT2}")
    for n in range(4):
        if n == 3:
            I(f"s_cmp_lt_u32 s2, 128")
            I(f"s_cbranch_scc1 P2_NOH3")
        I(f"buffer_store_dwordx4 v[{HKR[n]}:{HKR[n]+3}], v{vLO}, s[{SWS}:{SWS+3}], s{76+n} offen{WTF}")
    a.label("P2_NOH3")
    I(f"buffer_store_dwordx4 v[148:151], v{vLO}, s[{SWS}:{SWS+3}], s97 offen{WTF}")
    I(f"s_cmp_ge_u32 s{sTR}, 144")
    I(f"s_cbranch_scc1 P2_NOWF")
    I(f"buffer_store_dwordx4 v[140:143], v{vLO}, s[{SWS}:{SWS+3}], s56 offen{WTF}")
    I(f"buffer_store_dwordx4 v[144:147], v{vLO}, s[{SWS}:{SWS+3}], s57 offen{WTF}")
    a.label("P2_NOWF")
    a.label("P2_MAXPASS")
    I(f"v_mov_b32 v{vKA}, v{vLO}")
    I(f"v_mov_b32 v{vM}, 0xff800000")
    I(f"s_mov_b32 s{sCNT}, s{sNMAX}")
    a.label("P2_MAXLOOP")
    I(f"ds_read_b128 v[{KF[0]}:{KF[0]+3}], v{vKA}")
    I(f"v_add_u32 v{vKA}, 2048, v{vKA}")
    I("s_waitcnt lgkmcnt(0)")
    I(f"{MF} v[{S[0]}:{S[0]+15}], v[{KF[0]}:{KF[0]+3}], v[{Q}:{Q+3}], 0")
    I("s_nop 11")
    for r in range(8): I(f"v_max3_f32 v{vM}, v{S[0]+2*r}, v{S[0]+2*r+1}, v{vM}")
    I(f"s_sub_u32 s{sCNT}, s{sCNT}, 1")
    I(f"s_cmp_lg_u32 s{sCNT}, 0")
    I("s_cbranch_scc1 P2_MAXLOOP")
    I(f"v_mov_b32 v{vT}, v{vM}")
    I(f"v_mov_b32 v{vKA}, v{vLO}")
    I(f"v_and_b32 v{vT2}, 15, v{vL}")
    I(f"v_permlane32_swap_b32 v{vM}, v{vT}")
    I(f"v_lshlrev_b32 v{vVA}, 4, v{vT2}")
    I(f"v_lshrrev_b32 v{vT2}, 5, v{vL}")
    I(f"v_max_f32 v{vM}, v{vM}, v{vT}")
    I(f"v_lshl_add_u32 v{vVA}, v{vT2}, 8, v{vVA}")
    I(f"v_add_u32 v{vVA}, 1024, v{vVA}")
    def rdK(t, buf): I(f"ds_read_b128 v[{KF[buf]}:{KF[buf]+3}], v{vKA} offset:{2048*t}")
    def rdV(t, buf):
        I(f"s_mov_b64 exec, s[{sVM}:{sVM+1}]")
        I(f"ds_read_b128 v[{VF[buf]}:{VF[buf]+3}], v{vVA} offset:{2048*t}")
        I(f"ds_read_b128 v[{VF[buf]+4}:{VF[buf]+7}], v{vVA} offset:{2048*t+512}")
        I(f"s_mov_b64 exec, -1")
    rdK(0, 0); rdK(1, 1); rdV(0, 0)
    for r in range(16): I(f"v_sub_f32 v{NEGM+r}, 0, v{vM}")
    for r in range(4, 8): I(f"v_mov_b32 v{P+r}, 0")
    I("s_waitcnt lgkmcnt(3)")
    I(f"{MF} v[{S[0]}:{S[0]+15}], v[{KF[0]}:{KF[0]+3}], v[{Q}:{Q+3}], v[{NEGM}:{NEGM+15}]")
    for r in range(16): I(f"v_mov_b32 v{O+r}, 0")
    I(f"s_mov_b32 s{sCNT}, 8")
    a.label("P2_LOOP")
    for t in range(8):
        cur, nxt = t % 2, (t + 1) % 2
        sc = S[cur]
        e = lambda k: I(f"v_exp_f32 v{sc+k}, v{sc+k}")
        c = lambda k: I(f"v_cvt_pk_bf16_f32 v{P+k}, v{sc+2*k}, v{sc+2*k+1}")
        I("s_waitcnt lgkmcnt(2)")
        I(f"{MF} v[{S[nxt]}:{S[nxt]+15}], v[{KF[nxt]}:{KF[nxt]+3}], v[{Q}:{Q+3}], v[{NEGM}:{NEGM+15}]")
        rdK(t + 2, cur)
        for k in range(5): e(k)
        I(f"{MF} v[{O}:{O+15}], v[{VF[nxt]+4}:{VF[nxt]+7}], v[{P+4}:{P+7}], v[{O}:{O+15}]")
        rdV(t + 1, nxt)
        c(0); c(1)
        for k in range(5, 10): e(k)
        c(2); c(3); e(10); e(11)
        I("s_waitcnt lgkmcnt(3)")
        I(f"{MF} v[{O}:{O+15}], v[{VF[cur]}:{VF[cur]+3}], v[{P}:{P+3}], v[{O}:{O+15}]")
        c(4); c(5)
        for k in range(12, 16): e(k)
        c(6); c(7)
    I(f"v_add_u32 v{vKA}, 0x4000, v{vKA}")
    I(f"v_add_u32 v{vVA}, 0x4000, v{vVA}")
    I(f"s_cmp_lg_u32 s53, s{sCNT}")
    I("s_cbranch_scc1 P2_NOBAR0")
    I(f"s_mov_b32 s53, 100")
    I("s_barrier")
    a.label("P2_NOBAR0")
    I(f"s_cmp_lg_u32 s{sFIRST}, s{sCNT}")
    I("s_cbranch_scc1 P2_NOBAR")
    I(f"s_mov_b32 s{sFIRST}, 100")
    I("s_waitcnt vmcnt(0)")
    I("s_barrier")
    stamp(a, 6)
    a.label("P2_NOBAR")
    if ATPRIO:
        I(f"s_cmp_lg_u32 s{sCNT}, 5")
        I("s_cbranch_scc1 P2_NP1")
        I("s_setprio 1")
        a.label("P2_NP1")
        I(f"s_cmp_lg_u32 s{sCNT}, 2")
        I("s_cbranch_scc1 P2_NP2")
        I("s_setprio 0")
        a.label("P2_NP2")
    I(f"s_sub_u32 s{sCNT}, s{sCNT}, 1")
    I(f"s_cmp_lg_u32 s{sCNT}, 0")
    I("s_cbranch_scc1 P2_LOOP")
    I(f"{MF} v[{O}:{O+15}], v[{VF[1]+4}:{VF[1]+7}], v[{P+4}:{P+7}], v[{O}:{O+15}]")
    I("s_waitcnt lgkmcnt(0)")
    I("s_nop 11")
    stamp(a, 7)
    I(f"v_mov_b32 v{vT}, v{O+8}")
    I(f"v_rcp_f32 v{vT2}, v{O+8}")
    for r in range(8): I(f"v_fma_f32 v{vT}, v{O+r}, 0, v{vT}")
    I(f"v_cmp_gt_f32 vcc, {fhex(2.0**40)}, v{vT}")
    I(f"v_mul_f32 v{vT2}, v{vT2}, v{vG}")
    I("s_nop 3")
    I(f"s_cmp_eq_u64 vcc, -1")
    I("s_cbranch_scc1 P2_OK")
    I(f"s_cmp_eq_u32 s{sNMAX}, 64")
    I("s_cbranch_scc1 P2_OK")
    I(f"s_mov_b32 s{sNMAX}, 64")
    I("s_branch P2_MAXPASS")
    a.label("P2_OK")
    for r in range(8): I(f"v_mul_f32 v{O+r}, v{O+r}, v{vT2}")
    for r in range(4): I(f"v_cvt_pk_bf16_f32 v{P+r}, v{O+2*r}, v{O+2*r+1}")
    I(f"buffer_store_dwordx4 v[{P}:{P+3}], v{vLO}, s[{SWS}:{SWS+3}], s97 offen sc0 sc1")
    stamp(a, 8)
    stamp_flush(a, 9, SWS, sW, 0)
    I("s_endpgm")

    COMP[0] = False
    a.label("P2_SHADOW")
    sJ = 63
    sN = 8
    SO = 12
    sA0, sA1, sB0, sB1 = 16, 17, 18, 19
    sKV, sM0 = 20, 21
    sOC, sOR, sWA0, sWA1, sOB0, sOB1, sLS, sOB2, sOB3 = 22, 23, 24, 25, 26, 27, 28, 29, 30
    sTO = 31
    vLO = 3
    I(f"s_load_dwordx2 s[{SO}:{SO+1}], s[0:1], 64")
    I(f"v_mov_b32 v{vLO}, v{vST}")
    I(f"v_mov_b32 v2, 0")
    I(f"s_mov_b32 s{sTO}, 0x40000")
    I(f"s_and_b32 s{sT0}, s2, 6")
    I(f"s_and_b32 s{sT1}, s2, 1")
    I(f"s_lshl_b32 s{sT1}, s{sT1}, 6")
    I(f"s_or_b32 s{sT0}, s{sT0}, s{sT1}")
    I(f"v_and_b32 v6, 1, v{vL}")
    I(f"v_bfe_u32 v7, v{vL}, 1, 3")
    I(f"v_lshl_or_b32 v6, v7, 3, v6")
    I(f"v_bfe_u32 v7, v{vL}, 4, 1")
    I(f"v_lshl_or_b32 v6, v7, 7, v6")
    I(f"v_or_b32 v6, s{sT0}, v6")
    I(f"s_lshl_b32 s{sT0}, s{sQB}, 5")
    I(f"v_and_b32 v7, 31, v{vL}")
    I(f"v_add_u32 v7, s{sT0}, v7")
    I(f"v_cmp_gt_u32 vcc, 32, v{vL}")
    I(f"s_lshl_b32 s{sKV}, s{sH}, 17")
    I(f"s_lshl_b32 s{sM0}, s{sJ}, 10")
    I(f"v_cndmask_b32 v6, v7, v6, vcc")
    I(f"v_lshlrev_b32 v6, 6, v6")
    I(f"s_add_u32 s{sKV}, s{sKV}, s{sM0}")
    I(f"s_add_u32 s{sKV}, s{sKV}, {KV_OFF}")
    I(f"s_lshl_b32 s{sT2}, s2, 6")
    I(f"s_add_u32 s{sT2}, s{sT2}, {FL_OFF}")
    I(f"s_mov_b32 s{sLS}, {FL_OFF}")
    I(f"global_load_dwordx2 v[4:5], v2, s[100:101] sc0 sc1")
    I(f"buffer_load_dwordx2 v[8:9], v6, s[{SWS}:{SWS+3}], s{sLS} offen sc0 sc1")
    I("s_waitcnt vmcnt(0) lgkmcnt(0)")
    I("s_barrier")
    stamp(a, 2)
    srd(a, SO, 2048*512*2)
    a.label("P2_F1CHK")
    I(f"v_readfirstlane_b32 s{sN}, v4")
    I(f"v_readfirstlane_b32 s{sN+1}, v5")
    I("s_nop 1")
    I(f"v_cmp_eq_u64 vcc, s[{sN}:{sN+1}], v[8:9]")
    I(f"s_cmp_eq_u32 s{sN}, 0")
    I("s_cbranch_scc1 P2_F1RE")
    I("s_nop 3")
    I(f"s_cmp_eq_u64 vcc, -1")
    I("s_cbranch_scc1 P2_F1GOT")
    a.label("P2_F1RE")
    I(f"s_cmp_eq_u32 s{sTO}, 0")
    I(f"s_cbranch_scc1 P2_F1GOT")
    I(f"s_sub_u32 s{sTO}, s{sTO}, 1")
    I(f"s_sleep {POLLS}")
    I(f"global_load_dwordx2 v[4:5], v2, s[100:101] sc0 sc1")
    I(f"buffer_load_dwordx2 v[8:9], v6, s[{SWS}:{SWS+3}], s{sLS} offen sc0 sc1")
    I("s_waitcnt vmcnt(0)")
    I("s_branch P2_F1CHK")
    a.label("P2_F1GOT")
    stamp(a, 3)
    def kvdma():
        I(f"s_mov_b32 m0, s{sM0}")
        I(f"s_add_u32 s{sM0}, s{sM0}, 4096")
        I(f"buffer_load_dwordx4 v{vLO}, s[{SWS}:{SWS+3}], s{sKV} offen lds")
        I(f"s_add_u32 s{sKV}, s{sKV}, 4096")
    I(f"s_lshl_b32 s{sT0}, s{sH}, 6")
    I(f"s_lshl_b32 s{sT1}, s{sQB}, 3")
    I(f"s_add_u32 s{sT0}, s{sT0}, s{sT1}")
    I(f"s_lshl_b32 s{sT1}, s{sJ}, 1")
    I(f"s_add_u32 s{sT0}, s{sT0}, s{sT1}")
    I(f"s_lshl_b32 s{sT0}, s{sT0}, 10")
    I(f"s_lshl_b32 s{sT1}, s{sJ}, 11")
    I(f"s_add_u32 m0, s{sT1}, {QL}")
    I(f"s_lshl_b32 s{sT1}, s{sQB}, 10")
    I(f"buffer_load_dwordx4 v{vLO}, s[{SWS}:{SWS+3}], s{sT0} offen lds")
    I(f"buffer_load_dwordx4 v{vLO}, s[{SWS}:{SWS+3}], s{sT0} offen offset:1024 lds")
    I(f"s_mov_b32 m0, {GL}")
    I(f"s_add_u32 s{sT1}, s{sT1}, {G_OFF}")
    I(f"buffer_load_dwordx4 v{vLO}, s[{SWS}:{SWS+3}], s{sT1} offen lds")
    for half in range(3):
        I(f"s_mov_b32 s{sCNT}, {(KV0, 16 - KV0, 16)[half]}")
        a.label(f"P2_KVLOOP{half}")
        kvdma()
        I(f"s_sub_u32 s{sCNT}, s{sCNT}, 1")
        I(f"s_cmp_lg_u32 s{sCNT}, 0")
        I(f"s_cbranch_scc1 P2_KVLOOP{half}")
        if half == 0:
            I(f"s_cmp_eq_u32 s{sIT}, 0")
            I("s_cbranch_scc1 P2_NOXA")
            I("s_barrier")
            a.label("P2_NOXA")
        if half == 1:
            I(f"s_waitcnt vmcnt({16 - KV0})")
            I("s_barrier")
            stamp(a, 4)
    I("s_waitcnt vmcnt(0)")
    I("s_barrier")
    I(f"s_lshr_b32 s{sT0}, s{sJ}, 1")
    I(f"s_lshl_b32 s{sT1}, s{sQB}, 1")
    I(f"s_add_u32 s{sA0}, s{sT1}, s{sT0}")
    I(f"s_xor_b32 s{sA1}, s{sA0}, 1")
    I(f"s_and_b32 s{sT0}, s{sJ}, 1")
    I(f"s_lshl_b32 s{sT1}, s{sH}, 1")
    I(f"s_add_u32 s{sB0}, s{sT1}, s{sT0}")
    I(f"s_xor_b32 s{sB1}, s{sB0}, 1")
    I(f"s_mov_b32 s{sOC}, s{sA0}")
    I(f"s_mov_b32 s{sOR}, s{sB0}")
    I(f"s_lshl_b32 s32, s{sB0}, 7")
    I(f"s_add_u32 s32, s32, {G_OFF}")
    I(f"s_lshl_b32 s33, s{sB1}, 7")
    I(f"s_add_u32 s33, s33, {G_OFF}")
    I(f"s_lshl_b32 s{sT0}, s{sJ}, 13")
    for d, r in ((sWA0, sA0), (sWA1, sA1)):
        I(f"s_mul_i32 s{d}, s{r}, {144*1024}")
        I(f"s_add_u32 s{d}, s{d}, s{sT0}")
        I(f"s_add_u32 s{d}, s{d}, {WF_OFF}")
    for d, r in ((sOB0, sB0), (sOB1, sB1)):
        I(f"s_lshl_b32 s{d}, s{r}, 15")
        I(f"s_add_u32 s{d}, s{d}, s{sT0}")
        I(f"s_add_u32 s{d}, s{d}, {OF_OFF}")
    I(f"s_mul_i32 s{sT0}, s{sJ}, {28*1024}")
    for r, off in ((sA0, WF_OFF), (sA1, WF_OFF), (sB0, AF_OFF), (sB1, AF_OFF)):
        I(f"s_mul_i32 s{r}, s{r}, {144*1024}")
        I(f"s_add_u32 s{r}, s{r}, s{sT0}")
        I(f"s_add_u32 s{r}, s{r}, {off + 32*1024}")
    ACC2, FR = 8, 72
    I(f"v_lshlrev_b32 v6, 6, v{vL}")
    I(f"s_add_u32 s{sT2}, s{sT2}, {F2_OFF - FL_OFF}")
    I(f"s_mov_b32 s{sLS}, {F2_OFF}")
    I("s_waitcnt vmcnt(0)")
    I("s_barrier")
    stamp(a, 5)
    I(f"s_cmp_lg_u32 s{sJ}, 0")
    I("s_cbranch_scc1 P2_F2POLL")
    I("s_mov_b64 exec, 1")
    I(f"buffer_store_dwordx2 v[4:5], v2, s[{SWS}:{SWS+3}], s{sT2} offen sc0 sc1")
    I("s_mov_b64 exec, -1")
    a.label("P2_F2POLL")
    for k in range(4):
        I(f"s_add_u32 s{sT0}, s{sLS}, {4096*k}")
        I(f"buffer_load_dwordx2 v[{FR+2*k}:{FR+2*k+1}], v6, s[{SWS}:{SWS+3}], s{sT0} offen sc0 sc1")
    I("s_waitcnt vmcnt(0)")
    for k in range(4):
        I(f"v_cmp_eq_u64 s[{52+2*k}:{53+2*k}], s[{sN}:{sN+1}], v[{FR+2*k}:{FR+2*k+1}]")
    I("s_nop 4")
    I("s_and_b64 s[52:53], s[52:53], s[54:55]")
    I("s_and_b64 s[56:57], s[56:57], s[58:59]")
    I("s_and_b64 s[52:53], s[52:53], s[56:57]")
    I(f"s_cmp_eq_u64 s[52:53], -1")
    I("s_cbranch_scc1 P2_F2GOT")
    I(f"s_cmp_eq_u32 s{sTO}, 0")
    I(f"s_cbranch_scc1 P2_F2GOT")
    I(f"s_sub_u32 s{sTO}, s{sTO}, 1")
    I(f"s_sleep 16")
    I(f"s_branch P2_F2POLL")
    a.label("P2_F2GOT")
    stamp(a, 6)
    I(f"v_and_b32 v2, 31, v{vL}")
    I(f"v_lshlrev_b32 v2, 2, v2")
    I(f"buffer_load_dword v4, v2, s[{SWS}:{SWS+3}], s32 offen")
    I(f"buffer_load_dword v5, v2, s[{SWS}:{SWS+3}], s33 offen")
    def ld(u):
        fb = FR + 16*u
        for q, r in enumerate((sA0, sB0, sA1, sB1)):
            I(f"buffer_load_dwordx4 v[{fb+4*q}:{fb+4*q+3}], v{vLO}, s[{SWS}:{SWS+3}], s{r} offen offset:{1024*u}")
    def mm4(A0, A1, B0, B1):
        for tau, (A, B) in ((3, (A1, B1)), (2, (A1, B0)), (1, (A0, B1)), (0, (A0, B0))):
            acc = ACC2 + 16*tau
            I(f"{MF} v[{acc}:{acc+15}], v[{A}:{A+3}], v[{B}:{B+3}], v[{acc}:{acc+15}]")
    def mmf(fb): mm4(fb, fb+8, fb+4, fb+12)
    for u in range(4): ld(u)
    I(f"s_setprio {SHPRIO2}")
    for r in range(64): I(f"v_mov_b32 v{ACC2+r}, 0")
    I(f"s_setprio 0")
    I(f"s_mov_b32 s{sCNT}, 6")
    a.label("P2_GLOOP")
    for r in (sA0, sA1, sB0, sB1): I(f"s_add_u32 s{r}, s{r}, 4096")
    for u in range(4):
        I("s_waitcnt vmcnt(12)")
        mmf(FR + 16*u)
        ld(u)
    I(f"s_sub_u32 s{sCNT}, s{sCNT}, 1")
    I(f"s_cmp_lg_u32 s{sCNT}, 0")
    I("s_cbranch_scc1 P2_GLOOP")
    WA, OB = 72, 104
    for u in range(4):
        I(f"s_waitcnt vmcnt({12 - 4*u})")
        mmf(FR + 16*u)
    for s_ in range(4):
        for q, r in ((0, sWA0), (1, sWA1)):
            b = WA + 8*s_ + 4*q
            I(f"buffer_load_dwordx4 v[{b}:{b+3}], v{vLO}, s[{SWS}:{SWS+3}], s{r} offen offset:{1024*s_}")
    I(f"s_lshl_b32 s{sLS}, s{sJ}, 13")
    I(f"s_add_u32 s{sLS}, s{sLS}, 131072")
    for q, r in ((0, sWA0), (1, sWA1)):
        I(f"s_add_u32 m0, s{sLS}, {4096*q}")
        I(f"s_add_u32 s{sT0}, s{r}, 4096")
        for s_ in range(4):
            I(f"buffer_load_dwordx4 v{vLO}, s[{SWS}:{SWS+3}], s{sT0} offen offset:{1024*s_} lds")
    stamp(a, 7)
    I(f"s_setprio {SHPRIO2}")
    I(f"v_sub_f32 v4, 1.0, v4")
    I(f"v_sub_f32 v5, 1.0, v5")
    for tau in (3, 2, 1, 0):
        for k in range(16): I(f"v_mul_f32 v{ACC2+16*tau+k}, v{ACC2+16*tau+k}, v{4 + (tau & 1)}")
    I(f"s_add_u32 s{sOB2}, s{sOB0}, 4096")
    I(f"s_add_u32 s{sOB3}, s{sOB1}, 4096")
    I(f"v_add_u32 v2, s{sLS}, v{vLO}")
    I(f"s_mul_i32 s{sT0}, s{sJ}, 12288")
    I(f"v_add_u32 v4, s{sT0}, v{vLO}")
    for r in (1, 2, 3):
        I(f"s_xor_b32 s{sT0}, s{sJ}, {r}")
        I(f"s_mul_i32 s{sT0}, s{sT0}, 12288")
        I(f"v_add_u32 v{4+r}, s{sT0}, v{vLO}")
    I("s_waitcnt vmcnt(0)")
    I("s_barrier")
    stamp(a, 8)
    def ldo(s_):
        for q in range(2):
            r = (sOB0, sOB1)[q] if s_ < 4 else (sOB2, sOB3)[q]
            b = OB + 8*s_ + 4*q
            I(f"buffer_load_dwordx4 v[{b}:{b+3}], v{vLO}, s[{SWS}:{SWS+3}], s{r} offen offset:{1024*(s_%4)} sc0 sc1")
    for s_ in range(8): ldo(s_)
    for s_ in range(8):
        b = OB + 8*s_
        I(f"s_waitcnt vmcnt({14 - 2*s_})")
        a.label(f"P2_CHK{s_}")
        I(f"v_max3_u32 v0, v{b}, v{b+1}, v{b+2}")
        I(f"v_max3_u32 v0, v{b+3}, v{b+4}, v0")
        I(f"v_max3_u32 v0, v{b+5}, v{b+6}, v0")
        I(f"v_max_u32 v0, v{b+7}, v0")
        I(f"v_cmp_eq_u32 vcc, -1, v0")
        if s_ >= 4: I("s_waitcnt lgkmcnt(%d)" % (2*(7 - s_)))
        else: I("s_nop 0")
        I("s_nop 2")
        I(f"s_cbranch_vccnz P2_RETRY{s_}")
        a.label(f"P2_GO{s_}")
        wa = WA + 8*(s_ % 4)
        mm4(wa, wa+4, b, b+4)
        if s_ < 4:
            for q in range(2):
                I(f"ds_read_b128 v[{wa+4*q}:{wa+4*q+3}], v2 offset:{4096*q + 1024*s_}")
    I(f"s_lshl_b32 s{sT0}, s{sOR}, 15")
    I(f"s_lshl_b32 s{sT1}, s{sOC}, 6")
    I(f"s_add_u32 s{sT0}, s{sT0}, s{sT1}")
    I(f"v_and_b32 v2, 31, v{vL}")
    I(f"v_lshlrev_b32 v2, 10, v2")
    I(f"v_lshrrev_b32 v{vL}, 5, v{vL}")
    I(f"v_lshl_add_u32 v2, v{vL}, 5, v2")
    I("s_nop 2")
    for r in (3, 2, 1):
        for q in range(4):
            b = ACC2 + 16*r + 4*q
            I(f"ds_write_b128 v{4+r}, v[{b}:{b+3}] offset:{(r-1)*4096 + q*1024}")
    I("s_waitcnt lgkmcnt(0)")
    I("s_barrier")
    for r in range(3):
        for q in range(4):
            b = FR + 16*r + 4*q
            I(f"ds_read_b128 v[{b}:{b+3}], v4 offset:{r*4096 + q*1024}")
    for r in range(3):
        I(f"s_waitcnt lgkmcnt({8-4*r})")
        for k in range(16): I(f"v_add_f32 v{ACC2+k}, v{ACC2+k}, v{FR+16*r+k}")
    for r in range(8): I(f"v_cvt_pk_bf16_f32 v{FR+r}, v{ACC2+2*r}, v{ACC2+2*r+1}")
    I(f"buffer_store_dwordx4 v[{FR}:{FR+3}], v2, s[{SO}:{SO+3}], s{sT0} offen")
    I(f"buffer_store_dwordx4 v[{FR+4}:{FR+7}], v2, s[{SO}:{SO+3}], s{sT0} offen offset:16")
    if DBG:
        I("s_waitcnt vmcnt(0)")
        I("s_mov_b32 s65, s72")
    stamp(a, 8)
    stamp_flush(a, 9, SWS, sW, 0)
    I("s_endpgm")
    for s_ in range(8):
        a.label(f"P2_RETRY{s_}")
        I(f"s_cmp_eq_u32 s{sTO}, 0")
        I(f"s_cbranch_scc1 P2_GO{s_}")
        I(f"s_sub_u32 s{sTO}, s{sTO}, 1")
        I(f"s_sleep {POLLS}")
        ldo(s_)
        I("s_waitcnt vmcnt(0)")
        I(f"s_branch P2_CHK{s_}")
    a.label("MK_END")
    I("s_endpgm")
    return a.text(), kdesc(KN, NV, 102, NV), 163840

if __name__ == "__main__":
    txt, kd, lds = gen()
    ref = open(f"cdna_kernels/{NAME}.s.ref").read().splitlines()
    head = [l for l in ref if l.startswith(";") and "@launch" not in l and "Override launch" not in l and "grid=ceil" not in l and "TODO" not in l][:12]
    s = "\n".join(head) + "\n" + f"; @launch grid=(256,1,1) block=(768,1,1) lds={lds}\n"
    s += '.amdgcn_target "amdgcn-amd-amdhsa--gfx950"\n.text\n' + txt + '.section .rodata,"a"\n' + kd
    open(sys.argv[1], "w").write(s)
```

```python
from common import *
PKMISH = opt("--pkmish", 1)
WTF = " sc0 sc1"
TRIT = opt("--trit", 4)
PFIT = opt("--pfit", 3)
TRIT2 = opt("--trit2", 6)
ROTX = opt("--rotx", 7)
ROTR = opt("--rotr", 1)
SHPRIO2 = opt("--shprio2", 3)
ATPRIO = opt("--atprio", 1)
POLLS = opt("--polls", 8)
MPF = opt("--mpf", 0)
DBG2 = opt('--dbg2', 0)
WT1 = opt('--wt1', 'sc0_sc1').replace('_', ' ')
EXP = opt('--exp', 0)
KV0 = opt('--kv0', 6)
NST = 5
GIT = opt('--git', 1)
DEP = opt('--dep', 3)
STG = 32768
SB0 = 98304
XAB = 131072
QL = 147456
GL = 155648
F1IT = opt('--f1it', 2)
Y2IT = opt('--y2it', 6)
F2_OFF = FL_OFF + 16384
KN = NAME + "_kernel"
MF = "v_mfma_f32_32x32x16_bf16"

_stamp = stamp
def stamp(a, idx, comp=True):
    if DBG2 and 1 <= idx <= 7 and COMP[0]: return
    _stamp(a, idx)
COMP = [True]
def gen():
    a = Asm()
    I = a.i
    a.raw(khead(KN))
    I("s_cmp_ge_u32 s2, 256")
    I("s_cbranch_scc1 MK_END")
    SX, SWQ, SWO, SW1, SB1, SW2, SG, SWS = 8, 12, 16, 20, 24, 28, 32, 36
    for s, off in [(SX, 0), (SWQ, 8), (SW1, 32), (SWO, 16), (SB1, 40), (SW2, 48), (SG, 56), (SWS, 80), (100, 72)]:
        I(f"s_load_dwordx2 s[{s}:{s+1}], s[0:1], {off}")
    srd(a, SX, 2048*512*2); srd(a, SWQ, 512*1536*2); srd(a, SW1, 512*1792*2); srd(a, SWS, WS_BYTES)
    sW, sC, sRB, sRT, sT0, sT1, sT2, sHF, sIT = 40, 41, 42, 43, 44, 45, 46, 47, 48
    sRS = 58
    sCOL = [[59, 60], [61, 62]]
    sL2E, sTWO, sQS, s30 = 84, 86, 5, 6
    sTR = 94
    sH, sQB = 95, 96
    vL = 1
    t0, t1, t2, t3 = 2, 3, 4, 5
    vXE, vXO, vWQ, vWF, vWS, vST, vSV, vTS = 6, 7, 8, 9, 10, 11, 12, 13
    vXR = [14, 15, 16, 17]
    vTP = [18]
    vTT = [20, 21]
    vTD = 22
    vG0, vG1 = 23, 24
    XF = [28, 32, 36, 40]
    WF = [[44 + 8*k, 48 + 8*k] for k in range(4)]
    ACC = [76, 92, 108, 124]
    PK = 44
    BIAS, BONE, GX, GW = 140, 146, 150, 154
    NV = 168
    HKR = [152, 156, 160, 164]
    I(f"v_and_b32 v{vL}, 63, v0")
    I(f"v_lshrrev_b32 v{t0}, 6, v0")
    I(f"s_and_b32 s{sT0}, s2, 1")
    I(f"v_readfirstlane_b32 s{sW}, v{t0}")
    I(f"s_lshl_b32 s{sT0}, s{sT0}, 3")
    I(f"s_bfe_u32 s{sT1}, s2, 0x30003")
    I(f"s_add_u32 s{sRB}, s{sT0}, s{sT1}")
    I(f"s_and_b32 s{sC}, s2, 6")
    I(f"s_bfe_u32 s{sT0}, s2, 0x10006")
    I(f"s_add_u32 s{sC}, s{sC}, s{sT0}")
    I(f"s_lshr_b32 s{sHF}, s{sW}, 2")
    I(f"s_and_b32 s{sT0}, s{sW}, 3")
    I(f"s_lshl_b32 s{sRT}, s{sRB}, 2")
    I(f"s_add_u32 s{sRT}, s{sRT}, s{sT0}")
    I(f"v_lshrrev_b32 v{t0}, 3, v{vL}")
    I(f"v_and_b32 v{t1}, 7, v{vL}")
    I(f"v_lshrrev_b32 v{t2}, 1, v{t0}")
    I(f"v_xor_b32 v{t3}, v{t1}, v{t2}")
    I(f"v_lshlrev_b32 v{vXE}, 10, v{t0}")
    I(f"v_lshl_add_u32 v{vXE}, v{t3}, 4, v{vXE}")
    I(f"v_xor_b32 v{vXO}, 64, v{vXE}")
    I(f"v_and_b32 v{t2}, 1, v{t2}")
    I(f"v_lshlrev_b32 v{t2}, 2, v{t2}")
    I(f"v_xor_b32 v{t3}, v{t1}, v{t2}")
    I(f"v_lshlrev_b32 v{t3}, 4, v{t3}")
    I(f"v_mul_u32_u24 v{vWQ}, 3072, v{t0}")
    I(f"v_add_u32 v{vWQ}, v{vWQ}, v{t3}")
    I(f"v_mul_u32_u24 v{vWF}, 3584, v{t0}")
    I(f"v_add_u32 v{vWF}, v{vWF}, v{t3}")
    I(f"v_lshl_add_u32 v{vTD}, v{t0}, 10, v{t3}")
    I(f"v_lshlrev_b32 v{vST}, 4, v{vL}")
    I(f"s_and_b32 s{sT0}, s2, 7")
    I(f"s_lshl_b32 s{sT0}, s{sT0}, 2")
    I(f"s_bfe_u32 s{sT1}, s2, 0x20003")
    I(f"s_add_u32 s{sH}, s{sT0}, s{sT1}")
    I(f"s_lshr_b32 s{sQB}, s2, 5")
    I(f"s_cmp_ge_u32 s2, 128")
    I("s_cbranch_scc1 P1_B")

    def path(ty):
        isA = ty == "A"
        a.vm = []; a.lg = []
        if isA:
            sw = [["Q", "K"], ["F", "S"]]
            I(f"s_lshl_b32 s{sCOL[0][0]}, s{sC}, 7")
            I(f"s_add_u32 s{sCOL[0][1]}, s{sCOL[0][0]}, 1024")
            I(f"s_add_u32 s{sCOL[1][0]}, s{sCOL[0][0]}, {16*128}")
            I(f"s_lshl_b32 s{sCOL[1][1]}, s{sC}, 6")
            I(f"s_add_u32 s{sCOL[1][1]}, s{sCOL[1][1]}, {24*128}")
            I(f"v_lshrrev_b32 v{t0}, 2, v{vL}")
            I(f"v_mul_u32_u24 v{vWS}, 3584, v{t0}")
            I(f"v_and_b32 v{t0}, 3, v{vL}")
            I(f"v_lshl_add_u32 v{vWS}, v{t0}, 4, v{vWS}")
        else:
            sw = [["V"], ["F", "F"]]
            I(f"s_lshl_b32 s{sCOL[0][0]}, s{sC}, 7")
            I(f"s_add_u32 s{sCOL[0][0]}, s{sCOL[0][0]}, 2048")
            I(f"s_lshl_b32 s{sCOL[1][0]}, s{sC}, 8")
            I(f"s_add_u32 s{sCOL[1][1]}, s{sCOL[1][0]}, 128")
        I(f"s_cmp_ge_u32 s{sW}, 8")
        I(f"s_cbranch_scc0 P1{ty}_COMP")
        sJ, sCH, sSTG, sXB = 63, 57, 58, 53
        sPB = [[49, 50], [51, 52]]
        sKXl, sKWl, sSXl, sSPl, sSSl = 97, 98, 54, 55, 56
        I(f"s_sub_u32 s{sJ}, s{sW}, 8")
        I(f"s_and_b32 s{sCH}, s2, {ROTX}")
        if ROTR:
            I(f"s_bfe_u32 s{sT0}, s2, 0x30003")
            I(f"s_and_b32 s{sT0}, s{sT0}, {ROTR}")
            I(f"s_add_u32 s{sCH}, s{sCH}, s{sT0}")
            I(f"s_and_b32 s{sCH}, s{sCH}, 7")
        I(f"s_mov_b32 s{sSTG}, {SB0}")
        I(f"s_lshl_b32 s{sXB}, s{sRB}, 2")
        I(f"s_add_u32 s{sXB}, s{sXB}, s{sJ}")
        I(f"s_lshl_b32 s{sXB}, s{sXB}, 15")
        I(f"s_mul_i32 s{sT1}, s{sJ}, {16*3072}")
        I(f"s_mul_i32 s{sT2}, s{sJ}, {16*3584}")
        for k in range(2):
            for p in range(len(sw[k])):
                I(f"s_add_u32 s{sPB[k][p]}, s{sCOL[k][p]}, s{sT2 if k else sT1}")
        I(f"s_mov_b32 s{sIT}, 0")
        I("s_waitcnt lgkmcnt(0)")
        stamp(a, 0)
        def dma(ms, mc, k, pb, oc, vo, S_):
            I(f"s_add_u32 m0, s{ms}, {mc}")
            if pb is None:
                I(f"s_add_u32 s7, s{k}, {oc}")
            else:
                I(f"s_add_u32 s7, s{k}, s{pb}")
                if oc: I(f"s_add_u32 s7, s7, {oc}")
            I(f"buffer_load_dwordx4 v{vo}, s[{S_}:{S_+3}], s7 offen lds")
        nds = [(0 if (k == 1 and EXP & 4) else 4) + sum(1 if kd == "S" else 2 for kd in sw[k]) for k in range(2)]
        for k in range(2):
            ld = 3584 if k else 3072
            a.label(f"P1{ty}_LD{k}")
            I(f"s_lshl_b32 s{sKXl}, s{sCH}, 7")
            I(f"s_add_u32 s{sKXl}, s{sKXl}, s{sXB}")
            I(f"s_mul_i32 s{sKWl}, s{sCH}, {64*ld}")
            I(f"s_lshl_b32 s{sT0}, s{sJ}, 10")
            I(f"s_add_u32 s{sSSl}, s{sSTG}, s{sT0}")
            I(f"s_add_u32 s{sSPl}, s{sSSl}, s{sT0}")
            I(f"s_lshl_b32 s{sT0}, s{sT0}, 1")
            I(f"s_add_u32 s{sSXl}, s{sSPl}, s{sT0}")
            if not (k == 1 and EXP & 4):
                for i in range(4): dma(sSXl, 1024*i, sKXl, None, 8192*i, vXO if i % 2 else vXE, SX)
            for p, kd in enumerate(sw[k]):
                if kd == "S":
                    dma(sSSl, 16384 + 8192*p, sKWl, sPB[k][p], 0, vWS, SW1)
                else:
                    for i in range(2):
                        dma(sSPl, 16384 + 8192*p + 1024*i, sKWl, sPB[k][p], 8*i*ld, vWF if k else vWQ, SW1 if k else SWQ)
            I(f"s_add_u32 s{sCH}, s{sCH}, 1")
            I(f"s_and_b32 s{sCH}, s{sCH}, 7")
            I(f"s_add_u32 s{sSTG}, s{sSTG}, {STG}")
            I(f"s_cmp_eq_u32 s{sSTG}, {NST*STG}")
            I(f"s_cselect_b32 s{sSTG}, 0, s{sSTG}")
            I(f"s_add_u32 s{sIT}, s{sIT}, 1")
            if k == 0:
                I(f"s_cmp_lt_u32 s{sIT}, {DEP}")
                I(f"s_cbranch_scc1 P1{ty}_LD0")
            I(f"s_waitcnt vmcnt({(DEP-1)*(nds[0] if k == 0 else min(nds))})")
            I("s_barrier")
            I(f"s_cmp_lt_u32 s{sIT}, {8*(k+1)}")
            I(f"s_cbranch_scc1 P1{ty}_LD{k}")
        for r in range(DEP - 2, 0, -1):
            I(f"s_waitcnt vmcnt({r*nds[1]})")
            I("s_barrier")
        I(f"s_mov_b32 s{sIT}, {1 if isA else 0}")
        I("s_branch P2_SHADOW")
        a.label(f"P1{ty}_COMP")
        I("s_waitcnt lgkmcnt(0)")
        stamp(a, 0)
        code_prefetch(a, "MK_END", 8, 1, "p1" + ty, vt=25)
        srd(a, SB1, 1792*2); srd(a, SG, 512*2)
        I(f"s_lshl_b32 s{sT0}, s{sQB}, 3")
        I(f"s_add_u32 s{sT0}, s{sT0}, s{sW}")
        I(f"s_lshl_b32 s{sT0}, s{sT0}, 5")
        I(f"s_add_u32 s{sT0}, s{sT0}, s{sH}")
        I(f"s_lshl_b32 s{sT0}, s{sT0}, 10")
        I(f"s_add_u32 s97, s{sT0}, {OF_OFF}")
        if isA:
            I(f"s_or_b32 s{sT0}, s2, s{sW}")
            I(f"s_cmp_lg_u32 s{sT0}, 0")
            I("s_cbranch_scc1 P1_NONONCE")
            I("s_memrealtime s[50:51]")
            I(f"v_mov_b32 v{t0}, 0")
            I("s_waitcnt lgkmcnt(0)")
            I("s_or_b32 s50, s50, 1")
            I(f"v_mov_b32 v{PK+8}, s50")
            I(f"v_mov_b32 v{PK+9}, s51")
            I("s_mov_b64 exec, 1")
            I(f"global_store_dwordx2 v{t0}, v[{PK+8}:{PK+9}], s[100:101] sc0 sc1")
            I("s_mov_b64 exec, -1")
            a.label("P1_NONONCE")
        for r in range(6): I(f"v_mov_b32 v{BIAS+r}, 0")
        I(f"s_lshl_b32 s{sT1}, s2, 3")
        I(f"s_add_u32 s{sT1}, s{sT1}, s{sW}")
        I(f"s_lshl_b32 s{sT1}, s{sT1}, 10")
        I(f"buffer_load_dwordx4 v[{GX}:{GX+3}], v{vST}, s[{SX}:{SX+3}], s{sT1} offen")
        I(f"buffer_load_dwordx4 v[{GW}:{GW+3}], v{vST}, s[{SG}:{SG+3}], 0 offen")
        I(f"v_and_b32 v{t0}, 31, v{vL}")
        I(f"v_lshlrev_b32 v{t0}, 1, v{t0}")
        I(f"s_lshl_b32 s{sT1}, s{sHF}, 6")
        for p, kd in enumerate(sw[1]):
            if kd == "F":
                I(f"s_add_u32 s7, s{sCOL[1][p]}, s{sT1}")
                I(f"buffer_load_ushort v{BIAS+2*p}, v{t0}, s[{SB1}:{SB1+3}], s7 offen")
            else:
                I(f"buffer_load_ushort v{BIAS+2*p}, v{t0}, s[{SB1}:{SB1+3}], s{sCOL[1][p]} offen")
        I(f"v_and_b32 v{t0}, 31, v{vL}")
        I(f"v_lshrrev_b32 v{t1}, 5, v{vL}")
        I(f"v_bfe_u32 v{t2}, v{t0}, 1, 3")
        I(f"v_xor_b32 v{t2}, v{t2}, v{t1}")
        I(f"v_lshlrev_b32 v{t3}, 7, v{t0}")
        I(f"s_and_b32 s{sT0}, s{sW}, 3")
        I(f"s_lshl_b32 s{sT0}, s{sT0}, 12")
        I(f"s_add_u32 s{sT0}, s{sT0}, {SB0}")
        I(f"v_add_u32 v{t3}, s{sT0}, v{t3}")
        I(f"v_lshl_add_u32 v{t3}, v{t2}, 4, v{t3}")
        I(f"v_mov_b32 v{vXR[0]}, v{t3}")
        for sp in range(1, 4): I(f"v_xor_b32 v{vXR[sp]}, {32*sp}, v{vXR[0]}")
        I(f"v_bfe_u32 v{t0}, v{vL}, 2, 2")
        I(f"v_and_b32 v{t2}, 3, v{vL}")
        I(f"v_bfe_u32 v{t3}, v{vL}, 4, 1")
        p0 = vTP[0]
        I(f"v_lshlrev_b32 v{p0}, 10, v{t1}")
        I(f"v_lshl_add_u32 v{p0}, v{t0}, 7, v{p0}")
        I(f"v_lshl_add_u32 v{p0}, v{t3}, 5, v{p0}")
        I(f"v_lshl_add_u32 v{p0}, v{t2}, 3, v{p0}")
        I(f"v_lshrrev_b32 v25, 1, v{t0}")
        I(f"v_lshl_add_u32 v{p0}, v25, 6, v{p0}")
        I(f"v_xor_b32 v{p0}, s{sT1}, v{p0}")
        I(f"v_add_u32 v{p0}, {SB0 + 16384}, v{p0}")
        if isA:
            I(f"v_lshlrev_b32 v{vTS}, 9, v{t1}")
            I(f"v_lshl_add_u32 v{vTS}, v{t0}, 6, v{vTS}")
            I(f"v_lshl_add_u32 v{vTS}, v{t3}, 5, v{vTS}")
            I(f"v_lshl_add_u32 v{vTS}, v{t2}, 3, v{vTS}")
            I(f"v_add_u32 v{vTS}, {SB0 + 24576}, v{vTS}")
        else:
            I(f"v_and_b32 v26, 15, v{vL}")
            I(f"v_lshlrev_b32 v{vSV}, 4, v26")
            I(f"v_lshl_add_u32 v{vSV}, v{t1}, 8, v{vSV}")
            I(f"v_lshl_add_u32 v{vSV}, v{t3}, 17, v{vSV}")
            I(f"v_add_u32 v{vSV}, 1024, v{vSV}")
        I(f"s_lshl_b32 s98, s{sW}, 11")
        I(f"v_cmp_gt_u32 vcc, 32, v{vL}")
        I(f"v_mov_b32 v{BONE+1}, 0")
        I(f"v_mov_b32 v{BONE+2}, 0")
        I(f"v_mov_b32 v{BONE+3}, 0")
        I(f"v_mov_b32 v{t0}, 0x3f80")
        I(f"v_cndmask_b32 v{BONE}, 0, v{t0}, vcc")
        I(f"s_mov_b32 s{sL2E}, {fhex(LOG2E)}")
        I(f"s_mov_b32 s{sL2E+1}, {fhex(LOG2E)}")
        I(f"s_mov_b32 s{sTWO}, 2.0")
        I(f"s_mov_b32 s{sTWO+1}, 2.0")
        I(f"s_mov_b32 s{sQS}, {fhex(QSCALE)}")
        I(f"s_mov_b32 s{s30}, {fhex(30.0)}")
        for k in range(64): I(f"v_mov_b32 v{ACC[0]+k}, 0")
        for r in list(range(XF[2], XF[2]+8)) + list(range(WF[2][0], WF[2][0]+16)): I(f"v_mov_b32 v{r}, 0")
        I(f"s_mov_b32 s{sRS}, 3")

        def sweep(k, kinds, sfx=""):
            def reads(s):
                R = [(f"ds_read_b128 v[{XF[s]}:{XF[s]+3}], v{vXR[s]}", 0)]
                for p, kd in enumerate(kinds):
                    b = WF[s][p]
                    if kd == "S":
                        R.append((f"ds_read_b64_tr_b16 v[{b}:{b+1}], v{vTS} offset:{1024*s}", p))
                        R.append((f"ds_read_b64_tr_b16 v[{b+2}:{b+3}], v{vTS} offset:{1024*s + 256}", p))
                    else:
                        off = 8192*p + 2048*s
                        R.append((f"ds_read_b64_tr_b16 v[{b}:{b+1}], v{vTP[0]} offset:{off}", p))
                        R.append((f"ds_read_b64_tr_b16 v[{b+2}:{b+3}], v{vTP[0]} offset:{off+512}", p))
                return R
            def mfs(s):
                M = []
                for p, kd in enumerate(kinds):
                    acc, xf, wf = ACC[2*k + p], XF[s], WF[s][p]
                    if kd == "V": M.append((p, f"{MF} v[{acc}:{acc+15}], v[{xf}:{xf+3}], v[{wf}:{wf+3}], v[{acc}:{acc+15}]"))
                    else: M.append((p, f"{MF} v[{acc}:{acc+15}], v[{wf}:{wf+3}], v[{xf}:{xf+3}], v[{acc}:{acc+15}]"))
                return M
            L = f"P1{ty}_S{k}{sfx}"
            I(f"s_mov_b32 s{sIT}, 0")
            a.label(f"{L}_LOOP")
            if k == 1:
                I(f"s_cmp_lg_u32 s{sIT}, {F1IT}")
                I(f"s_cbranch_scc1 {L}_NW")
                I("s_waitcnt vmcnt(0)")
                a.label(f"{L}_NW")
            I("s_barrier")
            if DBG and k == 1 and DBG2:
                I("s_memtime s[90:91]")
                I("s_waitcnt lgkmcnt(0)")
                for n_, it_ in enumerate((0, 1, 2, 3, 4, 5, 6)):
                    I(f"s_cmp_eq_u32 s{sIT}, {it_}"); I(f"s_cselect_b32 s{65+n_}, s90, s{65+n_}")
            if DBG and k == 0 and not DBG2:
                I(f"s_cmp_lg_u32 s{sIT}, 0")
                I(f"s_cbranch_scc1 {L}_NS")
                stamp(a, 1)
                a.label(f"{L}_NS")
            a.lg = []
            def rd(s):
                for t_, tag in reads(s): a.lds(t_, (s, tag))
            def mm(s, w):
                for p, m in mfs(s):
                    if w: a.wait(lg=(s, p))
                    I(m)
            a.lg = [(2, tag) for _, tag in reads(2)] + [(3, tag) for _, tag in reads(3)]
            def step(sm, sr):
                M = mfs(sm); R = reads(sr)
                for n, (p, m) in enumerate(M):
                    a.wait(lg=(sm, p))
                    I(m)
                    take = [r for r in R if r[1] <= n] if n + 1 < len(M) else R
                    for t_, tag in take: a.lds(t_, (sr + 4, tag))
                    R = [r for r in R if r not in take]
            def retag():
                a.lg = [((x[0] - 4) if x[0] >= 4 else x[0], x[1]) for x in a.lg]
            step(2, 0); step(3, 1); retag()
            if not sfx:
                for it_, lab in (((PFIT, "PF"), (GIT, "G")) if k == 0 else ((F1IT, "F1"),)):
                    I(f"s_cmp_eq_u32 s{sIT}, {it_}")
                    I(f"s_cbranch_scc1 P1{ty}_{lab}")
                a.label(f"P1{ty}_BACK{k}")
            step(0, 2); step(1, 3); retag()
            I(f"s_add_u32 s{sRS}, s{sRS}, 1")
            I(f"s_mov_b32 s{sT0}, {STG}")
            I(f"s_cmp_eq_u32 s{sRS}, {NST}")
            I(f"s_cselect_b32 s{sT0}, {(-(NST-1)*STG) & 0xffffffff}, s{sT0}")
            I(f"s_cselect_b32 s{sRS}, 0, s{sRS}")
            for r in vXR + vTP + ([vTS] if isA else []): I(f"v_add_u32 v{r}, s{sT0}, v{r}")
            I(f"s_add_u32 s{sIT}, s{sIT}, 1")
            I(f"s_cmp_lt_u32 s{sIT}, 8")
            I(f"s_cbranch_scc1 {L}_LOOP")
            mm(2, True); mm(3, True)

        sweep(0, sw[0])
        stamp(a, 2)
        for r in range(8): I(f"v_mov_b32 v{XF[2]+r}, 0")
        I(f"s_lshl_b32 s7, s{sC}, 1")
        I(f"s_add_u32 s50, s7, s{sHF}")
        I(f"s_lshl_b32 s51, s50, 17")
        I(f"s_lshl_b32 s{sT0}, s{sRT}, 10")
        I(f"s_add_u32 s51, s51, s{sT0}")
        I(f"s_lshl_b32 s52, s51, 1")
        I(f"s_add_u32 s52, s52, {KV_OFF}")
        I(f"s_add_u32 s53, s51, 65536")
        I(f"s_add_u32 s54, s52, 131072")
        I(f"v_mov_b32 v{t0}, 0")
        I(f"global_load_dwordx2 v[{GX}:{GX+1}], v{t0}, s[100:101] sc0 sc1")
        if isA:
            acc = ACC[1]
            for e in range(8): I(f"v_cvt_pk_bf16_f32 v{PK+e}, v{acc+2*e}, v{acc+2*e+1}")
            I(f"buffer_store_dwordx4 v[{PK}:{PK+3}], v{vST}, s[{SWS}:{SWS+3}], s52 offen{WTF}")
            I(f"buffer_store_dwordx4 v[{PK+4}:{PK+7}], v{vST}, s[{SWS}:{SWS+3}], s54 offen{WTF}")
            acc = ACC[0]
            for e in range(16): I(f"v_mul_f32 v{acc+e}, s{sQS}, v{acc+e}")
            for e in range(8): I(f"v_cvt_pk_bf16_f32 v{PK+8+e}, v{acc+2*e}, v{acc+2*e+1}")
            I(f"buffer_store_dwordx4 v[{PK+8}:{PK+11}], v{vST}, s[{SWS}:{SWS+3}], s51 offen{WTF}")
            I(f"buffer_store_dwordx4 v[{PK+12}:{PK+15}], v{vST}, s[{SWS}:{SWS+3}], s53 offen{WTF}")
        else:
            acc = ACC[0]
            for e in range(8): I(f"v_cvt_pk_bf16_f32 v{PK+8+e}, v{acc+2*e}, v{acc+2*e+1}")
            I(f"buffer_store_dwordx4 v[{PK+8}:{PK+11}], v{vSV}, s[{SWS}:{SWS+3}], s52 offen{WTF}")
            I(f"buffer_store_dwordx4 v[{PK+12}:{PK+15}], v{vSV}, s[{SWS}:{SWS+3}], s52 offen offset:512{WTF}")
        if isA:
            I(f"s_cmp_eq_u32 s{sHF}, 0")
            I(f"s_cbranch_scc1 P1A_H0")
            sweep(1, sw[1][:1], "h")
            I(f"s_branch P1{ty}_EPI")
            a.label("P1A_H0")
        sweep(1, sw[1])
        I(f"s_branch P1{ty}_EPI")
        a.label(f"P1{ty}_F1")
        I(f"s_cmp_lg_u32 s{sW}, 0")
        I(f"s_cbranch_scc1 P1{ty}_F1C")
        I(f"s_mov_b32 s51, 0x40000")
        a.label(f"P1{ty}_F1A")
        I(f"v_readfirstlane_b32 s50, v{GX}")
        I(f"v_mov_b32 v{t0}, 0")
        I(f"s_lshl_b32 s{sT2}, s2, 6")
        I(f"s_add_u32 s{sT2}, s{sT2}, {FL_OFF}")
        I("s_nop 1")
        I(f"s_cmp_lg_u32 s50, 0")
        I(f"s_cbranch_scc1 P1{ty}_F1B")
        I(f"s_cmp_eq_u32 s51, 0")
        I(f"s_cbranch_scc1 P1{ty}_F1B")
        I(f"s_sub_u32 s51, s51, 1")
        I(f"global_load_dwordx2 v[{GX}:{GX+1}], v{t0}, s[100:101] sc0 sc1")
        I("s_waitcnt vmcnt(0)")
        I(f"s_branch P1{ty}_F1A")
        a.label(f"P1{ty}_F1B")
        I("s_mov_b64 exec, 1")
        I(f"buffer_store_dwordx2 v[{GX}:{GX+1}], v{t0}, s[{SWS}:{SWS+3}], s{sT2} offen sc0 sc1")
        I("s_mov_b64 exec, -1")
        a.label(f"P1{ty}_F1C")
        I(f"s_branch P1{ty}_BACK1")
        a.label(f"P1{ty}_G")
        I("s_waitcnt vmcnt(0)")
        I(f"v_mov_b32 v{vG0}, 0")
        I(f"v_mov_b32 v{vG1}, 0")
        for k in range(4): I(f"v_dot2_f32_bf16 v{vG0+k%2}, v{GX+k}, v{GW+k}, v{vG0+k%2}")
        I("s_nop 2")
        I(f"v_add_f32 v{vG0}, v{vG0}, v{vG1}")
        for d in ("quad_perm:[1,0,3,2]", "quad_perm:[2,3,0,1]", "row_half_mirror", "row_mirror"):
            I("s_nop 1")
            I(f"v_add_f32_dpp v{vG0}, v{vG0}, v{vG0} {d} row_mask:0xf bank_mask:0xf")
        I("s_nop 0")
        for k in range(4): I(f"v_readlane_b32 s{50+k}, v{vG0}, {16*k}")
        I(f"s_lshl_b32 s{sT1}, s2, 3")
        I(f"s_add_u32 s{sT1}, s{sT1}, s{sW}")
        I(f"v_mov_b32 v{vG0}, s50")
        I(f"v_add_f32 v{vG0}, s51, v{vG0}")
        I(f"v_add_f32 v{vG0}, s52, v{vG0}")
        I(f"v_add_f32 v{vG0}, s53, v{vG0}")
        I(f"v_mul_f32 v{vG0}, s{sL2E}, v{vG0}")
        I(f"v_exp_f32 v{vG0}, -v{vG0}")
        I(f"s_lshl_b32 s{sT1}, s{sT1}, 2")
        I(f"v_add_f32 v{vG0}, 1.0, v{vG0}")
        I(f"v_rcp_f32 v{vG0}, v{vG0}")
        I(f"s_add_u32 s{sT1}, s{sT1}, {G_OFF}")
        I(f"v_mov_b32 v{vG1}, 0")
        I(f"s_mov_b64 exec, 1")
        I(f"buffer_store_dword v{vG0}, v{vG1}, s[{SWS}:{SWS+3}], s{sT1} offen{WTF}")
        I(f"s_mov_b64 exec, -1")
        I(f"s_branch P1{ty}_BACK0")
        a.label(f"P1{ty}_PF")
        I(f"s_cmp_ge_u32 s{sW}, 2")
        I(f"s_cbranch_scc1 P1{ty}_BACK0")
        I(f"s_cmp_eq_u32 s{sW}, 0")
        I(f"s_cselect_b32 s{sT1}, s{sCOL[1][0]}, s{sCOL[1][1]}")
        I(f"s_bfe_u32 s{sT2}, s2, 0x30003")
        I(f"s_mul_i32 s{sT2}, s{sT2}, {64*3584}")
        I(f"s_add_u32 s{sT1}, s{sT1}, s{sT2}")
        I(f"v_mul_u32_u24 v{t0}, 3584, v{vL}")
        I(f"buffer_load_dword v27, v{t0}, s[{SW1}:{SW1+3}], s{sT1} offen")
        I(f"s_branch P1{ty}_BACK0")
        a.label(f"P1{ty}_EPI")
        stamp(a, 3)
        for p in range(2):
            acc = ACC[2 + p]
            if p == 1:
                I(f"s_mul_i32 s{sT2}, s{sRT}, {144*1024}")
                I(f"s_add_u32 s{sT2}, s{sT2}, {AF_OFF + 32*1024}")
                I(f"s_lshl_b32 s{sT1}, s{sHF}, 11")
                I(f"s_add_u32 s{sT1}, s{sT1}, s{sT2}")
            I(f"{MF} v[{acc}:{acc+15}], v[{BIAS+2*p}:{BIAS+2*p+3}], v[{BONE}:{BONE+3}], v[{acc}:{acc+15}]")
        jobs = [(0, 0), (0, 1), (1, 0), (1, 1)]
        for n, (p, hh) in enumerate(jobs):
            I(f"s_lshl_b32 s7, s{sCOL[1][p]}, 5")
            I(f"s_add_u32 s7, s7, s{sT2 if (isA and p == 1) else sT1}")
            I(f"s_add_u32 s{76+n}, s7, {1024*hh}")
        I(f"s_mov_b32 s56, {'s%d' % sHF if isA else 0}")
        tb = [ACC[0], ACC[0] + 8, 44]
        def mish8(acc, pk):
            vp = lambda r: f"v[{r}:{r+1}]"
            prs = range(4)
            T = lambda e, kk: tb[kk] + 2*e
            for e in prs: I(f"v_pk_mul_f32 {vp(T(e,0))}, {vp(acc+2*e)}, s[{sL2E}:{sL2E+1}]")
            for e in range(8): I(f"v_min_f32 v{tb[0]+e}, s{s30}, v{tb[0]+e}")
            for e in range(8): I(f"v_exp_f32 v{tb[0]+e}, v{tb[0]+e}")
            for e in prs: I(f"v_pk_add_f32 {vp(T(e,1))}, {vp(T(e,0))}, s[{sTWO}:{sTWO+1}]")
            for e in prs: I(f"v_pk_mul_f32 {vp(T(e,1))}, {vp(T(e,0))}, {vp(T(e,1))}")
            for e in prs: I(f"v_pk_add_f32 {vp(T(e,2))}, {vp(T(e,1))}, s[{sTWO}:{sTWO+1}]")
            for e in range(8): I(f"v_rcp_f32 v{tb[2]+e}, v{tb[2]+e}")
            for e in prs: I(f"v_pk_mul_f32 {vp(T(e,1))}, {vp(T(e,1))}, {vp(T(e,2))}")
            for e in prs: I(f"v_pk_mul_f32 {vp(T(e,0))}, {vp(acc+2*e)}, {vp(T(e,1))}")
            for e in range(4): I(f"v_cvt_pk_bf16_f32 v{pk+e}, v{tb[0]+2*e}, v{tb[0]+2*e+1}")
        for n, (p, hh) in enumerate(jobs):
            if isA and n == 2:
                I(f"s_cmp_eq_u32 s{sHF}, 1")
                I(f"s_cbranch_scc1 P1A_EDONE")
            mish8(ACC[2 + p] + 8*hh, HKR[n])
        if isA: a.label("P1A_EDONE")
        stamp(a, 4)
        I("s_branch P2_ATT")

    path("A")
    a.label("P1_B")
    path("B")

    a.label("P2_ATT")
    sCNT, sNMAX, sFIRST, sVM = 50, 51, 52, 54
    vT, vLO, vKA, vVA, vG, vM, vT2 = 2, 11, 4, 5, 6, 7, 8
    Q, NEGM, S, O, P, KF, VF = 12, 16, [32, 48], 64, 80, [88, 92], [96, 104]
    I(f"s_mov_b32 s{sVM}, 0xffff")
    I(f"s_mov_b32 s{sVM+1}, 0xffff")
    I(f"v_and_b32 v{vT}, 27, v{vL}")
    I(f"v_cmp_eq_u32 vcc, 16, v{vT}")
    I(f"v_mov_b32 v{vT}, 0x3f803f80")
    I(f"s_lshl_b32 s{sT0}, s{sW}, 10")
    I(f"v_cndmask_b32 v{VF[0]}, 0, v{vT}, vcc")
    for r in range(1, 16): I(f"v_mov_b32 v{VF[0]+r}, v{VF[0]}")
    I(f"s_add_u32 s{sT0}, s{sT0}, {QL}")
    I(f"v_add_u32 v{vT}, s{sT0}, v{vLO}")
    I(f"v_and_b32 v{vT2}, 31, v{vL}")
    I(f"v_lshlrev_b32 v{vT2}, 2, v{vT2}")
    I(f"s_lshl_b32 s{sT0}, s{sW}, 7")
    I(f"s_add_u32 s{sT0}, s{sT0}, {GL}")
    I(f"v_add_u32 v{vT2}, s{sT0}, v{vT2}")
    for r in range(4): I(f"v_mov_b32 v{148+r}, -1")
    I(f"s_mov_b32 s{sNMAX}, 1")
    I(f"s_mov_b32 s53, 8")
    I(f"s_mov_b32 s{sFIRST}, {Y2IT}")
    if ATPRIO: I("s_setprio 2")
    I("s_barrier")
    stamp(a, 5)
    I(f"ds_read_b128 v[{Q}:{Q+3}], v{vT}")
    I(f"ds_read_b32 v{vG}, v{vT2}")
    for n in range(4):
        if n == 2:
            I(f"s_cmp_eq_u32 s56, 1")
            I(f"s_cbranch_scc1 P2_NOH3")
        I(f"buffer_store_dwordx4 v[{HKR[n]}:{HKR[n]+3}], v{vLO}, s[{SWS}:{SWS+3}], s{76+n} offen{WTF}")
    a.label("P2_NOH3")
    I(f"buffer_store_dwordx4 v[148:151], v{vLO}, s[{SWS}:{SWS+3}], s97 offen{WTF}")
    a.label("P2_MAXPASS")
    I(f"v_mov_b32 v{vKA}, v{vLO}")
    I(f"v_mov_b32 v{vM}, 0xff800000")
    I(f"s_mov_b32 s{sCNT}, s{sNMAX}")
    a.label("P2_MAXLOOP")
    I(f"ds_read_b128 v[{KF[0]}:{KF[0]+3}], v{vKA}")
    I(f"v_add_u32 v{vKA}, 2048, v{vKA}")
    I("s_waitcnt lgkmcnt(0)")
    I(f"{MF} v[{S[0]}:{S[0]+15}], v[{KF[0]}:{KF[0]+3}], v[{Q}:{Q+3}], 0")
    I("s_nop 11")
    for r in range(8): I(f"v_max3_f32 v{vM}, v{S[0]+2*r}, v{S[0]+2*r+1}, v{vM}")
    I(f"s_sub_u32 s{sCNT}, s{sCNT}, 1")
    I(f"s_cmp_lg_u32 s{sCNT}, 0")
    I("s_cbranch_scc1 P2_MAXLOOP")
    I(f"v_mov_b32 v{vT}, v{vM}")
    I(f"v_mov_b32 v{vKA}, v{vLO}")
    I(f"v_and_b32 v{vT2}, 15, v{vL}")
    I(f"v_permlane32_swap_b32 v{vM}, v{vT}")
    I(f"v_lshlrev_b32 v{vVA}, 4, v{vT2}")
    I(f"v_lshrrev_b32 v{vT2}, 5, v{vL}")
    I(f"v_max_f32 v{vM}, v{vM}, v{vT}")
    I(f"v_lshl_add_u32 v{vVA}, v{vT2}, 8, v{vVA}")
    I(f"v_add_u32 v{vVA}, 1024, v{vVA}")
    def rdK(t, buf): I(f"ds_read_b128 v[{KF[buf]}:{KF[buf]+3}], v{vKA} offset:{2048*t}")
    def rdV(t, buf):
        I(f"s_mov_b64 exec, s[{sVM}:{sVM+1}]")
        I(f"ds_read_b128 v[{VF[buf]}:{VF[buf]+3}], v{vVA} offset:{2048*t}")
        I(f"ds_read_b128 v[{VF[buf]+4}:{VF[buf]+7}], v{vVA} offset:{2048*t+512}")
        I(f"s_mov_b64 exec, -1")
    rdK(0, 0); rdK(1, 1); rdV(0, 0)
    for r in range(16): I(f"v_sub_f32 v{NEGM+r}, 0, v{vM}")
    for r in range(4, 8): I(f"v_mov_b32 v{P+r}, 0")
    I("s_waitcnt lgkmcnt(3)")
    I(f"{MF} v[{S[0]}:{S[0]+15}], v[{KF[0]}:{KF[0]+3}], v[{Q}:{Q+3}], v[{NEGM}:{NEGM+15}]")
    for r in range(16): I(f"v_mov_b32 v{O+r}, 0")
    I(f"s_mov_b32 s{sCNT}, 8")
    a.label("P2_LOOP")
    for t in range(8):
        cur, nxt = t % 2, (t + 1) % 2
        sc = S[cur]
        e = lambda k: I(f"v_exp_f32 v{sc+k}, v{sc+k}")
        c = lambda k: I(f"v_cvt_pk_bf16_f32 v{P+k}, v{sc+2*k}, v{sc+2*k+1}")
        I("s_waitcnt lgkmcnt(2)")
        I(f"{MF} v[{S[nxt]}:{S[nxt]+15}], v[{KF[nxt]}:{KF[nxt]+3}], v[{Q}:{Q+3}], v[{NEGM}:{NEGM+15}]")
        rdK(t + 2, cur)
        for k in range(5): e(k)
        I(f"{MF} v[{O}:{O+15}], v[{VF[nxt]+4}:{VF[nxt]+7}], v[{P+4}:{P+7}], v[{O}:{O+15}]")
        rdV(t + 1, nxt)
        c(0); c(1)
        for k in range(5, 10): e(k)
        c(2); c(3); e(10); e(11)
        I("s_waitcnt lgkmcnt(3)")
        I(f"{MF} v[{O}:{O+15}], v[{VF[cur]}:{VF[cur]+3}], v[{P}:{P+3}], v[{O}:{O+15}]")
        c(4); c(5)
        for k in range(12, 16): e(k)
        c(6); c(7)
    I(f"v_add_u32 v{vKA}, 0x4000, v{vKA}")
    I(f"v_add_u32 v{vVA}, 0x4000, v{vVA}")
    I(f"s_cmp_lg_u32 s53, s{sCNT}")
    I("s_cbranch_scc1 P2_NOBAR0")
    I(f"s_mov_b32 s53, 100")
    I("s_barrier")
    a.label("P2_NOBAR0")
    I(f"s_cmp_lg_u32 s{sFIRST}, s{sCNT}")
    I("s_cbranch_scc1 P2_NOBAR")
    I(f"s_mov_b32 s{sFIRST}, 100")
    I("s_waitcnt vmcnt(0)")
    I("s_barrier")
    stamp(a, 6)
    a.label("P2_NOBAR")
    if ATPRIO:
        I(f"s_cmp_lg_u32 s{sCNT}, 5")
        I("s_cbranch_scc1 P2_NP1")
        I("s_setprio 1")
        a.label("P2_NP1")
        I(f"s_cmp_lg_u32 s{sCNT}, 2")
        I("s_cbranch_scc1 P2_NP2")
        I("s_setprio 0")
        a.label("P2_NP2")
    I(f"s_sub_u32 s{sCNT}, s{sCNT}, 1")
    I(f"s_cmp_lg_u32 s{sCNT}, 0")
    I("s_cbranch_scc1 P2_LOOP")
    I(f"{MF} v[{O}:{O+15}], v[{VF[1]+4}:{VF[1]+7}], v[{P+4}:{P+7}], v[{O}:{O+15}]")
    I("s_waitcnt lgkmcnt(0)")
    I("s_nop 11")
    stamp(a, 7)
    I(f"v_mov_b32 v{vT}, v{O+8}")
    I(f"v_rcp_f32 v{vT2}, v{O+8}")
    for r in range(8): I(f"v_fma_f32 v{vT}, v{O+r}, 0, v{vT}")
    I(f"v_cmp_gt_f32 vcc, {fhex(2.0**100)}, v{vT}")
    I(f"v_mul_f32 v{vT2}, v{vT2}, v{vG}")
    I("s_nop 3")
    I(f"s_cmp_eq_u64 vcc, -1")
    I("s_cbranch_scc1 P2_OK")
    I(f"s_cmp_eq_u32 s{sNMAX}, 64")
    I("s_cbranch_scc1 P2_OK")
    I(f"s_mov_b32 s{sNMAX}, 64")
    I("s_branch P2_MAXPASS")
    a.label("P2_OK")
    for r in range(8): I(f"v_mul_f32 v{O+r}, v{O+r}, v{vT2}")
    for r in range(4): I(f"v_cvt_pk_bf16_f32 v{P+r}, v{O+2*r}, v{O+2*r+1}")
    I(f"buffer_store_dwordx4 v[{P}:{P+3}], v{vLO}, s[{SWS}:{SWS+3}], s97 offen sc0 sc1")
    stamp(a, 8)
    stamp_flush(a, 9, SWS, sW, 0)
    I("s_endpgm")

    COMP[0] = False
    a.label("P2_SHADOW")
    sJ = 63
    sN = 8
    SO = 12
    sA0, sA1, sB0, sB1 = 80, 81, 82, 83
    sKV, sM0 = 20, 21
    sOC, sOR, sWA0, sWA1, sOB0, sOB1, sLS, sOB2, sOB3 = 22, 23, 24, 25, 26, 27, 84, 85, 86
    sTO = 87
    vLO = 3
    I(f"s_load_dwordx2 s[{SO}:{SO+1}], s[0:1], 64")
    I(f"s_setprio {SHPRIO2}")
    I(f"v_mov_b32 v{vLO}, v{vST}")
    I(f"v_mov_b32 v2, 0")
    I(f"s_mov_b32 s{sTO}, 0x40000")
    I(f"s_and_b32 s{sT0}, s2, 6")
    I(f"s_and_b32 s{sT1}, s2, 1")
    I(f"s_lshl_b32 s{sT1}, s{sT1}, 6")
    I(f"s_or_b32 s{sT0}, s{sT0}, s{sT1}")
    I(f"v_and_b32 v6, 1, v{vL}")
    I(f"v_bfe_u32 v7, v{vL}, 1, 3")
    I(f"v_lshl_or_b32 v6, v7, 3, v6")
    I(f"v_bfe_u32 v7, v{vL}, 4, 1")
    I(f"v_lshl_or_b32 v6, v7, 7, v6")
    I(f"v_or_b32 v6, s{sT0}, v6")
    I(f"s_lshl_b32 s{sT0}, s{sQB}, 5")
    I(f"v_and_b32 v7, 31, v{vL}")
    I(f"v_add_u32 v7, s{sT0}, v7")
    I(f"v_cmp_gt_u32 vcc, 32, v{vL}")
    I(f"s_lshl_b32 s{sKV}, s{sH}, 17")
    I(f"s_lshl_b32 s{sM0}, s{sJ}, 10")
    I(f"v_cndmask_b32 v6, v7, v6, vcc")
    I(f"v_lshlrev_b32 v6, 6, v6")
    I(f"s_add_u32 s{sKV}, s{sKV}, s{sM0}")
    I(f"s_add_u32 s{sKV}, s{sKV}, {KV_OFF}")
    I(f"s_lshl_b32 s{sT2}, s2, 6")
    I(f"s_add_u32 s{sT2}, s{sT2}, {FL_OFF}")
    I(f"s_mov_b32 s{sLS}, {FL_OFF}")
    I(f"global_load_dwordx2 v[4:5], v2, s[100:101] sc0 sc1")
    I(f"buffer_load_dwordx2 v[8:9], v6, s[{SWS}:{SWS+3}], s{sLS} offen sc0 sc1")
    I("s_waitcnt vmcnt(0) lgkmcnt(0)")
    I("s_barrier")
    stamp(a, 2)
    srd(a, SO, 2048*512*2)
    a.label("P2_F1CHK")
    I(f"v_readfirstlane_b32 s{sN}, v4")
    I(f"v_readfirstlane_b32 s{sN+1}, v5")
    I("s_nop 1")
    I(f"v_cmp_eq_u64 vcc, s[{sN}:{sN+1}], v[8:9]")
    I(f"s_cmp_eq_u32 s{sN}, 0")
    I("s_cbranch_scc1 P2_F1RE")
    I("s_nop 3")
    I(f"s_cmp_eq_u64 vcc, -1")
    I("s_cbranch_scc1 P2_F1GOT")
    a.label("P2_F1RE")
    I(f"s_cmp_eq_u32 s{sTO}, 0")
    I(f"s_cbranch_scc1 P2_F1GOT")
    I(f"s_sub_u32 s{sTO}, s{sTO}, 1")
    I(f"s_sleep {POLLS}")
    I(f"global_load_dwordx2 v[4:5], v2, s[100:101] sc0 sc1")
    I(f"buffer_load_dwordx2 v[8:9], v6, s[{SWS}:{SWS+3}], s{sLS} offen sc0 sc1")
    I("s_waitcnt vmcnt(0)")
    I("s_branch P2_F1CHK")
    a.label("P2_F1GOT")
    stamp(a, 3)
    def kvdma():
        I(f"s_mov_b32 m0, s{sM0}")
        I(f"s_add_u32 s{sM0}, s{sM0}, 4096")
        I(f"buffer_load_dwordx4 v{vLO}, s[{SWS}:{SWS+3}], s{sKV} offen lds")
        I(f"s_add_u32 s{sKV}, s{sKV}, 4096")
    I(f"s_lshl_b32 s{sT0}, s{sH}, 6")
    I(f"s_lshl_b32 s{sT1}, s{sQB}, 3")
    I(f"s_add_u32 s{sT0}, s{sT0}, s{sT1}")
    I(f"s_lshl_b32 s{sT1}, s{sJ}, 1")
    I(f"s_add_u32 s{sT0}, s{sT0}, s{sT1}")
    I(f"s_lshl_b32 s{sT0}, s{sT0}, 10")
    I(f"s_lshl_b32 s{sT1}, s{sJ}, 11")
    I(f"s_add_u32 m0, s{sT1}, {QL}")
    I(f"s_lshl_b32 s{sT1}, s{sQB}, 10")
    I(f"buffer_load_dwordx4 v{vLO}, s[{SWS}:{SWS+3}], s{sT0} offen lds")
    I(f"buffer_load_dwordx4 v{vLO}, s[{SWS}:{SWS+3}], s{sT0} offen offset:1024 lds")
    I(f"s_mov_b32 m0, {GL}")
    I(f"s_add_u32 s{sT1}, s{sT1}, {G_OFF}")
    I(f"buffer_load_dwordx4 v{vLO}, s[{SWS}:{SWS+3}], s{sT1} offen lds")
    for half in range(3):
        I(f"s_mov_b32 s{sCNT}, {(KV0, 16 - KV0, 16)[half]}")
        a.label(f"P2_KVLOOP{half}")
        kvdma()
        I(f"s_sub_u32 s{sCNT}, s{sCNT}, 1")
        I(f"s_cmp_lg_u32 s{sCNT}, 0")
        I(f"s_cbranch_scc1 P2_KVLOOP{half}")
        if half == 1:
            I(f"s_waitcnt vmcnt({16 - KV0})")
            I("s_barrier")
            stamp(a, 4)
            I("s_waitcnt vmcnt(0)")
            I("s_barrier")
            srd(a, SWO, 512*512*2); srd(a, SW2, 1792*512*2)
            I(f"s_lshl_b32 s{sLS}, s{sJ}, 12")
            I(f"s_add_u32 s{sLS}, s{sLS}, {131072}")
            I(f"v_lshrrev_b32 v12, 5, v{vL}")
            I(f"v_bfe_u32 v13, v{vL}, 2, 2")
            I(f"v_and_b32 v14, 3, v{vL}")
            I(f"v_bfe_u32 v15, v{vL}, 4, 1")
            I(f"v_lshlrev_b32 v10, 9, v12")
            I(f"v_lshl_add_u32 v10, v13, 7, v10")
            I(f"v_lshrrev_b32 v16, 1, v13")
            I(f"v_lshl_add_u32 v10, v16, 6, v10")
            I(f"v_lshl_add_u32 v10, v15, 4, v10")
            I(f"v_and_b32 v16, 1, v14")
            I(f"v_lshl_add_u32 v10, v16, 5, v10")
            I(f"v_lshrrev_b32 v16, 1, v14")
            I(f"v_lshl_add_u32 v10, v16, 3, v10")
            I(f"v_add_u32 v10, s{sLS}, v10")
            I(f"v_xor_b32 v11, 64, v10")
            I(f"s_lshl_b32 s52, s2, 2")
            I(f"s_add_u32 s52, s52, s{sJ}")
            for n in range(2):
                if n == 1:
                    I(f"s_cmp_ge_u32 s52, 128")
                    I(f"s_cbranch_scc1 P2_TR1")
                    I(f"s_add_u32 s52, s52, 1024")
                I(f"s_mul_i32 s53, s52, 7282")
                I(f"s_lshr_b32 s53, s53, 20")
                I(f"s_mul_i32 s54, s53, 144")
                I(f"s_sub_u32 s54, s52, s54")
                I(f"s_add_u32 s{56+n}, s52, s52")
                I(f"s_sub_u32 s{56+n}, s{56+n}, s54")
                I(f"s_lshl_b32 s{56+n}, s{56+n}, 10")
                I(f"s_lshl_b32 s{sT0}, s54, 14")
                I(f"s_lshl_b32 s{sT1}, s53, 7")
                I(f"s_add_u32 s{sT0}, s{sT0}, s{sT1}")
                I(f"s_add_u32 m0, s{sLS}, {2048*n}")
                I(f"s_cmp_ge_u32 s54, 32")
                I(f"s_cbranch_scc1 P2_TW2{n}")
                I(f"s_add_u32 s{sT1}, s{sT0}, {8192 - 1024}")
                I(f"buffer_load_dwordx4 v{vTD}, s[{SWO}:{SWO+3}], s{sT0} offen lds")
                I(f"buffer_load_dwordx4 v{vTD}, s[{SWO}:{SWO+3}], s{sT1} offen offset:1024 lds")
                I(f"s_branch P2_TD{n}")
                a.label(f"P2_TW2{n}")
                I(f"s_sub_u32 s{sT0}, s{sT0}, {32*16384}")
                I(f"s_add_u32 s{sT1}, s{sT0}, {8192 - 1024}")
                I(f"buffer_load_dwordx4 v{vTD}, s[{SW2}:{SW2+3}], s{sT0} offen lds")
                I(f"buffer_load_dwordx4 v{vTD}, s[{SW2}:{SW2+3}], s{sT1} offen offset:1024 lds")
                a.label(f"P2_TD{n}")
            a.label("P2_TR1")
    I("s_waitcnt vmcnt(16)")
    for n in range(2):
        for ct in range(2):
            b = 24 + 8*n + 4*ct
            I(f"ds_read_b64_tr_b16 v[{b}:{b+1}], v{10+ct} offset:{2048*n}")
            I(f"ds_read_b64_tr_b16 v[{b+2}:{b+3}], v{10+ct} offset:{2048*n+1024}")
    I("s_waitcnt lgkmcnt(0)")
    for n in range(2):
        if n == 1:
            I(f"s_cmp_lt_u32 s52, 1024")
            I(f"s_cbranch_scc1 P2_TR2")
        for ct in range(2):
            b = 24 + 8*n + 4*ct
            I(f"s_add_u32 s7, s{56+n}, {WF_OFF + ct*144*1024}")
            I(f"buffer_store_dwordx4 v[{b}:{b+3}], v{vLO}, s[{SWS}:{SWS+3}], s7 offen{WTF}")
    a.label("P2_TR2")
    I(f"s_lshr_b32 s{sT0}, s{sJ}, 1")
    I(f"s_lshl_b32 s{sT1}, s{sQB}, 1")
    I(f"s_add_u32 s{sA0}, s{sT1}, s{sT0}")
    I(f"s_xor_b32 s{sA1}, s{sA0}, 1")
    I(f"s_and_b32 s{sT0}, s{sJ}, 1")
    I(f"s_lshl_b32 s{sT1}, s{sH}, 1")
    I(f"s_add_u32 s{sB0}, s{sT1}, s{sT0}")
    I(f"s_xor_b32 s{sB1}, s{sB0}, 1")
    I(f"s_mov_b32 s{sOC}, s{sA0}")
    I(f"s_mov_b32 s{sOR}, s{sB0}")
    I(f"s_lshl_b32 s32, s{sB0}, 7")
    I(f"s_add_u32 s32, s32, {G_OFF}")
    I(f"s_lshl_b32 s33, s{sB1}, 7")
    I(f"s_add_u32 s33, s33, {G_OFF}")
    I(f"s_lshl_b32 s{sT0}, s{sJ}, 13")
    for d, r in ((sWA0, sA0), (sWA1, sA1)):
        I(f"s_mul_i32 s{d}, s{r}, {144*1024}")
        I(f"s_add_u32 s{d}, s{d}, s{sT0}")
        I(f"s_add_u32 s{d}, s{d}, {WF_OFF}")
    for d, r in ((sOB0, sB0), (sOB1, sB1)):
        I(f"s_lshl_b32 s{d}, s{r}, 15")
        I(f"s_add_u32 s{d}, s{d}, s{sT0}")
        I(f"s_add_u32 s{d}, s{d}, {OF_OFF}")
    I(f"s_mul_i32 s{sT0}, s{sJ}, {28*1024}")
    for r, off in ((sA0, WF_OFF), (sA1, WF_OFF), (sB0, AF_OFF), (sB1, AF_OFF)):
        I(f"s_mul_i32 s{r}, s{r}, {144*1024}")
        I(f"s_add_u32 s{r}, s{r}, s{sT0}")
        I(f"s_add_u32 s{r}, s{r}, {off + 32*1024}")
    ACC2, FR = 8, 72
    I(f"s_lshr_b32 s{sT0}, s{sH}, 1")
    I(f"s_lshr_b32 s{sT1}, s{sT0}, 3")
    I(f"s_and_b32 s{sT0}, s{sT0}, 7")
    I(f"s_lshl_b32 s{sT0}, s{sT0}, 3")
    I(f"s_or_b32 s{sT0}, s{sT0}, s{sT1}")
    I(f"v_and_b32 v6, 6, v{vL}")
    I(f"v_and_b32 v7, 1, v{vL}")
    I(f"v_lshl_or_b32 v6, v7, 6, v6")
    I(f"v_bfe_u32 v7, v{vL}, 3, 1")
    I(f"v_lshl_or_b32 v6, v7, 7, v6")
    I(f"v_or_b32 v6, s{sT0}, v6")
    I(f"s_mul_i32 s{sT0}, s{sQB}, 36")
    I(f"v_subrev_u32 v7, 16, v{vL}")
    I(f"v_min_u32 v7, 35, v7")
    I(f"v_add_u32 v7, s{sT0}, v7")
    I(f"v_and_b32 v7, 255, v7")
    I(f"v_cmp_gt_u32 vcc, 16, v{vL}")
    I(f"s_add_u32 s{sT2}, s{sT2}, {F2_OFF - FL_OFF}")
    I(f"s_mov_b32 s{sLS}, {F2_OFF}")
    I(f"v_cndmask_b32 v6, v7, v6, vcc")
    I(f"v_lshlrev_b32 v6, 6, v6")
    I(f"s_lshr_b32 s{sT0}, s{sH}, 2")
    I(f"s_lshl_b32 s{sT0}, s{sT0}, 5")
    I(f"v_and_b32 v7, 31, v{vL}")
    I(f"v_add_u32 v7, s{sT0}, v7")
    I(f"s_lshl_b32 s{sT0}, s{sH}, 3")
    I(f"v_and_b32 v12, 7, v{vL}")
    I(f"v_cmp_gt_u32 vcc, 32, v{vL}")
    I(f"v_add_u32 v12, s{sT0}, v12")
    I("s_nop 0")
    I(f"v_cndmask_b32 v7, v12, v7, vcc")
    I(f"v_lshlrev_b32 v7, 6, v7")
    I("s_waitcnt vmcnt(0)")
    I("s_barrier")
    stamp(a, 5)
    I(f"s_cmp_lg_u32 s{sJ}, 0")
    I("s_cbranch_scc1 P2_F2POLL")
    I("s_mov_b64 exec, 1")
    I(f"buffer_store_dwordx2 v[4:5], v2, s[{SWS}:{SWS+3}], s{sT2} offen sc0 sc1")
    I("s_mov_b64 exec, -1")
    def pollflags(vaddr, lab, done, sl):
        a.label(lab)
        I(f"buffer_load_dwordx2 v[{FR+88}:{FR+89}], v{vaddr}, s[{SWS}:{SWS+3}], s{sKV} offen sc0 sc1")
        I("s_waitcnt vmcnt(0)")
        I(f"v_cmp_eq_u64 vcc, s[{sN}:{sN+1}], v[{FR+88}:{FR+89}]")
        I("s_nop 4")
        I(f"s_cmp_eq_u64 vcc, -1")
        I(f"s_cbranch_scc1 {done}")
        I(f"s_cmp_eq_u32 s{sTO}, 0")
        I(f"s_cbranch_scc1 {done}")
        I(f"s_sub_u32 s{sTO}, s{sTO}, 1")
        I(f"s_sleep {sl}")
        I(f"s_branch {lab}")
    a.label("P2_F2POLL")
    I(f"s_mov_b32 s{sKV}, {F2_OFF}")
    pollflags(6, "P2_F2P", "P2_F2GOT", 8)
    a.label("P2_F2GOT")
    stamp(a, 6)
    def ld(u):
        fb = FR + 16*u
        for q, r in enumerate((sA0, sB0, sA1, sB1)):
            I(f"buffer_load_dwordx4 v[{fb+4*q}:{fb+4*q+3}], v{vLO}, s[{SWS}:{SWS+3}], s{r} offen offset:{1024*u}")
    def mm4(A0, A1, B0, B1):
        for tau, (A, B) in ((3, (A1, B1)), (2, (A1, B0)), (1, (A0, B1)), (0, (A0, B0))):
            acc = ACC2 + 16*tau
            I(f"{MF} v[{acc}:{acc+15}], v[{A}:{A+3}], v[{B}:{B+3}], v[{acc}:{acc+15}]")
    def mmf(fb): mm4(fb, fb+8, fb+4, fb+12)
    for u in range(4): ld(u)
    I(f"s_setprio 0")
    I(f"s_mov_b32 s{sCNT}, 6")
    for r in (sA0, sA1, sB0, sB1): I(f"s_add_u32 s{r}, s{r}, 4096")
    I("s_waitcnt vmcnt(12)")
    for tau, (A, B) in ((3, (FR+8, FR+12)), (2, (FR+8, FR+4)), (1, (FR, FR+12)), (0, (FR, FR+4))):
        acc = ACC2 + 16*tau
        I(f"{MF} v[{acc}:{acc+15}], v[{A}:{A+3}], v[{B}:{B+3}], 0")
    I("s_branch P2_GIN")
    a.label("P2_GLOOP")
    for r in (sA0, sA1, sB0, sB1): I(f"s_add_u32 s{r}, s{r}, 4096")
    for u in range(4):
        I("s_waitcnt vmcnt(12)")
        mmf(FR + 16*u)
        if u == 0: a.label("P2_GIN")
        ld(u)
    I(f"s_sub_u32 s{sCNT}, s{sCNT}, 1")
    I(f"s_cmp_lg_u32 s{sCNT}, 0")
    I("s_cbranch_scc1 P2_GLOOP")
    WA, OB = 72, 104
    for u in range(4):
        I(f"s_waitcnt vmcnt({12 - 4*u})")
        mmf(FR + 16*u)
    for s_ in range(4):
        for q, r in ((0, sWA0), (1, sWA1)):
            b = WA + 8*s_ + 4*q
            I(f"buffer_load_dwordx4 v[{b}:{b+3}], v{vLO}, s[{SWS}:{SWS+3}], s{r} offen offset:{1024*s_}")
    I(f"s_lshl_b32 s{sLS}, s{sJ}, 13")
    I(f"s_add_u32 s{sLS}, s{sLS}, 131072")
    for q, r in ((0, sWA0), (1, sWA1)):
        I(f"s_add_u32 m0, s{sLS}, {4096*q}")
        I(f"s_add_u32 s{sT0}, s{r}, 4096")
        for s_ in range(4):
            I(f"buffer_load_dwordx4 v{vLO}, s[{SWS}:{SWS+3}], s{sT0} offen offset:{1024*s_} lds")
    stamp(a, 7)
    I(f"s_setprio {SHPRIO2}")
    pollflags(7, "P2_F3P", "P2_F3GOT", 8)
    a.label("P2_F3GOT")
    I(f"v_and_b32 v2, 31, v{vL}")
    I(f"v_lshlrev_b32 v2, 2, v2")
    I(f"buffer_load_dword v4, v2, s[{SWS}:{SWS+3}], s32 offen")
    I(f"buffer_load_dword v5, v2, s[{SWS}:{SWS+3}], s33 offen")
    I("s_waitcnt vmcnt(0)")
    I(f"v_sub_f32 v4, 1.0, v4")
    I(f"v_sub_f32 v5, 1.0, v5")
    for tau in (3, 2, 1, 0):
        for k in range(16): I(f"v_mul_f32 v{ACC2+16*tau+k}, v{ACC2+16*tau+k}, v{4 + (tau & 1)}")
    I(f"s_add_u32 s{sOB2}, s{sOB0}, 4096")
    I(f"s_add_u32 s{sOB3}, s{sOB1}, 4096")
    I(f"v_add_u32 v2, s{sLS}, v{vLO}")
    I(f"s_mul_i32 s{sT0}, s{sJ}, 12288")
    I(f"v_add_u32 v4, s{sT0}, v{vLO}")
    for r in (1, 2, 3):
        I(f"s_xor_b32 s{sT0}, s{sJ}, {r}")
        I(f"s_mul_i32 s{sT0}, s{sT0}, 12288")
        I(f"v_add_u32 v{4+r}, s{sT0}, v{vLO}")
    I("s_waitcnt vmcnt(0)")
    I("s_barrier")
    stamp(a, 8)
    def ldo(s_):
        for q in range(2):
            r = (sOB0, sOB1)[q] if s_ < 4 else (sOB2, sOB3)[q]
            b = OB + 8*s_ + 4*q
            I(f"buffer_load_dwordx4 v[{b}:{b+3}], v{vLO}, s[{SWS}:{SWS+3}], s{r} offen offset:{1024*(s_%4)} sc0 sc1")
    for s_ in range(8): ldo(s_)
    for s_ in range(8):
        b = OB + 8*s_
        a.label(f"P2_CHK{s_}")
        I(f"s_waitcnt vmcnt({14 - 2*s_})")
        I(f"v_max3_u32 v0, v{b}, v{b+1}, v{b+2}")
        I(f"v_max3_u32 v0, v{b+3}, v{b+4}, v0")
        I(f"v_max3_u32 v0, v{b+5}, v{b+6}, v0")
        I(f"v_max_u32 v0, v{b+7}, v0")
        I(f"v_cmp_eq_u32 vcc, -1, v0")
        if s_ >= 4: I("s_waitcnt lgkmcnt(%d)" % (2*(7 - s_)))
        else: I("s_nop 0")
        I("s_nop 2")
        I(f"s_cbranch_vccnz P2_RETRY{s_}")
        a.label(f"P2_GO{s_}")
        wa = WA + 8*(s_ % 4)
        mm4(wa, wa+4, b, b+4)
        if s_ < 4:
            for q in range(2):
                I(f"ds_read_b128 v[{wa+4*q}:{wa+4*q+3}], v2 offset:{4096*q + 1024*s_}")
    I(f"s_lshl_b32 s{sT0}, s{sOR}, 15")
    I(f"s_lshl_b32 s{sT1}, s{sOC}, 6")
    I(f"s_add_u32 s{sT0}, s{sT0}, s{sT1}")
    I(f"v_and_b32 v2, 31, v{vL}")
    I(f"v_lshlrev_b32 v2, 10, v2")
    I(f"v_lshrrev_b32 v{vL}, 5, v{vL}")
    I(f"v_lshl_add_u32 v2, v{vL}, 5, v2")
    I("s_nop 2")
    for r in (3, 2, 1):
        for q in range(4):
            b = ACC2 + 16*r + 4*q
            I(f"ds_write_b128 v{4+r}, v[{b}:{b+3}] offset:{(r-1)*4096 + q*1024}")
    I("s_waitcnt lgkmcnt(0)")
    I("s_barrier")
    for r in range(3):
        for q in range(4):
            b = FR + 16*r + 4*q
            I(f"ds_read_b128 v[{b}:{b+3}], v4 offset:{r*4096 + q*1024}")
    for r in range(3):
        I(f"s_waitcnt lgkmcnt({8-4*r})")
        for k in range(16): I(f"v_add_f32 v{ACC2+k}, v{ACC2+k}, v{FR+16*r+k}")
    for r in range(8): I(f"v_cvt_pk_bf16_f32 v{FR+r}, v{ACC2+2*r}, v{ACC2+2*r+1}")
    I(f"buffer_store_dwordx4 v[{FR}:{FR+3}], v2, s[{SO}:{SO+3}], s{sT0} offen")
    I(f"buffer_store_dwordx4 v[{FR+4}:{FR+7}], v2, s[{SO}:{SO+3}], s{sT0} offen offset:16")
    if DBG:
        I("s_waitcnt vmcnt(0)")
        I("s_mov_b32 s65, s72")
    stamp(a, 8)
    stamp_flush(a, 9, SWS, sW, 0)
    I("s_endpgm")
    for s_ in range(8):
        a.label(f"P2_RETRY{s_}")
        I(f"s_cmp_eq_u32 s{sTO}, 0")
        I(f"s_cbranch_scc1 P2_GO{s_}")
        I(f"s_sub_u32 s{sTO}, s{sTO}, 1")
        if POLLS: I(f"s_sleep {POLLS}")
        for q_ in range(s_, 8): ldo(q_)
        I(f"s_branch P2_CHK{s_}")
    a.label("MK_END")
    I("s_endpgm")
    return a.text(), kdesc(KN, NV, 102, NV), 163840

if __name__ == "__main__":
    txt, kd, lds = gen()
    ref = open(f"cdna_kernels/{NAME}.s.ref").read().splitlines()
    head = [l for l in ref if l.startswith(";") and "@launch" not in l and "Override launch" not in l and "grid=ceil" not in l and "TODO" not in l][:12]
    s = "\n".join(head) + "\n" + f"; @launch grid=(256,1,1) block=(768,1,1) lds={lds}\n"
    s += '.amdgcn_target "amdgcn-amd-amdhsa--gfx950"\n.text\n' + txt + '.section .rodata,"a"\n' + kd
    open(sys.argv[1], "w").write(s)
```

```python
from common import *
PKMISH = opt("--pkmish", 1)
WTF = " sc0 sc1"
TRIT = opt("--trit", 4)
PFIT = opt("--pfit", 3)
TRIT2 = opt("--trit2", 6)
ROTX = opt("--rotx", 7)
ROTR = opt("--rotr", 1)
SHPRIO2 = opt("--shprio2", 3)
ATPRIO = opt("--atprio", 1)
POLLS = opt("--polls", 8)
MPF = opt("--mpf", 0)
DBG2 = opt('--dbg2', 0)
WT1 = opt('--wt1', 'sc0_sc1').replace('_', ' ')
EXP = opt('--exp', 0)
KV0 = opt('--kv0', 5)
NST = 5
TLBW = opt('--tlbw', 0)
GIT = opt('--git', 1)
DEP = opt('--dep', 2)
STG = 32768
SB0 = 98304
XAB = 131072
QL = 147456
GL = 155648
F1IT = opt('--f1it', 1)
Y2IT = opt('--y2it', 6)
F2_OFF = FL_OFF + 16384
KN = NAME + "_kernel"
MF = "v_mfma_f32_32x32x16_bf16"

_stamp = stamp
def stamp(a, idx, comp=True):
    if DBG2 and 1 <= idx <= 7 and COMP[0]: return
    _stamp(a, idx)
COMP = [True]
def gen():
    a = Asm()
    I = a.i
    a.raw(khead(KN))
    I("s_cmp_ge_u32 s2, 256")
    I("s_cbranch_scc1 MK_END")
    SX, SWQ, SWO, SW1, SB1, SW2, SG, SWS = 8, 12, 16, 20, 24, 28, 32, 36
    for s, off in [(SX, 0), (SWQ, 8), (SW1, 32), (SWO, 16), (SB1, 40), (SW2, 48), (SG, 56), (SWS, 80), (100, 72)]:
        I(f"s_load_dwordx2 s[{s}:{s+1}], s[0:1], {off}")
    srd(a, SX, 2048*512*2); srd(a, SWQ, 512*1536*2); srd(a, SW1, 512*1792*2); srd(a, SWS, WS_BYTES)
    sW, sC, sRB, sRT, sT0, sT1, sT2, sHF, sIT = 40, 41, 42, 43, 44, 45, 46, 47, 48
    sRS = 58
    sCOL = [[59, 60], [61, 62]]
    sL2E, sTWO, sQS, s30 = 84, 86, 5, 6
    sTR = 94
    sH, sQB = 95, 96
    vL = 1
    t0, t1, t2, t3 = 2, 3, 4, 5
    vXE, vXO, vWQ, vWF, vWS, vST, vSV, vTS = 6, 7, 8, 9, 10, 11, 12, 13
    vXR = [14, 15, 16, 17]
    vTP = [18]
    vTT = [20, 21]
    vTD = 22
    vG0, vG1 = 23, 24
    XF = [28, 32, 36, 40]
    WF = [[44 + 8*k, 48 + 8*k] for k in range(4)]
    ACC = [76, 92, 108, 124]
    PK = 44
    BIAS, BONE, GX, GW = 140, 146, 150, 154
    NV = 168
    HKR = [152, 156, 160, 164]
    I(f"v_and_b32 v{vL}, 63, v0")
    I(f"v_lshrrev_b32 v{t0}, 6, v0")
    I(f"s_and_b32 s{sT0}, s2, 1")
    I(f"v_readfirstlane_b32 s{sW}, v{t0}")
    I(f"s_lshl_b32 s{sT0}, s{sT0}, 3")
    I(f"s_bfe_u32 s{sT1}, s2, 0x30003")
    I(f"s_add_u32 s{sRB}, s{sT0}, s{sT1}")
    I(f"s_and_b32 s{sC}, s2, 6")
    I(f"s_bfe_u32 s{sT0}, s2, 0x10006")
    I(f"s_add_u32 s{sC}, s{sC}, s{sT0}")
    I(f"s_lshr_b32 s{sHF}, s{sW}, 2")
    I(f"s_and_b32 s{sT0}, s{sW}, 3")
    I(f"s_lshl_b32 s{sRT}, s{sRB}, 2")
    I(f"s_add_u32 s{sRT}, s{sRT}, s{sT0}")
    I(f"v_lshrrev_b32 v{t0}, 3, v{vL}")
    I(f"v_and_b32 v{t1}, 7, v{vL}")
    I(f"v_lshrrev_b32 v{t2}, 1, v{t0}")
    I(f"v_xor_b32 v{t3}, v{t1}, v{t2}")
    I(f"v_lshlrev_b32 v{vXE}, 10, v{t0}")
    I(f"v_lshl_add_u32 v{vXE}, v{t3}, 4, v{vXE}")
    I(f"v_xor_b32 v{vXO}, 64, v{vXE}")
    I(f"v_and_b32 v{t2}, 1, v{t2}")
    I(f"v_lshlrev_b32 v{t2}, 2, v{t2}")
    I(f"v_xor_b32 v{t3}, v{t1}, v{t2}")
    I(f"v_lshlrev_b32 v{t3}, 4, v{t3}")
    I(f"v_mul_u32_u24 v{vWQ}, 3072, v{t0}")
    I(f"v_add_u32 v{vWQ}, v{vWQ}, v{t3}")
    I(f"v_mul_u32_u24 v{vWF}, 3584, v{t0}")
    I(f"v_add_u32 v{vWF}, v{vWF}, v{t3}")
    I(f"v_lshl_add_u32 v{vTD}, v{t0}, 10, v{t3}")
    I(f"v_lshlrev_b32 v{vST}, 4, v{vL}")
    I(f"s_and_b32 s{sT0}, s2, 7")
    I(f"s_lshl_b32 s{sT0}, s{sT0}, 2")
    I(f"s_bfe_u32 s{sT1}, s2, 0x20003")
    I(f"s_add_u32 s{sH}, s{sT0}, s{sT1}")
    I(f"s_lshr_b32 s{sQB}, s2, 5")
    I(f"s_cmp_ge_u32 s2, 128")
    I("s_cbranch_scc1 P1_B")

    def path(ty):
        isA = ty == "A"
        a.vm = []; a.lg = []
        if isA:
            sw = [["Q", "K"], ["F", "S"]]
            I(f"s_lshl_b32 s{sCOL[0][0]}, s{sC}, 7")
            I(f"s_add_u32 s{sCOL[0][1]}, s{sCOL[0][0]}, 1024")
            I(f"s_add_u32 s{sCOL[1][0]}, s{sCOL[0][0]}, {16*128}")
            I(f"s_lshl_b32 s{sCOL[1][1]}, s{sC}, 6")
            I(f"s_add_u32 s{sCOL[1][1]}, s{sCOL[1][1]}, {24*128}")
            I(f"v_lshrrev_b32 v{t0}, 2, v{vL}")
            I(f"v_mul_u32_u24 v{vWS}, 3584, v{t0}")
            I(f"v_and_b32 v{t0}, 3, v{vL}")
            I(f"v_lshl_add_u32 v{vWS}, v{t0}, 4, v{vWS}")
        else:
            sw = [["V"], ["F", "F"]]
            I(f"s_lshl_b32 s{sCOL[0][0]}, s{sC}, 7")
            I(f"s_add_u32 s{sCOL[0][0]}, s{sCOL[0][0]}, 2048")
            I(f"s_lshl_b32 s{sCOL[1][0]}, s{sC}, 8")
            I(f"s_add_u32 s{sCOL[1][1]}, s{sCOL[1][0]}, 128")
        I(f"s_cmp_ge_u32 s{sW}, 8")
        I(f"s_cbranch_scc0 P1{ty}_COMP")
        sJ, sCH, sSTG, sXB = 63, 57, 58, 53
        sPB = [[49, 50], [51, 52]]
        sKXl, sKWl, sSXl, sSPl, sSSl = 97, 98, 54, 55, 56
        I(f"s_sub_u32 s{sJ}, s{sW}, 8")
        I(f"s_and_b32 s{sCH}, s2, {ROTX}")
        if ROTR:
            I(f"s_bfe_u32 s{sT0}, s2, 0x30003")
            I(f"s_and_b32 s{sT0}, s{sT0}, {ROTR}")
            I(f"s_add_u32 s{sCH}, s{sCH}, s{sT0}")
            I(f"s_and_b32 s{sCH}, s{sCH}, 7")
        I(f"s_mov_b32 s{sSTG}, {SB0}")
        I(f"s_lshl_b32 s{sXB}, s{sRB}, 2")
        I(f"s_add_u32 s{sXB}, s{sXB}, s{sJ}")
        I(f"s_lshl_b32 s{sXB}, s{sXB}, 15")
        I(f"s_mul_i32 s{sT1}, s{sJ}, {16*3072}")
        I(f"s_mul_i32 s{sT2}, s{sJ}, {16*3584}")
        for k in range(2):
            for p in range(len(sw[k])):
                I(f"s_add_u32 s{sPB[k][p]}, s{sCOL[k][p]}, s{sT2 if k else sT1}")
        I(f"s_mov_b32 s{sIT}, 0")
        I("s_waitcnt lgkmcnt(0)")
        stamp(a, 0)
        def dma(ms, mc, k, pb, oc, vo, S_):
            I(f"s_add_u32 m0, s{ms}, {mc}")
            if pb is None:
                I(f"s_add_u32 s7, s{k}, {oc}")
            else:
                I(f"s_add_u32 s7, s{k}, s{pb}")
                if oc: I(f"s_add_u32 s7, s7, {oc}")
            I(f"buffer_load_dwordx4 v{vo}, s[{S_}:{S_+3}], s7 offen lds")
        nds = [(0 if (k == 1 and EXP & 4) else 4) + sum(1 if kd == "S" else 2 for kd in sw[k]) for k in range(2)]
        for k in range(2):
            ld = 3584 if k else 3072
            a.label(f"P1{ty}_LD{k}")
            I(f"s_lshl_b32 s{sKXl}, s{sCH}, 7")
            I(f"s_add_u32 s{sKXl}, s{sKXl}, s{sXB}")
            I(f"s_mul_i32 s{sKWl}, s{sCH}, {64*ld}")
            I(f"s_lshl_b32 s{sT0}, s{sJ}, 10")
            I(f"s_add_u32 s{sSSl}, s{sSTG}, s{sT0}")
            I(f"s_add_u32 s{sSPl}, s{sSSl}, s{sT0}")
            I(f"s_lshl_b32 s{sT0}, s{sT0}, 1")
            I(f"s_add_u32 s{sSXl}, s{sSPl}, s{sT0}")
            if not (k == 1 and EXP & 4):
                for i in range(4): dma(sSXl, 1024*i, sKXl, None, 8192*i, vXO if i % 2 else vXE, SX)
            for p, kd in enumerate(sw[k]):
                if kd == "S":
                    dma(sSSl, 16384 + 8192*p, sKWl, sPB[k][p], 0, vWS, SW1)
                else:
                    for i in range(2):
                        dma(sSPl, 16384 + 8192*p + 1024*i, sKWl, sPB[k][p], 8*i*ld, vWF if k else vWQ, SW1 if k else SWQ)
            I(f"s_add_u32 s{sCH}, s{sCH}, 1")
            I(f"s_and_b32 s{sCH}, s{sCH}, 7")
            I(f"s_add_u32 s{sSTG}, s{sSTG}, {STG}")
            I(f"s_cmp_eq_u32 s{sSTG}, {NST*STG}")
            I(f"s_cselect_b32 s{sSTG}, 0, s{sSTG}")
            I(f"s_add_u32 s{sIT}, s{sIT}, 1")
            if k == 0:
                I(f"s_cmp_lt_u32 s{sIT}, {DEP}")
                I(f"s_cbranch_scc1 P1{ty}_LD0")
            I(f"s_waitcnt vmcnt({(DEP-1)*(nds[0] if k == 0 else min(nds))})")
            I("s_barrier")
            I(f"s_cmp_lt_u32 s{sIT}, {8*(k+1)}")
            I(f"s_cbranch_scc1 P1{ty}_LD{k}")
        for r in range(DEP - 2, 0, -1):
            I(f"s_waitcnt vmcnt({r*nds[1]})")
            I("s_barrier")
        I(f"s_mov_b32 s{sIT}, {1 if isA else 0}")
        I("s_branch P2_SHADOW")
        a.label(f"P1{ty}_COMP")
        I("s_waitcnt lgkmcnt(0)")
        stamp(a, 0)
        code_prefetch(a, "MK_END", 8, 1, "p1" + ty, vt=25)
        srd(a, SB1, 1792*2); srd(a, SG, 512*2)
        I(f"s_lshl_b32 s{sT0}, s{sQB}, 3")
        I(f"s_add_u32 s{sT0}, s{sT0}, s{sW}")
        I(f"s_lshl_b32 s{sT0}, s{sT0}, 5")
        I(f"s_add_u32 s{sT0}, s{sT0}, s{sH}")
        I(f"s_lshl_b32 s{sT0}, s{sT0}, 10")
        I(f"s_add_u32 s97, s{sT0}, {OF_OFF}")
        if isA:
            I(f"s_or_b32 s{sT0}, s2, s{sW}")
            I(f"s_cmp_lg_u32 s{sT0}, 0")
            I("s_cbranch_scc1 P1_NONONCE")
            I("s_memrealtime s[50:51]")
            I(f"v_mov_b32 v{t0}, 0")
            I("s_waitcnt lgkmcnt(0)")
            I("s_or_b32 s50, s50, 1")
            I(f"v_mov_b32 v{PK+8}, s50")
            I(f"v_mov_b32 v{PK+9}, s51")
            I("s_mov_b64 exec, 1")
            I(f"global_store_dwordx2 v{t0}, v[{PK+8}:{PK+9}], s[100:101] sc0 sc1")
            I("s_mov_b64 exec, -1")
            a.label("P1_NONONCE")
        if TLBW:
            I(f"s_cmp_lg_u32 s{sW}, 2")
            I(f"s_cbranch_scc1 P1{ty}_NOTLB")
            I(f"v_mul_u32_u24 v{t0}, {TLBW * 1024}, v{vL}")
            for r_ in range(max(1, (23 << 10) // (64 * TLBW) + 1)):
                I(f"s_mov_b32 s{sT0}, {r_ * 64 * TLBW * 1024}")
                I(f"buffer_load_dword v27, v{t0}, s[{SWS}:{SWS+3}], s{sT0} offen sc0 sc1")
            a.label(f"P1{ty}_NOTLB")
        for r in range(6): I(f"v_mov_b32 v{BIAS+r}, 0")
        I(f"s_lshl_b32 s{sT1}, s2, 3")
        I(f"s_add_u32 s{sT1}, s{sT1}, s{sW}")
        I(f"s_lshl_b32 s{sT1}, s{sT1}, 10")
        I(f"buffer_load_dwordx4 v[{GX}:{GX+3}], v{vST}, s[{SX}:{SX+3}], s{sT1} offen")
        I(f"buffer_load_dwordx4 v[{GW}:{GW+3}], v{vST}, s[{SG}:{SG+3}], 0 offen")
        I(f"v_and_b32 v{t0}, 31, v{vL}")
        I(f"v_lshlrev_b32 v{t0}, 1, v{t0}")
        I(f"s_lshl_b32 s{sT1}, s{sHF}, 6")
        for p, kd in enumerate(sw[1]):
            if kd == "F":
                I(f"s_add_u32 s7, s{sCOL[1][p]}, s{sT1}")
                I(f"buffer_load_ushort v{BIAS+2*p}, v{t0}, s[{SB1}:{SB1+3}], s7 offen")
            else:
                I(f"buffer_load_ushort v{BIAS+2*p}, v{t0}, s[{SB1}:{SB1+3}], s{sCOL[1][p]} offen")
        I(f"v_and_b32 v{t0}, 31, v{vL}")
        I(f"v_lshrrev_b32 v{t1}, 5, v{vL}")
        I(f"v_bfe_u32 v{t2}, v{t0}, 1, 3")
        I(f"v_xor_b32 v{t2}, v{t2}, v{t1}")
        I(f"v_lshlrev_b32 v{t3}, 7, v{t0}")
        I(f"s_and_b32 s{sT0}, s{sW}, 3")
        I(f"s_lshl_b32 s{sT0}, s{sT0}, 12")
        I(f"s_add_u32 s{sT0}, s{sT0}, {SB0}")
        I(f"v_add_u32 v{t3}, s{sT0}, v{t3}")
        I(f"v_lshl_add_u32 v{t3}, v{t2}, 4, v{t3}")
        I(f"v_mov_b32 v{vXR[0]}, v{t3}")
        for sp in range(1, 4): I(f"v_xor_b32 v{vXR[sp]}, {32*sp}, v{vXR[0]}")
        I(f"v_bfe_u32 v{t0}, v{vL}, 2, 2")
        I(f"v_and_b32 v{t2}, 3, v{vL}")
        I(f"v_bfe_u32 v{t3}, v{vL}, 4, 1")
        p0 = vTP[0]
        I(f"v_lshlrev_b32 v{p0}, 10, v{t1}")
        I(f"v_lshl_add_u32 v{p0}, v{t0}, 7, v{p0}")
        I(f"v_lshl_add_u32 v{p0}, v{t3}, 5, v{p0}")
        I(f"v_lshl_add_u32 v{p0}, v{t2}, 3, v{p0}")
        I(f"v_lshrrev_b32 v25, 1, v{t0}")
        I(f"v_lshl_add_u32 v{p0}, v25, 6, v{p0}")
        I(f"v_xor_b32 v{p0}, s{sT1}, v{p0}")
        I(f"v_add_u32 v{p0}, {SB0 + 16384}, v{p0}")
        if isA:
            I(f"v_lshlrev_b32 v{vTS}, 9, v{t1}")
            I(f"v_lshl_add_u32 v{vTS}, v{t0}, 6, v{vTS}")
            I(f"v_lshl_add_u32 v{vTS}, v{t3}, 5, v{vTS}")
            I(f"v_lshl_add_u32 v{vTS}, v{t2}, 3, v{vTS}")
            I(f"v_add_u32 v{vTS}, {SB0 + 24576}, v{vTS}")
        else:
            I(f"v_and_b32 v26, 15, v{vL}")
            I(f"v_lshlrev_b32 v{vSV}, 4, v26")
            I(f"v_lshl_add_u32 v{vSV}, v{t1}, 8, v{vSV}")
            I(f"v_lshl_add_u32 v{vSV}, v{t3}, 17, v{vSV}")
            I(f"v_add_u32 v{vSV}, 1024, v{vSV}")
        I(f"s_lshl_b32 s98, s{sW}, 11")
        I(f"v_cmp_gt_u32 vcc, 32, v{vL}")
        I(f"v_mov_b32 v{BONE+1}, 0")
        I(f"v_mov_b32 v{BONE+2}, 0")
        I(f"v_mov_b32 v{BONE+3}, 0")
        I(f"v_mov_b32 v{t0}, 0x3f80")
        I(f"v_cndmask_b32 v{BONE}, 0, v{t0}, vcc")
        I(f"s_mov_b32 s{sL2E}, {fhex(LOG2E)}")
        I(f"s_mov_b32 s{sL2E+1}, {fhex(LOG2E)}")
        I(f"s_mov_b32 s{sTWO}, 2.0")
        I(f"s_mov_b32 s{sTWO+1}, 2.0")
        I(f"s_mov_b32 s{sQS}, {fhex(QSCALE)}")
        I(f"s_mov_b32 s{s30}, {fhex(30.0)}")
        for k in range(64): I(f"v_mov_b32 v{ACC[0]+k}, 0")
        for r in list(range(XF[2], XF[2]+8)) + list(range(WF[2][0], WF[2][0]+16)): I(f"v_mov_b32 v{r}, 0")
        I(f"s_mov_b32 s{sRS}, 3")

        def sweep(k, kinds, sfx=""):
            def reads(s):
                R = [(f"ds_read_b128 v[{XF[s]}:{XF[s]+3}], v{vXR[s]}", 0)]
                for p, kd in enumerate(kinds):
                    b = WF[s][p]
                    if kd == "S":
                        R.append((f"ds_read_b64_tr_b16 v[{b}:{b+1}], v{vTS} offset:{1024*s}", p))
                        R.append((f"ds_read_b64_tr_b16 v[{b+2}:{b+3}], v{vTS} offset:{1024*s + 256}", p))
                    else:
                        off = 8192*p + 2048*s
                        R.append((f"ds_read_b64_tr_b16 v[{b}:{b+1}], v{vTP[0]} offset:{off}", p))
                        R.append((f"ds_read_b64_tr_b16 v[{b+2}:{b+3}], v{vTP[0]} offset:{off+512}", p))
                return R
            def mfs(s):
                M = []
                for p, kd in enumerate(kinds):
                    acc, xf, wf = ACC[2*k + p], XF[s], WF[s][p]
                    if kd == "V": M.append((p, f"{MF} v[{acc}:{acc+15}], v[{xf}:{xf+3}], v[{wf}:{wf+3}], v[{acc}:{acc+15}]"))
                    else: M.append((p, f"{MF} v[{acc}:{acc+15}], v[{wf}:{wf+3}], v[{xf}:{xf+3}], v[{acc}:{acc+15}]"))
                return M
            L = f"P1{ty}_S{k}{sfx}"
            I(f"s_mov_b32 s{sIT}, 0")
            a.label(f"{L}_LOOP")
            if k == 1:
                I(f"s_cmp_lg_u32 s{sIT}, {F1IT}")
                I(f"s_cbranch_scc1 {L}_NW")
                I("s_waitcnt vmcnt(0)")
                a.label(f"{L}_NW")
            I("s_barrier")
            if DBG and k == 1 and DBG2:
                I("s_memtime s[90:91]")
                I("s_waitcnt lgkmcnt(0)")
                for n_, it_ in enumerate((0, 1, 2, 3, 4, 5, 6)):
                    I(f"s_cmp_eq_u32 s{sIT}, {it_}"); I(f"s_cselect_b32 s{65+n_}, s90, s{65+n_}")
            if DBG and k == 0 and not DBG2:
                I(f"s_cmp_lg_u32 s{sIT}, 0")
                I(f"s_cbranch_scc1 {L}_NS")
                stamp(a, 1)
                a.label(f"{L}_NS")
            a.lg = []
            def rd(s):
                for t_, tag in reads(s): a.lds(t_, (s, tag))
            def mm(s, w):
                for p, m in mfs(s):
                    if w: a.wait(lg=(s, p))
                    I(m)
            a.lg = [(2, tag) for _, tag in reads(2)] + [(3, tag) for _, tag in reads(3)]
            def step(sm, sr):
                M = mfs(sm); R = reads(sr)
                for n, (p, m) in enumerate(M):
                    a.wait(lg=(sm, p))
                    I(m)
                    take = [r for r in R if r[1] <= n] if n + 1 < len(M) else R
                    for t_, tag in take: a.lds(t_, (sr + 4, tag))
                    R = [r for r in R if r not in take]
            def retag():
                a.lg = [((x[0] - 4) if x[0] >= 4 else x[0], x[1]) for x in a.lg]
            step(2, 0); step(3, 1); retag()
            if not sfx:
                for it_, lab in (((PFIT, "PF"), (GIT, "G")) if k == 0 else ((F1IT, "F1"),)):
                    I(f"s_cmp_eq_u32 s{sIT}, {it_}")
                    I(f"s_cbranch_scc1 P1{ty}_{lab}")
                a.label(f"P1{ty}_BACK{k}")
            step(0, 2); step(1, 3); retag()
            I(f"s_add_u32 s{sRS}, s{sRS}, 1")
            I(f"s_mov_b32 s{sT0}, {STG}")
            I(f"s_cmp_eq_u32 s{sRS}, {NST}")
            I(f"s_cselect_b32 s{sT0}, {(-(NST-1)*STG) & 0xffffffff}, s{sT0}")
            I(f"s_cselect_b32 s{sRS}, 0, s{sRS}")
            for r in vXR + vTP + ([vTS] if isA else []): I(f"v_add_u32 v{r}, s{sT0}, v{r}")
            I(f"s_add_u32 s{sIT}, s{sIT}, 1")
            I(f"s_cmp_lt_u32 s{sIT}, 8")
            I(f"s_cbranch_scc1 {L}_LOOP")
            mm(2, True); mm(3, True)

        sweep(0, sw[0])
        stamp(a, 2)
        for r in range(8): I(f"v_mov_b32 v{XF[2]+r}, 0")
        I(f"s_lshl_b32 s7, s{sC}, 1")
        I(f"s_add_u32 s50, s7, s{sHF}")
        I(f"s_lshl_b32 s51, s50, 17")
        I(f"s_lshl_b32 s{sT0}, s{sRT}, 10")
        I(f"s_add_u32 s51, s51, s{sT0}")
        I(f"s_lshl_b32 s52, s51, 1")
        I(f"s_add_u32 s52, s52, {KV_OFF}")
        I(f"s_add_u32 s53, s51, 65536")
        I(f"s_add_u32 s54, s52, 131072")
        I(f"v_mov_b32 v{t0}, 0")
        I(f"global_load_dwordx2 v[{GX}:{GX+1}], v{t0}, s[100:101] sc0 sc1")
        if isA:
            acc = ACC[1]
            for e in range(8): I(f"v_cvt_pk_bf16_f32 v{PK+e}, v{acc+2*e}, v{acc+2*e+1}")
            I(f"buffer_store_dwordx4 v[{PK}:{PK+3}], v{vST}, s[{SWS}:{SWS+3}], s52 offen{WTF}")
            I(f"buffer_store_dwordx4 v[{PK+4}:{PK+7}], v{vST}, s[{SWS}:{SWS+3}], s54 offen{WTF}")
            acc = ACC[0]
            for e in range(16): I(f"v_mul_f32 v{acc+e}, s{sQS}, v{acc+e}")
            for e in range(8): I(f"v_cvt_pk_bf16_f32 v{PK+8+e}, v{acc+2*e}, v{acc+2*e+1}")
            I(f"buffer_store_dwordx4 v[{PK+8}:{PK+11}], v{vST}, s[{SWS}:{SWS+3}], s51 offen{WTF}")
            I(f"buffer_store_dwordx4 v[{PK+12}:{PK+15}], v{vST}, s[{SWS}:{SWS+3}], s53 offen{WTF}")
        else:
            acc = ACC[0]
            for e in range(8): I(f"v_cvt_pk_bf16_f32 v{PK+8+e}, v{acc+2*e}, v{acc+2*e+1}")
            I(f"buffer_store_dwordx4 v[{PK+8}:{PK+11}], v{vSV}, s[{SWS}:{SWS+3}], s52 offen{WTF}")
            I(f"buffer_store_dwordx4 v[{PK+12}:{PK+15}], v{vSV}, s[{SWS}:{SWS+3}], s52 offen offset:512{WTF}")
        if isA:
            I(f"s_cmp_eq_u32 s{sHF}, 0")
            I(f"s_cbranch_scc1 P1A_H0")
            sweep(1, sw[1][:1], "h")
            I(f"s_branch P1{ty}_EPI")
            a.label("P1A_H0")
        sweep(1, sw[1])
        I(f"s_branch P1{ty}_EPI")
        a.label(f"P1{ty}_F1")
        I(f"s_cmp_lg_u32 s{sW}, 0")
        I(f"s_cbranch_scc1 P1{ty}_F1C")
        I(f"s_mov_b32 s51, 0x40000")
        a.label(f"P1{ty}_F1A")
        I(f"v_readfirstlane_b32 s50, v{GX}")
        I(f"v_mov_b32 v{t0}, 0")
        I(f"s_lshl_b32 s{sT2}, s2, 6")
        I(f"s_add_u32 s{sT2}, s{sT2}, {FL_OFF}")
        I("s_nop 1")
        I(f"s_cmp_lg_u32 s50, 0")
        I(f"s_cbranch_scc1 P1{ty}_F1B")
        I(f"s_cmp_eq_u32 s51, 0")
        I(f"s_cbranch_scc1 P1{ty}_F1B")
        I(f"s_sub_u32 s51, s51, 1")
        I(f"global_load_dwordx2 v[{GX}:{GX+1}], v{t0}, s[100:101] sc0 sc1")
        I("s_waitcnt vmcnt(0)")
        I(f"s_branch P1{ty}_F1A")
        a.label(f"P1{ty}_F1B")
        I("s_mov_b64 exec, 1")
        I(f"buffer_store_dwordx2 v[{GX}:{GX+1}], v{t0}, s[{SWS}:{SWS+3}], s{sT2} offen sc0 sc1")
        I("s_mov_b64 exec, -1")
        a.label(f"P1{ty}_F1C")
        I(f"s_branch P1{ty}_BACK1")
        a.label(f"P1{ty}_G")
        I("s_waitcnt vmcnt(0)")
        I(f"v_mov_b32 v{vG0}, 0")
        I(f"v_mov_b32 v{vG1}, 0")
        for k in range(4): I(f"v_dot2_f32_bf16 v{vG0+k%2}, v{GX+k}, v{GW+k}, v{vG0+k%2}")
        I("s_nop 2")
        I(f"v_add_f32 v{vG0}, v{vG0}, v{vG1}")
        for d in ("quad_perm:[1,0,3,2]", "quad_perm:[2,3,0,1]", "row_half_mirror", "row_mirror"):
            I("s_nop 1")
            I(f"v_add_f32_dpp v{vG0}, v{vG0}, v{vG0} {d} row_mask:0xf bank_mask:0xf")
        I("s_nop 0")
        for k in range(4): I(f"v_readlane_b32 s{50+k}, v{vG0}, {16*k}")
        I(f"s_lshl_b32 s{sT1}, s2, 3")
        I(f"s_add_u32 s{sT1}, s{sT1}, s{sW}")
        I(f"v_mov_b32 v{vG0}, s50")
        I(f"v_add_f32 v{vG0}, s51, v{vG0}")
        I(f"v_add_f32 v{vG0}, s52, v{vG0}")
        I(f"v_add_f32 v{vG0}, s53, v{vG0}")
        I(f"v_mul_f32 v{vG0}, s{sL2E}, v{vG0}")
        I(f"v_exp_f32 v{vG0}, -v{vG0}")
        I(f"s_lshl_b32 s{sT1}, s{sT1}, 2")
        I(f"v_add_f32 v{vG0}, 1.0, v{vG0}")
        I(f"v_rcp_f32 v{vG0}, v{vG0}")
        I(f"s_add_u32 s{sT1}, s{sT1}, {G_OFF}")
        I(f"v_mov_b32 v{vG1}, 0")
        I(f"s_mov_b64 exec, 1")
        I(f"buffer_store_dword v{vG0}, v{vG1}, s[{SWS}:{SWS+3}], s{sT1} offen{WTF}")
        I(f"s_mov_b64 exec, -1")
        I(f"s_branch P1{ty}_BACK0")
        a.label(f"P1{ty}_PF")
        I(f"s_cmp_ge_u32 s{sW}, 2")
        I(f"s_cbranch_scc1 P1{ty}_BACK0")
        I(f"s_cmp_eq_u32 s{sW}, 0")
        I(f"s_cselect_b32 s{sT1}, s{sCOL[1][0]}, s{sCOL[1][1]}")
        I(f"s_bfe_u32 s{sT2}, s2, 0x30003")
        I(f"s_mul_i32 s{sT2}, s{sT2}, {64*3584}")
        I(f"s_add_u32 s{sT1}, s{sT1}, s{sT2}")
        I(f"v_mul_u32_u24 v{t0}, 3584, v{vL}")
        I(f"buffer_load_dword v27, v{t0}, s[{SW1}:{SW1+3}], s{sT1} offen")
        I(f"s_branch P1{ty}_BACK0")
        a.label(f"P1{ty}_EPI")
        stamp(a, 3)
        for p in range(2):
            acc = ACC[2 + p]
            if p == 1:
                I(f"s_mul_i32 s{sT2}, s{sRT}, {144*1024}")
                I(f"s_add_u32 s{sT2}, s{sT2}, {AF_OFF + 32*1024}")
                I(f"s_lshl_b32 s{sT1}, s{sHF}, 11")
                I(f"s_add_u32 s{sT1}, s{sT1}, s{sT2}")
            I(f"{MF} v[{acc}:{acc+15}], v[{BIAS+2*p}:{BIAS+2*p+3}], v[{BONE}:{BONE+3}], v[{acc}:{acc+15}]")
        jobs = [(0, 0), (0, 1), (1, 0), (1, 1)]
        for n, (p, hh) in enumerate(jobs):
            I(f"s_lshl_b32 s7, s{sCOL[1][p]}, 5")
            I(f"s_add_u32 s7, s7, s{sT2 if (isA and p == 1) else sT1}")
            I(f"s_add_u32 s{76+n}, s7, {1024*hh}")
        I(f"s_mov_b32 s56, {'s%d' % sHF if isA else 0}")
        tb = [ACC[0], ACC[0] + 8, 44]
        def mish8(acc, pk):
            vp = lambda r: f"v[{r}:{r+1}]"
            prs = range(4)
            T = lambda e, kk: tb[kk] + 2*e
            for e in prs: I(f"v_pk_mul_f32 {vp(T(e,0))}, {vp(acc+2*e)}, s[{sL2E}:{sL2E+1}]")
            for e in range(8): I(f"v_min_f32 v{tb[0]+e}, s{s30}, v{tb[0]+e}")
            for e in range(8): I(f"v_exp_f32 v{tb[0]+e}, v{tb[0]+e}")
            for e in prs: I(f"v_pk_add_f32 {vp(T(e,1))}, {vp(T(e,0))}, s[{sTWO}:{sTWO+1}]")
            for e in prs: I(f"v_pk_mul_f32 {vp(T(e,1))}, {vp(T(e,0))}, {vp(T(e,1))}")
            for e in prs: I(f"v_pk_add_f32 {vp(T(e,2))}, {vp(T(e,1))}, s[{sTWO}:{sTWO+1}]")
            for e in range(8): I(f"v_rcp_f32 v{tb[2]+e}, v{tb[2]+e}")
            for e in prs: I(f"v_pk_mul_f32 {vp(T(e,1))}, {vp(T(e,1))}, {vp(T(e,2))}")
            for e in prs: I(f"v_pk_mul_f32 {vp(T(e,0))}, {vp(acc+2*e)}, {vp(T(e,1))}")
            for e in range(4): I(f"v_cvt_pk_bf16_f32 v{pk+e}, v{tb[0]+2*e}, v{tb[0]+2*e+1}")
        for n, (p, hh) in enumerate(jobs):
            if isA and n == 2:
                I(f"s_cmp_eq_u32 s{sHF}, 1")
                I(f"s_cbranch_scc1 P1A_EDONE")
            mish8(ACC[2 + p] + 8*hh, HKR[n])
        if isA: a.label("P1A_EDONE")
        stamp(a, 4)
        I("s_branch P2_ATT")

    path("A")
    a.label("P1_B")
    path("B")

    a.label("P2_ATT")
    sCNT, sNMAX, sFIRST, sVM = 50, 51, 52, 54
    vT, vLO, vKA, vVA, vG, vM, vT2 = 2, 11, 4, 5, 6, 7, 8
    Q, NEGM, S, O, P, KF, VF = 12, 16, [32, 48], 64, 80, [88, 92], [96, 104]
    I(f"s_mov_b32 s{sVM}, 0xffff")
    I(f"s_mov_b32 s{sVM+1}, 0xffff")
    I(f"v_and_b32 v{vT}, 27, v{vL}")
    I(f"v_cmp_eq_u32 vcc, 16, v{vT}")
    I(f"v_mov_b32 v{vT}, 0x3f803f80")
    I(f"s_lshl_b32 s{sT0}, s{sW}, 10")
    I(f"v_cndmask_b32 v{VF[0]}, 0, v{vT}, vcc")
    for r in range(1, 16): I(f"v_mov_b32 v{VF[0]+r}, v{VF[0]}")
    I(f"s_add_u32 s{sT0}, s{sT0}, {QL}")
    I(f"v_add_u32 v{vT}, s{sT0}, v{vLO}")
    I(f"v_and_b32 v{vT2}, 31, v{vL}")
    I(f"v_lshlrev_b32 v{vT2}, 2, v{vT2}")
    I(f"s_lshl_b32 s{sT0}, s{sW}, 7")
    I(f"s_add_u32 s{sT0}, s{sT0}, {GL}")
    I(f"v_add_u32 v{vT2}, s{sT0}, v{vT2}")
    for r in range(4): I(f"v_mov_b32 v{148+r}, -1")
    I(f"s_mov_b32 s{sNMAX}, 1")
    I(f"s_mov_b32 s53, 8")
    I(f"s_mov_b32 s{sFIRST}, {Y2IT}")
    if ATPRIO: I("s_setprio 2")
    I("s_barrier")
    stamp(a, 5)
    I(f"ds_read_b128 v[{Q}:{Q+3}], v{vT}")
    I(f"ds_read_b32 v{vG}, v{vT2}")
    for n in range(4):
        if n == 2:
            I(f"s_cmp_eq_u32 s56, 1")
            I(f"s_cbranch_scc1 P2_NOH3")
        I(f"buffer_store_dwordx4 v[{HKR[n]}:{HKR[n]+3}], v{vLO}, s[{SWS}:{SWS+3}], s{76+n} offen{WTF}")
    a.label("P2_NOH3")
    I(f"buffer_store_dwordx4 v[148:151], v{vLO}, s[{SWS}:{SWS+3}], s97 offen{WTF}")
    a.label("P2_MAXPASS")
    I(f"v_mov_b32 v{vKA}, v{vLO}")
    I(f"v_mov_b32 v{vM}, 0xff800000")
    I(f"s_mov_b32 s{sCNT}, s{sNMAX}")
    a.label("P2_MAXLOOP")
    I(f"ds_read_b128 v[{KF[0]}:{KF[0]+3}], v{vKA}")
    I(f"v_add_u32 v{vKA}, 2048, v{vKA}")
    I("s_waitcnt lgkmcnt(0)")
    I(f"{MF} v[{S[0]}:{S[0]+15}], v[{KF[0]}:{KF[0]+3}], v[{Q}:{Q+3}], 0")
    I("s_nop 11")
    for r in range(8): I(f"v_max3_f32 v{vM}, v{S[0]+2*r}, v{S[0]+2*r+1}, v{vM}")
    I(f"s_sub_u32 s{sCNT}, s{sCNT}, 1")
    I(f"s_cmp_lg_u32 s{sCNT}, 0")
    I("s_cbranch_scc1 P2_MAXLOOP")
    I(f"v_mov_b32 v{vT}, v{vM}")
    I(f"v_mov_b32 v{vKA}, v{vLO}")
    I(f"v_and_b32 v{vT2}, 15, v{vL}")
    I(f"v_permlane32_swap_b32 v{vM}, v{vT}")
    I(f"v_lshlrev_b32 v{vVA}, 4, v{vT2}")
    I(f"v_lshrrev_b32 v{vT2}, 5, v{vL}")
    I(f"v_max_f32 v{vM}, v{vM}, v{vT}")
    I(f"v_lshl_add_u32 v{vVA}, v{vT2}, 8, v{vVA}")
    I(f"v_add_u32 v{vVA}, 1024, v{vVA}")
    def rdK(t, buf): I(f"ds_read_b128 v[{KF[buf]}:{KF[buf]+3}], v{vKA} offset:{2048*t}")
    def rdV(t, buf):
        I(f"s_mov_b64 exec, s[{sVM}:{sVM+1}]")
        I(f"ds_read_b128 v[{VF[buf]}:{VF[buf]+3}], v{vVA} offset:{2048*t}")
        I(f"ds_read_b128 v[{VF[buf]+4}:{VF[buf]+7}], v{vVA} offset:{2048*t+512}")
        I(f"s_mov_b64 exec, -1")
    rdK(0, 0); rdK(1, 1); rdV(0, 0)
    for r in range(16): I(f"v_sub_f32 v{NEGM+r}, 0, v{vM}")
    for r in range(4, 8): I(f"v_mov_b32 v{P+r}, 0")
    I("s_waitcnt lgkmcnt(3)")
    I(f"{MF} v[{S[0]}:{S[0]+15}], v[{KF[0]}:{KF[0]+3}], v[{Q}:{Q+3}], v[{NEGM}:{NEGM+15}]")
    for r in range(16): I(f"v_mov_b32 v{O+r}, 0")
    I(f"s_mov_b32 s{sCNT}, 8")
    a.label("P2_LOOP")
    for t in range(8):
        cur, nxt = t % 2, (t + 1) % 2
        sc = S[cur]
        e = lambda k: I(f"v_exp_f32 v{sc+k}, v{sc+k}")
        c = lambda k: I(f"v_cvt_pk_bf16_f32 v{P+k}, v{sc+2*k}, v{sc+2*k+1}")
        I("s_waitcnt lgkmcnt(2)")
        I(f"{MF} v[{S[nxt]}:{S[nxt]+15}], v[{KF[nxt]}:{KF[nxt]+3}], v[{Q}:{Q+3}], v[{NEGM}:{NEGM+15}]")
        rdK(t + 2, cur)
        for k in range(5): e(k)
        I(f"{MF} v[{O}:{O+15}], v[{VF[nxt]+4}:{VF[nxt]+7}], v[{P+4}:{P+7}], v[{O}:{O+15}]")
        rdV(t + 1, nxt)
        c(0); c(1)
        for k in range(5, 10): e(k)
        c(2); c(3); e(10); e(11)
        I("s_waitcnt lgkmcnt(3)")
        I(f"{MF} v[{O}:{O+15}], v[{VF[cur]}:{VF[cur]+3}], v[{P}:{P+3}], v[{O}:{O+15}]")
        c(4); c(5)
        for k in range(12, 16): e(k)
        c(6); c(7)
    I(f"v_add_u32 v{vKA}, 0x4000, v{vKA}")
    I(f"v_add_u32 v{vVA}, 0x4000, v{vVA}")
    I(f"s_cmp_lg_u32 s53, s{sCNT}")
    I("s_cbranch_scc1 P2_NOBAR0")
    I(f"s_mov_b32 s53, 100")
    I("s_barrier")
    a.label("P2_NOBAR0")
    I(f"s_cmp_lg_u32 s{sFIRST}, s{sCNT}")
    I("s_cbranch_scc1 P2_NOBAR")
    I(f"s_mov_b32 s{sFIRST}, 100")
    I("s_waitcnt vmcnt(0)")
    I("s_barrier")
    stamp(a, 6)
    a.label("P2_NOBAR")
    if ATPRIO:
        I(f"s_cmp_lg_u32 s{sCNT}, 5")
        I("s_cbranch_scc1 P2_NP1")
        I("s_setprio 1")
        a.label("P2_NP1")
        I(f"s_cmp_lg_u32 s{sCNT}, 2")
        I("s_cbranch_scc1 P2_NP2")
        I("s_setprio 0")
        a.label("P2_NP2")
    I(f"s_sub_u32 s{sCNT}, s{sCNT}, 1")
    I(f"s_cmp_lg_u32 s{sCNT}, 0")
    I("s_cbranch_scc1 P2_LOOP")
    I(f"{MF} v[{O}:{O+15}], v[{VF[1]+4}:{VF[1]+7}], v[{P+4}:{P+7}], v[{O}:{O+15}]")
    I("s_waitcnt lgkmcnt(0)")
    I("s_nop 11")
    stamp(a, 7)
    I(f"v_mov_b32 v{vT}, v{O+8}")
    I(f"v_rcp_f32 v{vT2}, v{O+8}")
    for r in range(8): I(f"v_fma_f32 v{vT}, v{O+r}, 0, v{vT}")
    I(f"v_cmp_gt_f32 vcc, {fhex(2.0**100)}, v{vT}")
    I(f"v_mul_f32 v{vT2}, v{vT2}, v{vG}")
    I("s_nop 3")
    I(f"s_cmp_eq_u64 vcc, -1")
    I("s_cbranch_scc1 P2_OK")
    I(f"s_cmp_eq_u32 s{sNMAX}, 64")
    I("s_cbranch_scc1 P2_OK")
    I(f"s_mov_b32 s{sNMAX}, 64")
    I("s_branch P2_MAXPASS")
    a.label("P2_OK")
    for r in range(8): I(f"v_mul_f32 v{O+r}, v{O+r}, v{vT2}")
    for r in range(4): I(f"v_cvt_pk_bf16_f32 v{P+r}, v{O+2*r}, v{O+2*r+1}")
    I(f"buffer_store_dwordx4 v[{P}:{P+3}], v{vLO}, s[{SWS}:{SWS+3}], s97 offen sc0 sc1")
    stamp(a, 8)
    stamp_flush(a, 9, SWS, sW, 0)
    I("s_endpgm")

    COMP[0] = False
    a.label("P2_SHADOW")
    sJ = 63
    sN = 8
    SO = 12
    sA0, sA1, sB0, sB1 = 80, 81, 82, 83
    sKV, sM0 = 20, 21
    sOC, sOR, sWA0, sWA1, sOB0, sOB1, sLS, sOB2, sOB3 = 22, 23, 24, 25, 26, 27, 84, 85, 86
    sTO = 87
    vLO = 3
    I(f"s_load_dwordx2 s[{SO}:{SO+1}], s[0:1], 64")
    I(f"s_setprio {SHPRIO2}")
    I(f"v_mov_b32 v{vLO}, v{vST}")
    I(f"v_mov_b32 v2, 0")
    I(f"s_mov_b32 s{sTO}, 0x40000")
    I(f"s_and_b32 s{sT0}, s2, 6")
    I(f"s_and_b32 s{sT1}, s2, 1")
    I(f"s_lshl_b32 s{sT1}, s{sT1}, 6")
    I(f"s_or_b32 s{sT0}, s{sT0}, s{sT1}")
    I(f"v_and_b32 v6, 1, v{vL}")
    I(f"v_bfe_u32 v7, v{vL}, 1, 3")
    I(f"v_lshl_or_b32 v6, v7, 3, v6")
    I(f"v_bfe_u32 v7, v{vL}, 4, 1")
    I(f"v_lshl_or_b32 v6, v7, 7, v6")
    I(f"v_or_b32 v6, s{sT0}, v6")
    I(f"s_lshl_b32 s{sT0}, s{sQB}, 5")
    I(f"v_and_b32 v7, 31, v{vL}")
    I(f"v_add_u32 v7, s{sT0}, v7")
    I(f"v_cmp_gt_u32 vcc, 32, v{vL}")
    I(f"s_lshl_b32 s{sKV}, s{sH}, 17")
    I(f"s_lshl_b32 s{sM0}, s{sJ}, 10")
    I(f"v_cndmask_b32 v6, v7, v6, vcc")
    I(f"v_lshlrev_b32 v6, 6, v6")
    I(f"s_add_u32 s{sKV}, s{sKV}, s{sM0}")
    I(f"s_add_u32 s{sKV}, s{sKV}, {KV_OFF}")
    I(f"s_lshl_b32 s{sT2}, s2, 6")
    I(f"s_add_u32 s{sT2}, s{sT2}, {FL_OFF}")
    I(f"s_mov_b32 s{sLS}, {FL_OFF}")
    I(f"global_load_dwordx2 v[4:5], v2, s[100:101] sc0 sc1")
    I(f"buffer_load_dwordx2 v[8:9], v6, s[{SWS}:{SWS+3}], s{sLS} offen sc0 sc1")
    I("s_waitcnt vmcnt(0) lgkmcnt(0)")
    I("s_barrier")
    stamp(a, 2)
    srd(a, SO, 2048*512*2)
    a.label("P2_F1CHK")
    I(f"v_readfirstlane_b32 s{sN}, v4")
    I(f"v_readfirstlane_b32 s{sN+1}, v5")
    I("s_nop 1")
    I(f"v_cmp_eq_u64 vcc, s[{sN}:{sN+1}], v[8:9]")
    I(f"s_cmp_eq_u32 s{sN}, 0")
    I("s_cbranch_scc1 P2_F1RE")
    I("s_nop 3")
    I(f"s_cmp_eq_u64 vcc, -1")
    I("s_cbranch_scc1 P2_F1GOT")
    a.label("P2_F1RE")
    I(f"s_cmp_eq_u32 s{sTO}, 0")
    I(f"s_cbranch_scc1 P2_F1GOT")
    I(f"s_sub_u32 s{sTO}, s{sTO}, 1")
    I(f"s_sleep {POLLS}")
    I(f"global_load_dwordx2 v[4:5], v2, s[100:101] sc0 sc1")
    I(f"buffer_load_dwordx2 v[8:9], v6, s[{SWS}:{SWS+3}], s{sLS} offen sc0 sc1")
    I("s_waitcnt vmcnt(0)")
    I("s_branch P2_F1CHK")
    a.label("P2_F1GOT")
    stamp(a, 3)
    def kvdma():
        I(f"s_mov_b32 m0, s{sM0}")
        I(f"s_add_u32 s{sM0}, s{sM0}, 4096")
        I(f"buffer_load_dwordx4 v{vLO}, s[{SWS}:{SWS+3}], s{sKV} offen lds")
        I(f"s_add_u32 s{sKV}, s{sKV}, 4096")
    I(f"s_lshl_b32 s{sT0}, s{sH}, 6")
    I(f"s_lshl_b32 s{sT1}, s{sQB}, 3")
    I(f"s_add_u32 s{sT0}, s{sT0}, s{sT1}")
    I(f"s_lshl_b32 s{sT1}, s{sJ}, 1")
    I(f"s_add_u32 s{sT0}, s{sT0}, s{sT1}")
    I(f"s_lshl_b32 s{sT0}, s{sT0}, 10")
    I(f"s_lshl_b32 s{sT1}, s{sJ}, 11")
    I(f"s_add_u32 m0, s{sT1}, {QL}")
    I(f"s_lshl_b32 s{sT1}, s{sQB}, 10")
    I(f"buffer_load_dwordx4 v{vLO}, s[{SWS}:{SWS+3}], s{sT0} offen lds")
    I(f"buffer_load_dwordx4 v{vLO}, s[{SWS}:{SWS+3}], s{sT0} offen offset:1024 lds")
    I(f"s_mov_b32 m0, {GL}")
    I(f"s_add_u32 s{sT1}, s{sT1}, {G_OFF}")
    I(f"buffer_load_dwordx4 v{vLO}, s[{SWS}:{SWS+3}], s{sT1} offen lds")
    for half in range(3):
        I(f"s_mov_b32 s{sCNT}, {(KV0, 16 - KV0, 16)[half]}")
        a.label(f"P2_KVLOOP{half}")
        kvdma()
        I(f"s_sub_u32 s{sCNT}, s{sCNT}, 1")
        I(f"s_cmp_lg_u32 s{sCNT}, 0")
        I(f"s_cbranch_scc1 P2_KVLOOP{half}")
        if half == 1:
            I(f"s_waitcnt vmcnt({16 - KV0})")
            I("s_barrier")
            stamp(a, 4)
            I("s_waitcnt vmcnt(0)")
            I("s_barrier")
            srd(a, SWO, 512*512*2); srd(a, SW2, 1792*512*2)
            I(f"s_lshl_b32 s{sLS}, s{sJ}, 12")
            I(f"s_add_u32 s{sLS}, s{sLS}, {131072}")
            I(f"v_lshrrev_b32 v12, 5, v{vL}")
            I(f"v_bfe_u32 v13, v{vL}, 2, 2")
            I(f"v_and_b32 v14, 3, v{vL}")
            I(f"v_bfe_u32 v15, v{vL}, 4, 1")
            I(f"v_lshlrev_b32 v10, 9, v12")
            I(f"v_lshl_add_u32 v10, v13, 7, v10")
            I(f"v_lshrrev_b32 v16, 1, v13")
            I(f"v_lshl_add_u32 v10, v16, 6, v10")
            I(f"v_lshl_add_u32 v10, v15, 4, v10")
            I(f"v_and_b32 v16, 1, v14")
            I(f"v_lshl_add_u32 v10, v16, 5, v10")
            I(f"v_lshrrev_b32 v16, 1, v14")
            I(f"v_lshl_add_u32 v10, v16, 3, v10")
            I(f"v_add_u32 v10, s{sLS}, v10")
            I(f"v_xor_b32 v11, 64, v10")
            I(f"s_lshl_b32 s52, s2, 2")
            I(f"s_add_u32 s52, s52, s{sJ}")
            for n in range(2):
                if n == 1:
                    I(f"s_cmp_ge_u32 s52, 128")
                    I(f"s_cbranch_scc1 P2_TR1")
                    I(f"s_add_u32 s52, s52, 1024")
                I(f"s_mul_i32 s53, s52, 7282")
                I(f"s_lshr_b32 s53, s53, 20")
                I(f"s_mul_i32 s54, s53, 144")
                I(f"s_sub_u32 s54, s52, s54")
                I(f"s_add_u32 s{56+n}, s52, s52")
                I(f"s_sub_u32 s{56+n}, s{56+n}, s54")
                I(f"s_lshl_b32 s{56+n}, s{56+n}, 10")
                I(f"s_lshl_b32 s{sT0}, s54, 14")
                I(f"s_lshl_b32 s{sT1}, s53, 7")
                I(f"s_add_u32 s{sT0}, s{sT0}, s{sT1}")
                I(f"s_add_u32 m0, s{sLS}, {2048*n}")
                I(f"s_cmp_ge_u32 s54, 32")
                I(f"s_cbranch_scc1 P2_TW2{n}")
                I(f"s_add_u32 s{sT1}, s{sT0}, {8192 - 1024}")
                I(f"buffer_load_dwordx4 v{vTD}, s[{SWO}:{SWO+3}], s{sT0} offen lds")
                I(f"buffer_load_dwordx4 v{vTD}, s[{SWO}:{SWO+3}], s{sT1} offen offset:1024 lds")
                I(f"s_branch P2_TD{n}")
                a.label(f"P2_TW2{n}")
                I(f"s_sub_u32 s{sT0}, s{sT0}, {32*16384}")
                I(f"s_add_u32 s{sT1}, s{sT0}, {8192 - 1024}")
                I(f"buffer_load_dwordx4 v{vTD}, s[{SW2}:{SW2+3}], s{sT0} offen lds")
                I(f"buffer_load_dwordx4 v{vTD}, s[{SW2}:{SW2+3}], s{sT1} offen offset:1024 lds")
                a.label(f"P2_TD{n}")
            a.label("P2_TR1")
    I("s_waitcnt vmcnt(16)")
    for n in range(2):
        for ct in range(2):
            b = 24 + 8*n + 4*ct
            I(f"ds_read_b64_tr_b16 v[{b}:{b+1}], v{10+ct} offset:{2048*n}")
            I(f"ds_read_b64_tr_b16 v[{b+2}:{b+3}], v{10+ct} offset:{2048*n+1024}")
    I("s_waitcnt lgkmcnt(0)")
    for n in range(2):
        if n == 1:
            I(f"s_cmp_lt_u32 s52, 1024")
            I(f"s_cbranch_scc1 P2_TR2")
        for ct in range(2):
            b = 24 + 8*n + 4*ct
            I(f"s_add_u32 s7, s{56+n}, {WF_OFF + ct*144*1024}")
            I(f"buffer_store_dwordx4 v[{b}:{b+3}], v{vLO}, s[{SWS}:{SWS+3}], s7 offen{WTF}")
    a.label("P2_TR2")
    I(f"s_lshr_b32 s{sT0}, s{sJ}, 1")
    I(f"s_lshl_b32 s{sT1}, s{sQB}, 1")
    I(f"s_add_u32 s{sA0}, s{sT1}, s{sT0}")
    I(f"s_xor_b32 s{sA1}, s{sA0}, 1")
    I(f"s_and_b32 s{sT0}, s{sJ}, 1")
    I(f"s_lshl_b32 s{sT1}, s{sH}, 1")
    I(f"s_add_u32 s{sB0}, s{sT1}, s{sT0}")
    I(f"s_xor_b32 s{sB1}, s{sB0}, 1")
    I(f"s_mov_b32 s{sOC}, s{sA0}")
    I(f"s_mov_b32 s{sOR}, s{sB0}")
    I(f"s_lshl_b32 s32, s{sB0}, 7")
    I(f"s_add_u32 s32, s32, {G_OFF}")
    I(f"s_lshl_b32 s33, s{sB1}, 7")
    I(f"s_add_u32 s33, s33, {G_OFF}")
    I(f"s_lshl_b32 s{sT0}, s{sJ}, 13")
    for d, r in ((sWA0, sA0), (sWA1, sA1)):
        I(f"s_mul_i32 s{d}, s{r}, {144*1024}")
        I(f"s_add_u32 s{d}, s{d}, s{sT0}")
        I(f"s_add_u32 s{d}, s{d}, {WF_OFF}")
    for d, r in ((sOB0, sB0), (sOB1, sB1)):
        I(f"s_lshl_b32 s{d}, s{r}, 15")
        I(f"s_add_u32 s{d}, s{d}, s{sT0}")
        I(f"s_add_u32 s{d}, s{d}, {OF_OFF}")
    I(f"s_mul_i32 s{sT0}, s{sJ}, {28*1024}")
    for r, off in ((sA0, WF_OFF), (sA1, WF_OFF), (sB0, AF_OFF), (sB1, AF_OFF)):
        I(f"s_mul_i32 s{r}, s{r}, {144*1024}")
        I(f"s_add_u32 s{r}, s{r}, s{sT0}")
        I(f"s_add_u32 s{r}, s{r}, {off + 32*1024}")
    ACC2, FR = 8, 72
    I(f"s_lshr_b32 s{sT0}, s{sH}, 1")
    I(f"s_lshr_b32 s{sT1}, s{sT0}, 3")
    I(f"s_and_b32 s{sT0}, s{sT0}, 7")
    I(f"s_lshl_b32 s{sT0}, s{sT0}, 3")
    I(f"s_or_b32 s{sT0}, s{sT0}, s{sT1}")
    I(f"v_and_b32 v6, 6, v{vL}")
    I(f"v_and_b32 v7, 1, v{vL}")
    I(f"v_lshl_or_b32 v6, v7, 6, v6")
    I(f"v_bfe_u32 v7, v{vL}, 3, 1")
    I(f"v_lshl_or_b32 v6, v7, 7, v6")
    I(f"v_or_b32 v6, s{sT0}, v6")
    I(f"s_mul_i32 s{sT0}, s{sQB}, 36")
    I(f"v_subrev_u32 v7, 16, v{vL}")
    I(f"v_min_u32 v7, 35, v7")
    I(f"v_add_u32 v7, s{sT0}, v7")
    I(f"v_and_b32 v7, 255, v7")
    I(f"v_cmp_gt_u32 vcc, 16, v{vL}")
    I(f"s_add_u32 s{sT2}, s{sT2}, {F2_OFF - FL_OFF}")
    I(f"s_mov_b32 s{sLS}, {F2_OFF}")
    I(f"v_cndmask_b32 v6, v7, v6, vcc")
    I(f"v_lshlrev_b32 v6, 6, v6")
    I(f"s_lshr_b32 s{sT0}, s{sH}, 2")
    I(f"s_lshl_b32 s{sT0}, s{sT0}, 5")
    I(f"v_and_b32 v7, 31, v{vL}")
    I(f"v_add_u32 v7, s{sT0}, v7")
    I(f"s_lshl_b32 s{sT0}, s{sH}, 3")
    I(f"v_and_b32 v12, 7, v{vL}")
    I(f"v_cmp_gt_u32 vcc, 32, v{vL}")
    I(f"v_add_u32 v12, s{sT0}, v12")
    I("s_nop 0")
    I(f"v_cndmask_b32 v7, v12, v7, vcc")
    I(f"v_lshlrev_b32 v7, 6, v7")
    I("s_waitcnt vmcnt(0)")
    I("s_barrier")
    stamp(a, 5)
    I(f"s_cmp_lg_u32 s{sJ}, 0")
    I("s_cbranch_scc1 P2_F2POLL")
    I("s_mov_b64 exec, 1")
    I(f"buffer_store_dwordx2 v[4:5], v2, s[{SWS}:{SWS+3}], s{sT2} offen sc0 sc1")
    I("s_mov_b64 exec, -1")
    def pollflags(vaddr, lab, done, sl):
        a.label(lab)
        I(f"buffer_load_dwordx2 v[{FR+88}:{FR+89}], v{vaddr}, s[{SWS}:{SWS+3}], s{sKV} offen sc0 sc1")
        I("s_waitcnt vmcnt(0)")
        I(f"v_cmp_eq_u64 vcc, s[{sN}:{sN+1}], v[{FR+88}:{FR+89}]")
        I("s_nop 4")
        I(f"s_cmp_eq_u64 vcc, -1")
        I(f"s_cbranch_scc1 {done}")
        I(f"s_cmp_eq_u32 s{sTO}, 0")
        I(f"s_cbranch_scc1 {done}")
        I(f"s_sub_u32 s{sTO}, s{sTO}, 1")
        I(f"s_sleep {sl}")
        I(f"s_branch {lab}")
    a.label("P2_F2POLL")
    I(f"s_mov_b32 s{sKV}, {F2_OFF}")
    pollflags(6, "P2_F2P", "P2_F2GOT", 8)
    a.label("P2_F2GOT")
    stamp(a, 6)
    def ld(u):
        fb = FR + 16*u
        for q, r in enumerate((sA0, sB0, sA1, sB1)):
            I(f"buffer_load_dwordx4 v[{fb+4*q}:{fb+4*q+3}], v{vLO}, s[{SWS}:{SWS+3}], s{r} offen offset:{1024*u}")
    def mm4(A0, A1, B0, B1):
        for tau, (A, B) in ((3, (A1, B1)), (2, (A1, B0)), (1, (A0, B1)), (0, (A0, B0))):
            acc = ACC2 + 16*tau
            I(f"{MF} v[{acc}:{acc+15}], v[{A}:{A+3}], v[{B}:{B+3}], v[{acc}:{acc+15}]")
    def mmf(fb): mm4(fb, fb+8, fb+4, fb+12)
    for u in range(4): ld(u)
    I(f"s_setprio 0")
    I(f"s_mov_b32 s{sCNT}, 6")
    for r in (sA0, sA1, sB0, sB1): I(f"s_add_u32 s{r}, s{r}, 4096")
    I("s_waitcnt vmcnt(12)")
    for tau, (A, B) in ((3, (FR+8, FR+12)), (2, (FR+8, FR+4)), (1, (FR, FR+12)), (0, (FR, FR+4))):
        acc = ACC2 + 16*tau
        I(f"{MF} v[{acc}:{acc+15}], v[{A}:{A+3}], v[{B}:{B+3}], 0")
    I("s_branch P2_GIN")
    a.label("P2_GLOOP")
    for r in (sA0, sA1, sB0, sB1): I(f"s_add_u32 s{r}, s{r}, 4096")
    for u in range(4):
        I("s_waitcnt vmcnt(12)")
        mmf(FR + 16*u)
        if u == 0: a.label("P2_GIN")
        ld(u)
    I(f"s_sub_u32 s{sCNT}, s{sCNT}, 1")
    I(f"s_cmp_lg_u32 s{sCNT}, 0")
    I("s_cbranch_scc1 P2_GLOOP")
    WA, OB = 72, 104
    for u in range(4):
        I(f"s_waitcnt vmcnt({12 - 4*u})")
        mmf(FR + 16*u)
    for s_ in range(4):
        for q, r in ((0, sWA0), (1, sWA1)):
            b = WA + 8*s_ + 4*q
            I(f"buffer_load_dwordx4 v[{b}:{b+3}], v{vLO}, s[{SWS}:{SWS+3}], s{r} offen offset:{1024*s_}")
    I(f"s_lshl_b32 s{sLS}, s{sJ}, 13")
    I(f"s_add_u32 s{sLS}, s{sLS}, 131072")
    for q, r in ((0, sWA0), (1, sWA1)):
        I(f"s_add_u32 m0, s{sLS}, {4096*q}")
        I(f"s_add_u32 s{sT0}, s{r}, 4096")
        for s_ in range(4):
            I(f"buffer_load_dwordx4 v{vLO}, s[{SWS}:{SWS+3}], s{sT0} offen offset:{1024*s_} lds")
    stamp(a, 7)
    I(f"s_setprio {SHPRIO2}")
    pollflags(7, "P2_F3P", "P2_F3GOT", 8)
    a.label("P2_F3GOT")
    I(f"v_and_b32 v2, 31, v{vL}")
    I(f"v_lshlrev_b32 v2, 2, v2")
    I(f"buffer_load_dword v4, v2, s[{SWS}:{SWS+3}], s32 offen")
    I(f"buffer_load_dword v5, v2, s[{SWS}:{SWS+3}], s33 offen")
    I("s_waitcnt vmcnt(0)")
    I(f"v_sub_f32 v4, 1.0, v4")
    I(f"v_sub_f32 v5, 1.0, v5")
    for tau in (3, 2, 1, 0):
        for k in range(16): I(f"v_mul_f32 v{ACC2+16*tau+k}, v{ACC2+16*tau+k}, v{4 + (tau & 1)}")
    I(f"s_add_u32 s{sOB2}, s{sOB0}, 4096")
    I(f"s_add_u32 s{sOB3}, s{sOB1}, 4096")
    I(f"v_add_u32 v2, s{sLS}, v{vLO}")
    I(f"s_mul_i32 s{sT0}, s{sJ}, 12288")
    I(f"v_add_u32 v4, s{sT0}, v{vLO}")
    for r in (1, 2, 3):
        I(f"s_xor_b32 s{sT0}, s{sJ}, {r}")
        I(f"s_mul_i32 s{sT0}, s{sT0}, 12288")
        I(f"v_add_u32 v{4+r}, s{sT0}, v{vLO}")
    I("s_waitcnt vmcnt(0)")
    I("s_barrier")
    stamp(a, 8)
    def ldo(s_):
        for q in range(2):
            r = (sOB0, sOB1)[q] if s_ < 4 else (sOB2, sOB3)[q]
            b = OB + 8*s_ + 4*q
            I(f"buffer_load_dwordx4 v[{b}:{b+3}], v{vLO}, s[{SWS}:{SWS+3}], s{r} offen offset:{1024*(s_%4)} sc0 sc1")
    for s_ in range(8): ldo(s_)
    for s_ in range(8):
        b = OB + 8*s_
        a.label(f"P2_CHK{s_}")
        I(f"s_waitcnt vmcnt({14 - 2*s_})")
        I(f"v_max3_u32 v0, v{b}, v{b+1}, v{b+2}")
        I(f"v_max3_u32 v0, v{b+3}, v{b+4}, v0")
        I(f"v_max3_u32 v0, v{b+5}, v{b+6}, v0")
        I(f"v_max_u32 v0, v{b+7}, v0")
        I(f"v_cmp_eq_u32 vcc, -1, v0")
        if s_ >= 4: I("s_waitcnt lgkmcnt(%d)" % (2*(7 - s_)))
        else: I("s_nop 0")
        I("s_nop 2")
        I(f"s_cbranch_vccnz P2_RETRY{s_}")
        a.label(f"P2_GO{s_}")
        wa = WA + 8*(s_ % 4)
        mm4(wa, wa+4, b, b+4)
        if s_ < 4:
            for q in range(2):
                I(f"ds_read_b128 v[{wa+4*q}:{wa+4*q+3}], v2 offset:{4096*q + 1024*s_}")
    I(f"s_lshl_b32 s{sT0}, s{sOR}, 15")
    I(f"s_lshl_b32 s{sT1}, s{sOC}, 6")
    I(f"s_add_u32 s{sT0}, s{sT0}, s{sT1}")
    I(f"v_and_b32 v2, 31, v{vL}")
    I(f"v_lshlrev_b32 v2, 10, v2")
    I(f"v_lshrrev_b32 v{vL}, 5, v{vL}")
    I(f"v_lshl_add_u32 v2, v{vL}, 5, v2")
    I("s_nop 2")
    for r in (3, 2, 1):
        for q in range(4):
            b = ACC2 + 16*r + 4*q
            I(f"ds_write_b128 v{4+r}, v[{b}:{b+3}] offset:{(r-1)*4096 + q*1024}")
    I("s_waitcnt lgkmcnt(0)")
    I("s_barrier")
    for r in range(3):
        for q in range(4):
            b = FR + 16*r + 4*q
            I(f"ds_read_b128 v[{b}:{b+3}], v4 offset:{r*4096 + q*1024}")
    for r in range(3):
        I(f"s_waitcnt lgkmcnt({8-4*r})")
        for k in range(16): I(f"v_add_f32 v{ACC2+k}, v{ACC2+k}, v{FR+16*r+k}")
    for r in range(8): I(f"v_cvt_pk_bf16_f32 v{FR+r}, v{ACC2+2*r}, v{ACC2+2*r+1}")
    I(f"buffer_store_dwordx4 v[{FR}:{FR+3}], v2, s[{SO}:{SO+3}], s{sT0} offen")
    I(f"buffer_store_dwordx4 v[{FR+4}:{FR+7}], v2, s[{SO}:{SO+3}], s{sT0} offen offset:16")
    if DBG:
        I("s_waitcnt vmcnt(0)")
        I("s_mov_b32 s65, s72")
    stamp(a, 8)
    stamp_flush(a, 9, SWS, sW, 0)
    I("s_endpgm")
    for s_ in range(8):
        a.label(f"P2_RETRY{s_}")
        I(f"s_cmp_eq_u32 s{sTO}, 0")
        I(f"s_cbranch_scc1 P2_GO{s_}")
        I(f"s_sub_u32 s{sTO}, s{sTO}, 1")
        if POLLS: I(f"s_sleep {POLLS}")
        for q_ in range(s_, 8): ldo(q_)
        I(f"s_branch P2_CHK{s_}")
    a.label("MK_END")
    I("s_endpgm")
    return a.text(), kdesc(KN, NV, 102, NV), 163840

if __name__ == "__main__":
    txt, kd, lds = gen()
    ref = open(f"cdna_kernels/{NAME}.s.ref").read().splitlines()
    head = [l for l in ref if l.startswith(";") and "@launch" not in l and "Override launch" not in l and "grid=ceil" not in l and "TODO" not in l][:12]
    s = "\n".join(head) + "\n" + f"; @launch grid=(256,1,1) block=(768,1,1) lds={lds}\n"
    s += '.amdgcn_target "amdgcn-amd-amdhsa--gfx950"\n.text\n' + txt + '.section .rodata,"a"\n' + kd
    open(sys.argv[1], "w").write(s)
```

```python
from common import *
PKMISH = opt("--pkmish", 1)
WTF = " sc0 sc1"
TRIT = opt("--trit", 4)
PFIT = opt("--pfit", 3)
TRIT2 = opt("--trit2", 6)
ROTX = opt("--rotx", 7)
ROTR = opt("--rotr", 1)
SHPRIO2 = opt("--shprio2", 3)
ATPRIO = opt("--atprio", 1)
POLLS = opt("--polls", 8)
MPF = opt("--mpf", 0)
DBG2 = opt('--dbg2', 0)
WT1 = opt('--wt1', 'sc0_sc1').replace('_', ' ')
EXP = opt('--exp', 0)
KV0 = opt('--kv0', 5)
NST = 5
TLBW = opt('--tlbw', 0)
GIT = opt('--git', 1)
DEP = opt('--dep', 2)
STG = 32768
SB0 = 98304
XAB = 131072
QL = 147456
GL = 155648
F1IT = opt('--f1it', 1)
Y2IT = opt('--y2it', 6)
F2_OFF = FL_OFF + 16384
KN = NAME + "_kernel"
MF = "v_mfma_f32_32x32x16_bf16"

_stamp = stamp
def stamp(a, idx, comp=True):
    if DBG2 and 1 <= idx <= 7 and COMP[0]: return
    _stamp(a, idx)
COMP = [True]
def gen():
    a = Asm()
    I = a.i
    a.raw(khead(KN))
    I("s_cmp_ge_u32 s2, 256")
    I("s_cbranch_scc1 MK_END")
    SX, SWQ, SWO, SW1, SB1, SW2, SG, SWS = 8, 12, 16, 20, 24, 28, 32, 36
    for s, off in [(SX, 0), (SWQ, 8), (SW1, 32), (SWO, 16), (SB1, 40), (SW2, 48), (SG, 56), (SWS, 80), (100, 72)]:
        I(f"s_load_dwordx2 s[{s}:{s+1}], s[0:1], {off}")
    srd(a, SX, 2048*512*2); srd(a, SWQ, 512*1536*2); srd(a, SW1, 512*1792*2); srd(a, SWS, WS_BYTES)
    sW, sC, sRB, sRT, sT0, sT1, sT2, sHF, sIT = 40, 41, 42, 43, 44, 45, 46, 47, 48
    sRS = 58
    sCOL = [[59, 60], [61, 62]]
    sL2E, sTWO, sQS, s30 = 84, 86, 5, 6
    sTR = 94
    sH, sQB = 95, 96
    vL = 1
    t0, t1, t2, t3 = 2, 3, 4, 5
    vXE, vXO, vWQ, vWF, vWS, vST, vSV, vTS = 6, 7, 8, 9, 10, 11, 12, 13
    vXR = [14, 15, 16, 17]
    vTP = [18]
    vTT = [20, 21]
    vTD = 22
    vG0, vG1 = 23, 24
    XF = [28, 32, 36, 40]
    WF = [[44 + 8*k, 48 + 8*k] for k in range(4)]
    ACC = [76, 92, 108, 124]
    PK = 44
    BIAS, BONE, GX, GW = 140, 146, 150, 154
    NV = 168
    HKR = [152, 156, 160, 164]
    I(f"v_and_b32 v{vL}, 63, v0")
    I(f"v_lshrrev_b32 v{t0}, 6, v0")
    I(f"s_and_b32 s{sT0}, s2, 1")
    I(f"v_readfirstlane_b32 s{sW}, v{t0}")
    I(f"s_lshl_b32 s{sT0}, s{sT0}, 3")
    I(f"s_bfe_u32 s{sT1}, s2, 0x30003")
    I(f"s_add_u32 s{sRB}, s{sT0}, s{sT1}")
    I(f"s_and_b32 s{sC}, s2, 6")
    I(f"s_bfe_u32 s{sT0}, s2, 0x10006")
    I(f"s_add_u32 s{sC}, s{sC}, s{sT0}")
    I(f"s_lshr_b32 s{sHF}, s{sW}, 2")
    I(f"s_and_b32 s{sT0}, s{sW}, 3")
    I(f"s_lshl_b32 s{sRT}, s{sRB}, 2")
    I(f"s_add_u32 s{sRT}, s{sRT}, s{sT0}")
    I(f"v_lshrrev_b32 v{t0}, 3, v{vL}")
    I(f"v_and_b32 v{t1}, 7, v{vL}")
    I(f"v_lshrrev_b32 v{t2}, 1, v{t0}")
    I(f"v_xor_b32 v{t3}, v{t1}, v{t2}")
    I(f"v_lshlrev_b32 v{vXE}, 10, v{t0}")
    I(f"v_lshl_add_u32 v{vXE}, v{t3}, 4, v{vXE}")
    I(f"v_xor_b32 v{vXO}, 64, v{vXE}")
    I(f"v_and_b32 v{t2}, 1, v{t2}")
    I(f"v_lshlrev_b32 v{t2}, 2, v{t2}")
    I(f"v_xor_b32 v{t3}, v{t1}, v{t2}")
    I(f"v_lshlrev_b32 v{t3}, 4, v{t3}")
    I(f"v_mul_u32_u24 v{vWQ}, 3072, v{t0}")
    I(f"v_add_u32 v{vWQ}, v{vWQ}, v{t3}")
    I(f"v_mul_u32_u24 v{vWF}, 3584, v{t0}")
    I(f"v_add_u32 v{vWF}, v{vWF}, v{t3}")
    I(f"v_lshl_add_u32 v{vTD}, v{t0}, 10, v{t3}")
    I(f"v_lshlrev_b32 v{vST}, 4, v{vL}")
    I(f"s_and_b32 s{sT0}, s2, 7")
    I(f"s_lshl_b32 s{sT0}, s{sT0}, 2")
    I(f"s_bfe_u32 s{sT1}, s2, 0x20003")
    I(f"s_add_u32 s{sH}, s{sT0}, s{sT1}")
    I(f"s_lshr_b32 s{sQB}, s2, 5")
    I(f"s_cmp_ge_u32 s2, 128")
    I("s_cbranch_scc1 P1_B")

    def path(ty):
        isA = ty == "A"
        a.vm = []; a.lg = []
        if isA:
            sw = [["Q", "K"], ["F", "S"]]
            I(f"s_lshl_b32 s{sCOL[0][0]}, s{sC}, 7")
            I(f"s_add_u32 s{sCOL[0][1]}, s{sCOL[0][0]}, 1024")
            I(f"s_add_u32 s{sCOL[1][0]}, s{sCOL[0][0]}, {16*128}")
            I(f"s_lshl_b32 s{sCOL[1][1]}, s{sC}, 6")
            I(f"s_add_u32 s{sCOL[1][1]}, s{sCOL[1][1]}, {24*128}")
            I(f"v_lshrrev_b32 v{t0}, 2, v{vL}")
            I(f"v_mul_u32_u24 v{vWS}, 3584, v{t0}")
            I(f"v_and_b32 v{t0}, 3, v{vL}")
            I(f"v_lshl_add_u32 v{vWS}, v{t0}, 4, v{vWS}")
        else:
            sw = [["V"], ["F", "F"]]
            I(f"s_lshl_b32 s{sCOL[0][0]}, s{sC}, 7")
            I(f"s_add_u32 s{sCOL[0][0]}, s{sCOL[0][0]}, 2048")
            I(f"s_lshl_b32 s{sCOL[1][0]}, s{sC}, 8")
            I(f"s_add_u32 s{sCOL[1][1]}, s{sCOL[1][0]}, 128")
        I(f"s_cmp_ge_u32 s{sW}, 8")
        I(f"s_cbranch_scc0 P1{ty}_COMP")
        sJ, sCH, sSTG, sXB = 63, 57, 58, 53
        sPB = [[49, 50], [51, 52]]
        sKXl, sKWl, sSXl, sSPl, sSSl = 97, 98, 54, 55, 56
        I(f"s_sub_u32 s{sJ}, s{sW}, 8")
        I(f"s_and_b32 s{sCH}, s2, {ROTX}")
        if ROTR:
            I(f"s_bfe_u32 s{sT0}, s2, 0x30003")
            I(f"s_and_b32 s{sT0}, s{sT0}, {ROTR}")
            I(f"s_add_u32 s{sCH}, s{sCH}, s{sT0}")
            I(f"s_and_b32 s{sCH}, s{sCH}, 7")
        I(f"s_mov_b32 s{sSTG}, {SB0}")
        I(f"s_lshl_b32 s{sXB}, s{sRB}, 2")
        I(f"s_add_u32 s{sXB}, s{sXB}, s{sJ}")
        I(f"s_lshl_b32 s{sXB}, s{sXB}, 15")
        I(f"s_mul_i32 s{sT1}, s{sJ}, {16*3072}")
        I(f"s_mul_i32 s{sT2}, s{sJ}, {16*3584}")
        for k in range(2):
            for p in range(len(sw[k])):
                I(f"s_add_u32 s{sPB[k][p]}, s{sCOL[k][p]}, s{sT2 if k else sT1}")
        I(f"s_mov_b32 s{sIT}, 0")
        I("s_waitcnt lgkmcnt(0)")
        stamp(a, 0)
        def dma(ms, mc, k, pb, oc, vo, S_):
            I(f"s_add_u32 m0, s{ms}, {mc}")
            if pb is None:
                I(f"s_add_u32 s7, s{k}, {oc}")
            else:
                I(f"s_add_u32 s7, s{k}, s{pb}")
                if oc: I(f"s_add_u32 s7, s7, {oc}")
            I(f"buffer_load_dwordx4 v{vo}, s[{S_}:{S_+3}], s7 offen lds")
        nds = [(0 if (k == 1 and EXP & 4) else 4) + sum(1 if kd == "S" else 2 for kd in sw[k]) for k in range(2)]
        for k in range(2):
            ld = 3584 if k else 3072
            a.label(f"P1{ty}_LD{k}")
            I(f"s_lshl_b32 s{sKXl}, s{sCH}, 7")
            I(f"s_add_u32 s{sKXl}, s{sKXl}, s{sXB}")
            I(f"s_mul_i32 s{sKWl}, s{sCH}, {64*ld}")
            I(f"s_lshl_b32 s{sT0}, s{sJ}, 10")
            I(f"s_add_u32 s{sSSl}, s{sSTG}, s{sT0}")
            I(f"s_add_u32 s{sSPl}, s{sSSl}, s{sT0}")
            I(f"s_lshl_b32 s{sT0}, s{sT0}, 1")
            I(f"s_add_u32 s{sSXl}, s{sSPl}, s{sT0}")
            if not (k == 1 and EXP & 4):
                for i in range(4): dma(sSXl, 1024*i, sKXl, None, 8192*i, vXO if i % 2 else vXE, SX)
            for p, kd in enumerate(sw[k]):
                if kd == "S":
                    dma(sSSl, 16384 + 8192*p, sKWl, sPB[k][p], 0, vWS, SW1)
                else:
                    for i in range(2):
                        dma(sSPl, 16384 + 8192*p + 1024*i, sKWl, sPB[k][p], 8*i*ld, vWF if k else vWQ, SW1 if k else SWQ)
            I(f"s_add_u32 s{sCH}, s{sCH}, 1")
            I(f"s_and_b32 s{sCH}, s{sCH}, 7")
            I(f"s_add_u32 s{sSTG}, s{sSTG}, {STG}")
            I(f"s_cmp_eq_u32 s{sSTG}, {NST*STG}")
            I(f"s_cselect_b32 s{sSTG}, 0, s{sSTG}")
            I(f"s_add_u32 s{sIT}, s{sIT}, 1")
            if k == 0:
                I(f"s_cmp_lt_u32 s{sIT}, {DEP}")
                I(f"s_cbranch_scc1 P1{ty}_LD0")
            I(f"s_waitcnt vmcnt({(DEP-1)*(nds[0] if k == 0 else min(nds))})")
            I("s_barrier")
            I(f"s_cmp_lt_u32 s{sIT}, {8*(k+1)}")
            I(f"s_cbranch_scc1 P1{ty}_LD{k}")
        for r in range(DEP - 2, 0, -1):
            I(f"s_waitcnt vmcnt({r*nds[1]})")
            I("s_barrier")
        I(f"s_mov_b32 s{sIT}, {1 if isA else 0}")
        I("s_branch P2_SHADOW")
        a.label(f"P1{ty}_COMP")
        I("s_waitcnt lgkmcnt(0)")
        stamp(a, 0)
        code_prefetch(a, "MK_END", 8, 1, "p1" + ty, vt=25)
        srd(a, SB1, 1792*2); srd(a, SG, 512*2)
        I(f"s_lshl_b32 s{sT0}, s{sQB}, 3")
        I(f"s_add_u32 s{sT0}, s{sT0}, s{sW}")
        I(f"s_lshl_b32 s{sT0}, s{sT0}, 5")
        I(f"s_add_u32 s{sT0}, s{sT0}, s{sH}")
        I(f"s_lshl_b32 s{sT0}, s{sT0}, 10")
        I(f"s_add_u32 s97, s{sT0}, {OF_OFF}")
        if isA:
            I(f"s_or_b32 s{sT0}, s2, s{sW}")
            I(f"s_cmp_lg_u32 s{sT0}, 0")
            I("s_cbranch_scc1 P1_NONONCE")
            I("s_memrealtime s[50:51]")
            I(f"v_mov_b32 v{t0}, 0")
            I("s_waitcnt lgkmcnt(0)")
            I("s_or_b32 s50, s50, 1")
            I(f"v_mov_b32 v{PK+8}, s50")
            I(f"v_mov_b32 v{PK+9}, s51")
            I("s_mov_b64 exec, 1")
            I(f"global_store_dwordx2 v{t0}, v[{PK+8}:{PK+9}], s[100:101] sc0 sc1")
            I("s_mov_b64 exec, -1")
            a.label("P1_NONONCE")
        if TLBW:
            I(f"s_cmp_lg_u32 s{sW}, 2")
            I(f"s_cbranch_scc1 P1{ty}_NOTLB")
            I(f"v_mul_u32_u24 v{t0}, {TLBW * 1024}, v{vL}")
            for r_ in range(max(1, (23 << 10) // (64 * TLBW) + 1)):
                I(f"s_mov_b32 s{sT0}, {r_ * 64 * TLBW * 1024}")
                I(f"buffer_load_dword v27, v{t0}, s[{SWS}:{SWS+3}], s{sT0} offen sc0 sc1")
            a.label(f"P1{ty}_NOTLB")
        for r in range(6): I(f"v_mov_b32 v{BIAS+r}, 0")
        I(f"s_lshl_b32 s{sT1}, s2, 3")
        I(f"s_add_u32 s{sT1}, s{sT1}, s{sW}")
        I(f"s_lshl_b32 s{sT1}, s{sT1}, 10")
        I(f"buffer_load_dwordx4 v[{GX}:{GX+3}], v{vST}, s[{SX}:{SX+3}], s{sT1} offen")
        I(f"buffer_load_dwordx4 v[{GW}:{GW+3}], v{vST}, s[{SG}:{SG+3}], 0 offen")
        I(f"v_and_b32 v{t0}, 31, v{vL}")
        I(f"v_lshlrev_b32 v{t0}, 1, v{t0}")
        I(f"s_lshl_b32 s{sT1}, s{sHF}, 6")
        for p, kd in enumerate(sw[1]):
            if kd == "F":
                I(f"s_add_u32 s7, s{sCOL[1][p]}, s{sT1}")
                I(f"buffer_load_ushort v{BIAS+2*p}, v{t0}, s[{SB1}:{SB1+3}], s7 offen")
            else:
                I(f"buffer_load_ushort v{BIAS+2*p}, v{t0}, s[{SB1}:{SB1+3}], s{sCOL[1][p]} offen")
        I(f"v_and_b32 v{t0}, 31, v{vL}")
        I(f"v_lshrrev_b32 v{t1}, 5, v{vL}")
        I(f"v_bfe_u32 v{t2}, v{t0}, 1, 3")
        I(f"v_xor_b32 v{t2}, v{t2}, v{t1}")
        I(f"v_lshlrev_b32 v{t3}, 7, v{t0}")
        I(f"s_and_b32 s{sT0}, s{sW}, 3")
        I(f"s_lshl_b32 s{sT0}, s{sT0}, 12")
        I(f"s_add_u32 s{sT0}, s{sT0}, {SB0}")
        I(f"v_add_u32 v{t3}, s{sT0}, v{t3}")
        I(f"v_lshl_add_u32 v{t3}, v{t2}, 4, v{t3}")
        I(f"v_mov_b32 v{vXR[0]}, v{t3}")
        for sp in range(1, 4): I(f"v_xor_b32 v{vXR[sp]}, {32*sp}, v{vXR[0]}")
        I(f"v_bfe_u32 v{t0}, v{vL}, 2, 2")
        I(f"v_and_b32 v{t2}, 3, v{vL}")
        I(f"v_bfe_u32 v{t3}, v{vL}, 4, 1")
        p0 = vTP[0]
        I(f"v_lshlrev_b32 v{p0}, 10, v{t1}")
        I(f"v_lshl_add_u32 v{p0}, v{t0}, 7, v{p0}")
        I(f"v_lshl_add_u32 v{p0}, v{t3}, 5, v{p0}")
        I(f"v_lshl_add_u32 v{p0}, v{t2}, 3, v{p0}")
        I(f"v_lshrrev_b32 v25, 1, v{t0}")
        I(f"v_lshl_add_u32 v{p0}, v25, 6, v{p0}")
        I(f"v_xor_b32 v{p0}, s{sT1}, v{p0}")
        I(f"v_add_u32 v{p0}, {SB0 + 16384}, v{p0}")
        if isA:
            I(f"v_lshlrev_b32 v{vTS}, 9, v{t1}")
            I(f"v_lshl_add_u32 v{vTS}, v{t0}, 6, v{vTS}")
            I(f"v_lshl_add_u32 v{vTS}, v{t3}, 5, v{vTS}")
            I(f"v_lshl_add_u32 v{vTS}, v{t2}, 3, v{vTS}")
            I(f"v_add_u32 v{vTS}, {SB0 + 24576}, v{vTS}")
            I(f"v_and_b32 v{vSV}, 0x33, v{vL}")
            I(f"v_bfe_u32 v26, v{vL}, 2, 1")
            I(f"v_lshl_or_b32 v{vSV}, v26, 3, v{vSV}")
            I(f"v_bfe_u32 v26, v{vL}, 3, 1")
            I(f"v_lshl_or_b32 v{vSV}, v26, 2, v{vSV}")
            I(f"v_lshlrev_b32 v{vSV}, 4, v{vSV}")
        else:
            I(f"v_and_b32 v26, 15, v{vL}")
            I(f"v_lshlrev_b32 v{vSV}, 4, v26")
            I(f"v_lshl_add_u32 v{vSV}, v{t1}, 8, v{vSV}")
            I(f"v_lshl_add_u32 v{vSV}, v{t3}, 17, v{vSV}")
            I(f"v_add_u32 v{vSV}, 1024, v{vSV}")
        I(f"s_lshl_b32 s98, s{sW}, 11")
        I(f"v_cmp_gt_u32 vcc, 32, v{vL}")
        I(f"v_mov_b32 v{BONE+1}, 0")
        I(f"v_mov_b32 v{BONE+2}, 0")
        I(f"v_mov_b32 v{BONE+3}, 0")
        I(f"v_mov_b32 v{t0}, 0x3f80")
        I(f"v_cndmask_b32 v{BONE}, 0, v{t0}, vcc")
        I(f"s_mov_b32 s{sL2E}, {fhex(LOG2E)}")
        I(f"s_mov_b32 s{sL2E+1}, {fhex(LOG2E)}")
        I(f"s_mov_b32 s{sTWO}, 2.0")
        I(f"s_mov_b32 s{sTWO+1}, 2.0")
        I(f"s_mov_b32 s{sQS}, {fhex(QSCALE)}")
        I(f"s_mov_b32 s{s30}, {fhex(30.0)}")
        for k in range(64): I(f"v_mov_b32 v{ACC[0]+k}, 0")
        for r in list(range(XF[2], XF[2]+8)) + list(range(WF[2][0], WF[2][0]+16)): I(f"v_mov_b32 v{r}, 0")
        I(f"s_mov_b32 s{sRS}, 3")

        def sweep(k, kinds, sfx=""):
            def reads(s):
                R = [(f"ds_read_b128 v[{XF[s]}:{XF[s]+3}], v{vXR[s]}", 0)]
                for p, kd in enumerate(kinds):
                    b = WF[s][p]
                    if kd == "S":
                        R.append((f"ds_read_b64_tr_b16 v[{b}:{b+1}], v{vTS} offset:{1024*s}", p))
                        R.append((f"ds_read_b64_tr_b16 v[{b+2}:{b+3}], v{vTS} offset:{1024*s + 256}", p))
                    else:
                        off = 8192*p + 2048*s
                        R.append((f"ds_read_b64_tr_b16 v[{b}:{b+1}], v{vTP[0]} offset:{off}", p))
                        R.append((f"ds_read_b64_tr_b16 v[{b+2}:{b+3}], v{vTP[0]} offset:{off+512}", p))
                return R
            def mfs(s):
                M = []
                for p, kd in enumerate(kinds):
                    acc, xf, wf = ACC[2*k + p], XF[s], WF[s][p]
                    if kd == "V": M.append((p, f"{MF} v[{acc}:{acc+15}], v[{xf}:{xf+3}], v[{wf}:{wf+3}], v[{acc}:{acc+15}]"))
                    else: M.append((p, f"{MF} v[{acc}:{acc+15}], v[{wf}:{wf+3}], v[{xf}:{xf+3}], v[{acc}:{acc+15}]"))
                return M
            L = f"P1{ty}_S{k}{sfx}"
            I(f"s_mov_b32 s{sIT}, 0")
            a.label(f"{L}_LOOP")
            if k == 1:
                I(f"s_cmp_lg_u32 s{sIT}, {F1IT}")
                I(f"s_cbranch_scc1 {L}_NW")
                I("s_waitcnt vmcnt(0)")
                a.label(f"{L}_NW")
            I("s_barrier")
            if DBG and k == 1 and DBG2:
                I("s_memtime s[90:91]")
                I("s_waitcnt lgkmcnt(0)")
                for n_, it_ in enumerate((0, 1, 2, 3, 4, 5, 6)):
                    I(f"s_cmp_eq_u32 s{sIT}, {it_}"); I(f"s_cselect_b32 s{65+n_}, s90, s{65+n_}")
            if DBG and k == 0 and not DBG2:
                I(f"s_cmp_lg_u32 s{sIT}, 0")
                I(f"s_cbranch_scc1 {L}_NS")
                stamp(a, 1)
                a.label(f"{L}_NS")
            a.lg = []
            def rd(s):
                for t_, tag in reads(s): a.lds(t_, (s, tag))
            def mm(s, w):
                for p, m in mfs(s):
                    if w: a.wait(lg=(s, p))
                    I(m)
            a.lg = [(2, tag) for _, tag in reads(2)] + [(3, tag) for _, tag in reads(3)]
            def step(sm, sr):
                M = mfs(sm); R = reads(sr)
                for n, (p, m) in enumerate(M):
                    a.wait(lg=(sm, p))
                    I(m)
                    take = [r for r in R if r[1] <= n] if n + 1 < len(M) else R
                    for t_, tag in take: a.lds(t_, (sr + 4, tag))
                    R = [r for r in R if r not in take]
            def retag():
                a.lg = [((x[0] - 4) if x[0] >= 4 else x[0], x[1]) for x in a.lg]
            step(2, 0); step(3, 1); retag()
            if not sfx:
                for it_, lab in (((PFIT, "PF"), (GIT, "G")) if k == 0 else ((F1IT, "F1"),)):
                    I(f"s_cmp_eq_u32 s{sIT}, {it_}")
                    I(f"s_cbranch_scc1 P1{ty}_{lab}")
                a.label(f"P1{ty}_BACK{k}")
            step(0, 2); step(1, 3); retag()
            I(f"s_add_u32 s{sRS}, s{sRS}, 1")
            I(f"s_mov_b32 s{sT0}, {STG}")
            I(f"s_cmp_eq_u32 s{sRS}, {NST}")
            I(f"s_cselect_b32 s{sT0}, {(-(NST-1)*STG) & 0xffffffff}, s{sT0}")
            I(f"s_cselect_b32 s{sRS}, 0, s{sRS}")
            for r in vXR + vTP + ([vTS] if isA else []): I(f"v_add_u32 v{r}, s{sT0}, v{r}")
            I(f"s_add_u32 s{sIT}, s{sIT}, 1")
            I(f"s_cmp_lt_u32 s{sIT}, 8")
            I(f"s_cbranch_scc1 {L}_LOOP")
            mm(2, True); mm(3, True)

        sweep(0, sw[0])
        stamp(a, 2)
        for r in range(8): I(f"v_mov_b32 v{XF[2]+r}, 0")
        I(f"s_lshl_b32 s7, s{sC}, 1")
        I(f"s_add_u32 s50, s7, s{sHF}")
        I(f"s_lshl_b32 s51, s50, 17")
        I(f"s_lshl_b32 s{sT0}, s{sRT}, 10")
        I(f"s_add_u32 s51, s51, s{sT0}")
        I(f"s_lshl_b32 s52, s51, 1")
        I(f"s_add_u32 s52, s52, {KV_OFF}")
        I(f"s_add_u32 s53, s51, 65536")
        I(f"s_add_u32 s54, s52, 131072")
        I(f"v_mov_b32 v{t0}, 0")
        I(f"global_load_dwordx2 v[{GX}:{GX+1}], v{t0}, s[100:101] sc0 sc1")
        if isA:
            acc = ACC[1]
            for e in range(8): I(f"v_cvt_pk_bf16_f32 v{PK+e}, v{acc+2*e}, v{acc+2*e+1}")
            I(f"buffer_store_dwordx4 v[{PK}:{PK+3}], v{vSV}, s[{SWS}:{SWS+3}], s52 offen{WTF}")
            I(f"buffer_store_dwordx4 v[{PK+4}:{PK+7}], v{vSV}, s[{SWS}:{SWS+3}], s54 offen{WTF}")
            acc = ACC[0]
            for e in range(16): I(f"v_mul_f32 v{acc+e}, s{sQS}, v{acc+e}")
            for e in range(8): I(f"v_cvt_pk_bf16_f32 v{PK+8+e}, v{acc+2*e}, v{acc+2*e+1}")
            I(f"buffer_store_dwordx4 v[{PK+8}:{PK+11}], v{vST}, s[{SWS}:{SWS+3}], s51 offen{WTF}")
            I(f"buffer_store_dwordx4 v[{PK+12}:{PK+15}], v{vST}, s[{SWS}:{SWS+3}], s53 offen{WTF}")
        else:
            acc = ACC[0]
            for e in range(8): I(f"v_cvt_pk_bf16_f32 v{PK+8+e}, v{acc+2*e}, v{acc+2*e+1}")
            I(f"buffer_store_dwordx4 v[{PK+8}:{PK+11}], v{vSV}, s[{SWS}:{SWS+3}], s52 offen{WTF}")
            I(f"buffer_store_dwordx4 v[{PK+12}:{PK+15}], v{vSV}, s[{SWS}:{SWS+3}], s52 offen offset:512{WTF}")
        if isA:
            I(f"s_cmp_eq_u32 s{sHF}, 0")
            I(f"s_cbranch_scc1 P1A_H0")
            sweep(1, sw[1][:1], "h")
            I(f"s_branch P1{ty}_EPI")
            a.label("P1A_H0")
        sweep(1, sw[1])
        I(f"s_branch P1{ty}_EPI")
        a.label(f"P1{ty}_F1")
        I(f"s_cmp_lg_u32 s{sW}, 0")
        I(f"s_cbranch_scc1 P1{ty}_F1C")
        I(f"s_mov_b32 s51, 0x40000")
        a.label(f"P1{ty}_F1A")
        I(f"v_readfirstlane_b32 s50, v{GX}")
        I(f"v_mov_b32 v{t0}, 0")
        I(f"s_lshl_b32 s{sT2}, s2, 6")
        I(f"s_add_u32 s{sT2}, s{sT2}, {FL_OFF}")
        I("s_nop 1")
        I(f"s_cmp_lg_u32 s50, 0")
        I(f"s_cbranch_scc1 P1{ty}_F1B")
        I(f"s_cmp_eq_u32 s51, 0")
        I(f"s_cbranch_scc1 P1{ty}_F1B")
        I(f"s_sub_u32 s51, s51, 1")
        I(f"global_load_dwordx2 v[{GX}:{GX+1}], v{t0}, s[100:101] sc0 sc1")
        I("s_waitcnt vmcnt(0)")
        I(f"s_branch P1{ty}_F1A")
        a.label(f"P1{ty}_F1B")
        I("s_mov_b64 exec, 1")
        I(f"buffer_store_dwordx2 v[{GX}:{GX+1}], v{t0}, s[{SWS}:{SWS+3}], s{sT2} offen sc0 sc1")
        I("s_mov_b64 exec, -1")
        a.label(f"P1{ty}_F1C")
        I(f"s_branch P1{ty}_BACK1")
        a.label(f"P1{ty}_G")
        I("s_waitcnt vmcnt(0)")
        I(f"v_mov_b32 v{vG0}, 0")
        I(f"v_mov_b32 v{vG1}, 0")
        for k in range(4): I(f"v_dot2_f32_bf16 v{vG0+k%2}, v{GX+k}, v{GW+k}, v{vG0+k%2}")
        I("s_nop 2")
        I(f"v_add_f32 v{vG0}, v{vG0}, v{vG1}")
        for d in ("quad_perm:[1,0,3,2]", "quad_perm:[2,3,0,1]", "row_half_mirror", "row_mirror"):
            I("s_nop 1")
            I(f"v_add_f32_dpp v{vG0}, v{vG0}, v{vG0} {d} row_mask:0xf bank_mask:0xf")
        I("s_nop 0")
        for k in range(4): I(f"v_readlane_b32 s{50+k}, v{vG0}, {16*k}")
        I(f"s_lshl_b32 s{sT1}, s2, 3")
        I(f"s_add_u32 s{sT1}, s{sT1}, s{sW}")
        I(f"v_mov_b32 v{vG0}, s50")
        I(f"v_add_f32 v{vG0}, s51, v{vG0}")
        I(f"v_add_f32 v{vG0}, s52, v{vG0}")
        I(f"v_add_f32 v{vG0}, s53, v{vG0}")
        I(f"v_mul_f32 v{vG0}, s{sL2E}, v{vG0}")
        I(f"v_exp_f32 v{vG0}, -v{vG0}")
        I(f"s_lshl_b32 s{sT1}, s{sT1}, 2")
        I(f"v_add_f32 v{vG0}, 1.0, v{vG0}")
        I(f"v_rcp_f32 v{vG0}, v{vG0}")
        I(f"s_add_u32 s{sT1}, s{sT1}, {G_OFF}")
        I(f"v_mov_b32 v{vG1}, 0")
        I(f"s_mov_b64 exec, 1")
        I(f"buffer_store_dword v{vG0}, v{vG1}, s[{SWS}:{SWS+3}], s{sT1} offen{WTF}")
        I(f"s_mov_b64 exec, -1")
        I(f"s_branch P1{ty}_BACK0")
        a.label(f"P1{ty}_PF")
        I(f"s_cmp_ge_u32 s{sW}, 2")
        I(f"s_cbranch_scc1 P1{ty}_BACK0")
        I(f"s_cmp_eq_u32 s{sW}, 0")
        I(f"s_cselect_b32 s{sT1}, s{sCOL[1][0]}, s{sCOL[1][1]}")
        I(f"s_bfe_u32 s{sT2}, s2, 0x30003")
        I(f"s_mul_i32 s{sT2}, s{sT2}, {64*3584}")
        I(f"s_add_u32 s{sT1}, s{sT1}, s{sT2}")
        I(f"v_mul_u32_u24 v{t0}, 3584, v{vL}")
        I(f"buffer_load_dword v27, v{t0}, s[{SW1}:{SW1+3}], s{sT1} offen")
        I(f"s_branch P1{ty}_BACK0")
        a.label(f"P1{ty}_EPI")
        stamp(a, 3)
        for p in range(2):
            acc = ACC[2 + p]
            if p == 1:
                I(f"s_mul_i32 s{sT2}, s{sRT}, {144*1024}")
                I(f"s_add_u32 s{sT2}, s{sT2}, {AF_OFF + 32*1024}")
                I(f"s_lshl_b32 s{sT1}, s{sHF}, 11")
                I(f"s_add_u32 s{sT1}, s{sT1}, s{sT2}")
            I(f"{MF} v[{acc}:{acc+15}], v[{BIAS+2*p}:{BIAS+2*p+3}], v[{BONE}:{BONE+3}], v[{acc}:{acc+15}]")
        jobs = [(0, 0), (0, 1), (1, 0), (1, 1)]
        for n, (p, hh) in enumerate(jobs):
            I(f"s_lshl_b32 s7, s{sCOL[1][p]}, 5")
            I(f"s_add_u32 s7, s7, s{sT2 if (isA and p == 1) else sT1}")
            I(f"s_add_u32 s{76+n}, s7, {1024*hh}")
        I(f"s_mov_b32 s56, {'s%d' % sHF if isA else 0}")
        tb = [ACC[0], ACC[0] + 8, 44]
        def mish8(acc, pk):
            vp = lambda r: f"v[{r}:{r+1}]"
            prs = range(4)
            T = lambda e, kk: tb[kk] + 2*e
            for e in prs: I(f"v_pk_mul_f32 {vp(T(e,0))}, {vp(acc+2*e)}, s[{sL2E}:{sL2E+1}]")
            for e in range(8): I(f"v_min_f32 v{tb[0]+e}, s{s30}, v{tb[0]+e}")
            for e in range(8): I(f"v_exp_f32 v{tb[0]+e}, v{tb[0]+e}")
            for e in prs: I(f"v_pk_add_f32 {vp(T(e,1))}, {vp(T(e,0))}, s[{sTWO}:{sTWO+1}]")
            for e in prs: I(f"v_pk_mul_f32 {vp(T(e,1))}, {vp(T(e,0))}, {vp(T(e,1))}")
            for e in prs: I(f"v_pk_add_f32 {vp(T(e,2))}, {vp(T(e,1))}, s[{sTWO}:{sTWO+1}]")
            for e in range(8): I(f"v_rcp_f32 v{tb[2]+e}, v{tb[2]+e}")
            for e in prs: I(f"v_pk_mul_f32 {vp(T(e,1))}, {vp(T(e,1))}, {vp(T(e,2))}")
            for e in prs: I(f"v_pk_mul_f32 {vp(T(e,0))}, {vp(acc+2*e)}, {vp(T(e,1))}")
            for e in range(4): I(f"v_cvt_pk_bf16_f32 v{pk+e}, v{tb[0]+2*e}, v{tb[0]+2*e+1}")
        for n, (p, hh) in enumerate(jobs):
            if isA and n == 2:
                I(f"s_cmp_eq_u32 s{sHF}, 1")
                I(f"s_cbranch_scc1 P1A_EDONE")
            mish8(ACC[2 + p] + 8*hh, HKR[n])
        if isA: a.label("P1A_EDONE")
        stamp(a, 4)
        I("s_branch P2_ATT")

    path("A")
    a.label("P1_B")
    path("B")

    a.label("P2_ATT")
    sCNT, sNMAX, sFIRST, sVM = 50, 51, 52, 54
    vT, vLO, vKA, vVA, vG, vM, vT2 = 2, 11, 4, 5, 6, 7, 8
    Q, NEGM, S, O, P, KF, VF = 12, 16, [32, 48], 64, 80, [88, 92], [96, 104]
    IX = 9
    SM = "v_smfmac_f32_32x32x32_bf16"
    SA = opt("--sa", 3); SBK = opt("--sbk", 11)
    I(f"s_mov_b32 s{sVM}, 0xffff")
    I(f"s_mov_b32 s{sVM+1}, 0xffff")
    I(f"v_and_b32 v{vT}, 27, v{vL}")
    I(f"v_cmp_eq_u32 vcc, 16, v{vT}")
    I(f"v_mov_b32 v{vT}, 0x3f803f80")
    I(f"s_lshl_b32 s{sT0}, s{sW}, 10")
    I(f"v_cndmask_b32 v{VF[0]}, 0, v{vT}, vcc")
    for r in range(1, 16): I(f"v_mov_b32 v{VF[0]+r}, v{VF[0]}")
    I(f"s_add_u32 s{sT0}, s{sT0}, {QL}")
    I(f"v_add_u32 v{vT}, s{sT0}, v{vLO}")
    I(f"v_and_b32 v{vT2}, 31, v{vL}")
    I(f"v_lshlrev_b32 v{vT2}, 2, v{vT2}")
    I(f"s_lshl_b32 s{sT0}, s{sW}, 7")
    I(f"s_add_u32 s{sT0}, s{sT0}, {GL}")
    I(f"v_add_u32 v{vT2}, s{sT0}, v{vT2}")
    for r in range(4): I(f"v_mov_b32 v{148+r}, -1")
    I(f"s_mov_b32 s{sNMAX}, 1")
    I(f"s_mov_b32 s53, 8")
    I(f"s_mov_b32 s{sFIRST}, {Y2IT}")
    if ATPRIO: I("s_setprio 2")
    I("s_barrier")
    stamp(a, 5)
    I(f"ds_read_b128 v[{Q}:{Q+3}], v{vT}")
    I(f"ds_read_b32 v{vG}, v{vT2}")
    for n in range(4):
        if n == 2:
            I(f"s_cmp_eq_u32 s56, 1")
            I(f"s_cbranch_scc1 P2_NOH3")
        I(f"buffer_store_dwordx4 v[{HKR[n]}:{HKR[n]+3}], v{vLO}, s[{SWS}:{SWS+3}], s{76+n} offen{WTF}")
    a.label("P2_NOH3")
    I(f"buffer_store_dwordx4 v[148:151], v{vLO}, s[{SWS}:{SWS+3}], s97 offen{WTF}")
    a.label("P2_MAXPASS")
    I(f"v_mov_b32 v{vKA}, v{vLO}")
    I(f"v_mov_b32 v{vM}, 0xff800000")
    I(f"s_mov_b32 s{sCNT}, s{sNMAX}")
    a.label("P2_MAXLOOP")
    I(f"ds_read_b128 v[{KF[0]}:{KF[0]+3}], v{vKA}")
    I(f"v_add_u32 v{vKA}, 2048, v{vKA}")
    I("s_waitcnt lgkmcnt(0)")
    I(f"{MF} v[{S[0]}:{S[0]+15}], v[{KF[0]}:{KF[0]+3}], v[{Q}:{Q+3}], 0")
    I("s_nop 11")
    for r in range(8): I(f"v_max3_f32 v{vM}, v{S[0]+2*r}, v{S[0]+2*r+1}, v{vM}")
    I(f"s_sub_u32 s{sCNT}, s{sCNT}, 1")
    I(f"s_cmp_lg_u32 s{sCNT}, 0")
    I("s_cbranch_scc1 P2_MAXLOOP")
    I(f"v_mov_b32 v{vT}, v{vM}")
    I(f"v_mov_b32 v{vKA}, v{vLO}")
    I(f"v_and_b32 v{vT2}, 15, v{vL}")
    I(f"v_permlane32_swap_b32 v{vM}, v{vT}")
    I(f"v_lshlrev_b32 v{vVA}, 4, v{vT2}")
    I(f"v_lshrrev_b32 v{vT2}, 5, v{vL}")
    I(f"v_max_f32 v{vM}, v{vM}, v{vT}")
    I(f"v_lshl_add_u32 v{vVA}, v{vT2}, 8, v{vVA}")
    I(f"v_add_u32 v{vVA}, 1024, v{vVA}")
    def rdK(t, buf): I(f"ds_read_b128 v[{KF[buf]}:{KF[buf]+3}], v{vKA} offset:{2048*t}")
    def rdV(t, buf):
        I(f"s_mov_b64 exec, s[{sVM}:{sVM+1}]")
        I(f"ds_read_b128 v[{VF[buf]}:{VF[buf]+3}], v{vVA} offset:{2048*t}")
        I(f"ds_read_b128 v[{VF[buf]+4}:{VF[buf]+7}], v{vVA} offset:{2048*t+512}")
        I(f"s_mov_b64 exec, -1")
    rdK(0, 0); rdK(1, 1); rdV(0, 0)
    for r in range(16): I(f"v_sub_f32 v{NEGM+r}, 0, v{vM}")
    for r in range(8, 16): I(f"v_mov_b32 v{S[1]+r}, 0")
    I(f"v_mov_b32 v{IX}, 0xdddddddd")
    I("s_waitcnt lgkmcnt(3)")
    I(f"{MF} v[{S[0]}:{S[0]+15}], v[{KF[0]}:{KF[0]+3}], v[{Q}:{Q+3}], v[{NEGM}:{NEGM+15}]")
    for r in range(16): I(f"v_mov_b32 v{O+r}, 0")
    I(f"s_mov_b32 s{sCNT}, 8")
    a.label("P2_LOOP")
    for t in range(8):
        cur, nxt = t % 2, (t + 1) % 2
        sc, sn = S[cur], S[nxt]
        e = lambda k: I(f"v_exp_f32 v{sc+k}, v{sc+k}")
        e(0); e(1)
        I(f"{SM} v[{O}:{O+15}], v[{VF[nxt]+4}:{VF[nxt]+7}], v[{sn+8}:{sn+15}], v{IX}")
        rdV(t + 1, nxt)
        for k in range(2, 2 + SA): e(k)
        I("s_waitcnt lgkmcnt(2)")
        I(f"{MF} v[{sn}:{sn+15}], v[{KF[nxt]}:{KF[nxt]+3}], v[{Q}:{Q+3}], v[{NEGM}:{NEGM+15}]")
        rdK(t + 2, cur)
        for k in range(2 + SA, SBK): e(k)
        I(f"{SM} v[{O}:{O+15}], v[{VF[cur]}:{VF[cur]+3}], v[{sc}:{sc+7}], v{IX}")
        for k in range(SBK, 16): e(k)
    I(f"v_add_u32 v{vKA}, 0x4000, v{vKA}")
    I(f"v_add_u32 v{vVA}, 0x4000, v{vVA}")
    I(f"s_cmp_lg_u32 s53, s{sCNT}")
    I("s_cbranch_scc1 P2_NOBAR0")
    I(f"s_mov_b32 s53, 100")
    I("s_barrier")
    a.label("P2_NOBAR0")
    I(f"s_cmp_lg_u32 s{sFIRST}, s{sCNT}")
    I("s_cbranch_scc1 P2_NOBAR")
    I(f"s_mov_b32 s{sFIRST}, 100")
    I("s_waitcnt vmcnt(0)")
    I("s_barrier")
    stamp(a, 6)
    a.label("P2_NOBAR")
    if ATPRIO:
        I(f"s_cmp_lg_u32 s{sCNT}, 5")
        I("s_cbranch_scc1 P2_NP1")
        I("s_setprio 1")
        a.label("P2_NP1")
        I(f"s_cmp_lg_u32 s{sCNT}, 2")
        I("s_cbranch_scc1 P2_NP2")
        I("s_setprio 0")
        a.label("P2_NP2")
    I(f"s_sub_u32 s{sCNT}, s{sCNT}, 1")
    I(f"s_cmp_lg_u32 s{sCNT}, 0")
    I("s_cbranch_scc1 P2_LOOP")
    I(f"{SM} v[{O}:{O+15}], v[{VF[1]+4}:{VF[1]+7}], v[{S[1]+8}:{S[1]+15}], v{IX}")
    I("s_waitcnt lgkmcnt(0)")
    I("s_nop 11")
    stamp(a, 7)
    I(f"v_mov_b32 v{vT}, v{O+8}")
    I(f"v_rcp_f32 v{vT2}, v{O+8}")
    for r in range(8): I(f"v_fma_f32 v{vT}, v{O+r}, 0, v{vT}")
    I(f"v_cmp_gt_f32 vcc, {fhex(2.0**100)}, v{vT}")
    I(f"v_mul_f32 v{vT2}, v{vT2}, v{vG}")
    I("s_nop 3")
    I(f"s_cmp_eq_u64 vcc, -1")
    I("s_cbranch_scc1 P2_OK")
    I(f"s_cmp_eq_u32 s{sNMAX}, 64")
    I("s_cbranch_scc1 P2_OK")
    I(f"s_mov_b32 s{sNMAX}, 64")
    I("s_branch P2_MAXPASS")
    a.label("P2_OK")
    for r in range(8): I(f"v_mul_f32 v{O+r}, v{O+r}, v{vT2}")
    for r in range(4): I(f"v_cvt_pk_bf16_f32 v{P+r}, v{O+2*r}, v{O+2*r+1}")
    I(f"buffer_store_dwordx4 v[{P}:{P+3}], v{vLO}, s[{SWS}:{SWS+3}], s97 offen sc0 sc1")
    stamp(a, 8)
    stamp_flush(a, 9, SWS, sW, 0)
    I("s_endpgm")

    COMP[0] = False
    a.label("P2_SHADOW")
    sJ = 63
    sN = 8
    SO = 12
    sA0, sA1, sB0, sB1 = 80, 81, 82, 83
    sKV, sM0 = 20, 21
    sOC, sOR, sWA0, sWA1, sOB0, sOB1, sLS, sOB2, sOB3 = 22, 23, 24, 25, 26, 27, 84, 85, 86
    sTO = 87
    vLO = 3
    I(f"s_load_dwordx2 s[{SO}:{SO+1}], s[0:1], 64")
    I(f"s_setprio {SHPRIO2}")
    I(f"v_mov_b32 v{vLO}, v{vST}")
    I(f"v_mov_b32 v2, 0")
    I(f"s_mov_b32 s{sTO}, 0x40000")
    I(f"s_and_b32 s{sT0}, s2, 6")
    I(f"s_and_b32 s{sT1}, s2, 1")
    I(f"s_lshl_b32 s{sT1}, s{sT1}, 6")
    I(f"s_or_b32 s{sT0}, s{sT0}, s{sT1}")
    I(f"v_and_b32 v6, 1, v{vL}")
    I(f"v_bfe_u32 v7, v{vL}, 1, 3")
    I(f"v_lshl_or_b32 v6, v7, 3, v6")
    I(f"v_bfe_u32 v7, v{vL}, 4, 1")
    I(f"v_lshl_or_b32 v6, v7, 7, v6")
    I(f"v_or_b32 v6, s{sT0}, v6")
    I(f"s_lshl_b32 s{sT0}, s{sQB}, 5")
    I(f"v_and_b32 v7, 31, v{vL}")
    I(f"v_add_u32 v7, s{sT0}, v7")
    I(f"v_cmp_gt_u32 vcc, 32, v{vL}")
    I(f"s_lshl_b32 s{sKV}, s{sH}, 17")
    I(f"s_lshl_b32 s{sM0}, s{sJ}, 10")
    I(f"v_cndmask_b32 v6, v7, v6, vcc")
    I(f"v_lshlrev_b32 v6, 6, v6")
    I(f"s_add_u32 s{sKV}, s{sKV}, s{sM0}")
    I(f"s_add_u32 s{sKV}, s{sKV}, {KV_OFF}")
    I(f"s_lshl_b32 s{sT2}, s2, 6")
    I(f"s_add_u32 s{sT2}, s{sT2}, {FL_OFF}")
    I(f"s_mov_b32 s{sLS}, {FL_OFF}")
    I(f"global_load_dwordx2 v[4:5], v2, s[100:101] sc0 sc1")
    I(f"buffer_load_dwordx2 v[8:9], v6, s[{SWS}:{SWS+3}], s{sLS} offen sc0 sc1")
    I("s_waitcnt vmcnt(0) lgkmcnt(0)")
    I("s_barrier")
    stamp(a, 2)
    srd(a, SO, 2048*512*2)
    a.label("P2_F1CHK")
    I(f"v_readfirstlane_b32 s{sN}, v4")
    I(f"v_readfirstlane_b32 s{sN+1}, v5")
    I("s_nop 1")
    I(f"v_cmp_eq_u64 vcc, s[{sN}:{sN+1}], v[8:9]")
    I(f"s_cmp_eq_u32 s{sN}, 0")
    I("s_cbranch_scc1 P2_F1RE")
    I("s_nop 3")
    I(f"s_cmp_eq_u64 vcc, -1")
    I("s_cbranch_scc1 P2_F1GOT")
    a.label("P2_F1RE")
    I(f"s_cmp_eq_u32 s{sTO}, 0")
    I(f"s_cbranch_scc1 P2_F1GOT")
    I(f"s_sub_u32 s{sTO}, s{sTO}, 1")
    I(f"s_sleep {POLLS}")
    I(f"global_load_dwordx2 v[4:5], v2, s[100:101] sc0 sc1")
    I(f"buffer_load_dwordx2 v[8:9], v6, s[{SWS}:{SWS+3}], s{sLS} offen sc0 sc1")
    I("s_waitcnt vmcnt(0)")
    I("s_branch P2_F1CHK")
    a.label("P2_F1GOT")
    stamp(a, 3)
    def kvdma():
        I(f"s_mov_b32 m0, s{sM0}")
        I(f"s_add_u32 s{sM0}, s{sM0}, 4096")
        I(f"buffer_load_dwordx4 v{vLO}, s[{SWS}:{SWS+3}], s{sKV} offen lds")
        I(f"s_add_u32 s{sKV}, s{sKV}, 4096")
    I(f"s_lshl_b32 s{sT0}, s{sH}, 6")
    I(f"s_lshl_b32 s{sT1}, s{sQB}, 3")
    I(f"s_add_u32 s{sT0}, s{sT0}, s{sT1}")
    I(f"s_lshl_b32 s{sT1}, s{sJ}, 1")
    I(f"s_add_u32 s{sT0}, s{sT0}, s{sT1}")
    I(f"s_lshl_b32 s{sT0}, s{sT0}, 10")
    I(f"s_lshl_b32 s{sT1}, s{sJ}, 11")
    I(f"s_add_u32 m0, s{sT1}, {QL}")
    I(f"s_lshl_b32 s{sT1}, s{sQB}, 10")
    I(f"buffer_load_dwordx4 v{vLO}, s[{SWS}:{SWS+3}], s{sT0} offen lds")
    I(f"buffer_load_dwordx4 v{vLO}, s[{SWS}:{SWS+3}], s{sT0} offen offset:1024 lds")
    I(f"s_mov_b32 m0, {GL}")
    I(f"s_add_u32 s{sT1}, s{sT1}, {G_OFF}")
    I(f"buffer_load_dwordx4 v{vLO}, s[{SWS}:{SWS+3}], s{sT1} offen lds")
    for half in range(3):
        I(f"s_mov_b32 s{sCNT}, {(KV0, 16 - KV0, 16)[half]}")
        a.label(f"P2_KVLOOP{half}")
        kvdma()
        I(f"s_sub_u32 s{sCNT}, s{sCNT}, 1")
        I(f"s_cmp_lg_u32 s{sCNT}, 0")
        I(f"s_cbranch_scc1 P2_KVLOOP{half}")
        if half == 1:
            I(f"s_waitcnt vmcnt({16 - KV0})")
            I("s_barrier")
            stamp(a, 4)
            I("s_waitcnt vmcnt(0)")
            I("s_barrier")
            srd(a, SWO, 512*512*2); srd(a, SW2, 1792*512*2)
            I(f"s_lshl_b32 s{sLS}, s{sJ}, 12")
            I(f"s_add_u32 s{sLS}, s{sLS}, {131072}")
            I(f"v_lshrrev_b32 v12, 5, v{vL}")
            I(f"v_bfe_u32 v13, v{vL}, 2, 2")
            I(f"v_and_b32 v14, 3, v{vL}")
            I(f"v_bfe_u32 v15, v{vL}, 4, 1")
            I(f"v_lshlrev_b32 v10, 9, v12")
            I(f"v_lshl_add_u32 v10, v13, 7, v10")
            I(f"v_lshrrev_b32 v16, 1, v13")
            I(f"v_lshl_add_u32 v10, v16, 6, v10")
            I(f"v_lshl_add_u32 v10, v15, 4, v10")
            I(f"v_and_b32 v16, 1, v14")
            I(f"v_lshl_add_u32 v10, v16, 5, v10")
            I(f"v_lshrrev_b32 v16, 1, v14")
            I(f"v_lshl_add_u32 v10, v16, 3, v10")
            I(f"v_add_u32 v10, s{sLS}, v10")
            I(f"v_xor_b32 v11, 64, v10")
            I(f"s_lshl_b32 s52, s2, 2")
            I(f"s_add_u32 s52, s52, s{sJ}")
            for n in range(2):
                if n == 1:
                    I(f"s_cmp_ge_u32 s52, 128")
                    I(f"s_cbranch_scc1 P2_TR1")
                    I(f"s_add_u32 s52, s52, 1024")
                I(f"s_mul_i32 s53, s52, 7282")
                I(f"s_lshr_b32 s53, s53, 20")
                I(f"s_mul_i32 s54, s53, 144")
                I(f"s_sub_u32 s54, s52, s54")
                I(f"s_add_u32 s{56+n}, s52, s52")
                I(f"s_sub_u32 s{56+n}, s{56+n}, s54")
                I(f"s_lshl_b32 s{56+n}, s{56+n}, 10")
                I(f"s_lshl_b32 s{sT0}, s54, 14")
                I(f"s_lshl_b32 s{sT1}, s53, 7")
                I(f"s_add_u32 s{sT0}, s{sT0}, s{sT1}")
                I(f"s_add_u32 m0, s{sLS}, {2048*n}")
                I(f"s_cmp_ge_u32 s54, 32")
                I(f"s_cbranch_scc1 P2_TW2{n}")
                I(f"s_add_u32 s{sT1}, s{sT0}, {8192 - 1024}")
                I(f"buffer_load_dwordx4 v{vTD}, s[{SWO}:{SWO+3}], s{sT0} offen lds")
                I(f"buffer_load_dwordx4 v{vTD}, s[{SWO}:{SWO+3}], s{sT1} offen offset:1024 lds")
                I(f"s_branch P2_TD{n}")
                a.label(f"P2_TW2{n}")
                I(f"s_sub_u32 s{sT0}, s{sT0}, {32*16384}")
                I(f"s_add_u32 s{sT1}, s{sT0}, {8192 - 1024}")
                I(f"buffer_load_dwordx4 v{vTD}, s[{SW2}:{SW2+3}], s{sT0} offen lds")
                I(f"buffer_load_dwordx4 v{vTD}, s[{SW2}:{SW2+3}], s{sT1} offen offset:1024 lds")
                a.label(f"P2_TD{n}")
            a.label("P2_TR1")
    I("s_waitcnt vmcnt(16)")
    for n in range(2):
        for ct in range(2):
            b = 24 + 8*n + 4*ct
            I(f"ds_read_b64_tr_b16 v[{b}:{b+1}], v{10+ct} offset:{2048*n}")
            I(f"ds_read_b64_tr_b16 v[{b+2}:{b+3}], v{10+ct} offset:{2048*n+1024}")
    I("s_waitcnt lgkmcnt(0)")
    for n in range(2):
        if n == 1:
            I(f"s_cmp_lt_u32 s52, 1024")
            I(f"s_cbranch_scc1 P2_TR2")
        for ct in range(2):
            b = 24 + 8*n + 4*ct
            I(f"s_add_u32 s7, s{56+n}, {WF_OFF + ct*144*1024}")
            I(f"buffer_store_dwordx4 v[{b}:{b+3}], v{vLO}, s[{SWS}:{SWS+3}], s7 offen{WTF}")
    a.label("P2_TR2")
    I(f"s_lshr_b32 s{sT0}, s{sJ}, 1")
    I(f"s_lshl_b32 s{sT1}, s{sQB}, 1")
    I(f"s_add_u32 s{sA0}, s{sT1}, s{sT0}")
    I(f"s_xor_b32 s{sA1}, s{sA0}, 1")
    I(f"s_and_b32 s{sT0}, s{sJ}, 1")
    I(f"s_lshl_b32 s{sT1}, s{sH}, 1")
    I(f"s_add_u32 s{sB0}, s{sT1}, s{sT0}")
    I(f"s_xor_b32 s{sB1}, s{sB0}, 1")
    I(f"s_mov_b32 s{sOC}, s{sA0}")
    I(f"s_mov_b32 s{sOR}, s{sB0}")
    I(f"s_lshl_b32 s32, s{sB0}, 7")
    I(f"s_add_u32 s32, s32, {G_OFF}")
    I(f"s_lshl_b32 s33, s{sB1}, 7")
    I(f"s_add_u32 s33, s33, {G_OFF}")
    I(f"s_lshl_b32 s{sT0}, s{sJ}, 13")
    for d, r in ((sWA0, sA0), (sWA1, sA1)):
        I(f"s_mul_i32 s{d}, s{r}, {144*1024}")
        I(f"s_add_u32 s{d}, s{d}, s{sT0}")
        I(f"s_add_u32 s{d}, s{d}, {WF_OFF}")
    for d, r in ((sOB0, sB0), (sOB1, sB1)):
        I(f"s_lshl_b32 s{d}, s{r}, 15")
        I(f"s_add_u32 s{d}, s{d}, s{sT0}")
        I(f"s_add_u32 s{d}, s{d}, {OF_OFF}")
    I(f"s_mul_i32 s{sT0}, s{sJ}, {28*1024}")
    for r, off in ((sA0, WF_OFF), (sA1, WF_OFF), (sB0, AF_OFF), (sB1, AF_OFF)):
        I(f"s_mul_i32 s{r}, s{r}, {144*1024}")
        I(f"s_add_u32 s{r}, s{r}, s{sT0}")
        I(f"s_add_u32 s{r}, s{r}, {off + 32*1024}")
    ACC2, FR = 8, 72
    I(f"s_lshr_b32 s{sT0}, s{sH}, 1")
    I(f"s_lshr_b32 s{sT1}, s{sT0}, 3")
    I(f"s_and_b32 s{sT0}, s{sT0}, 7")
    I(f"s_lshl_b32 s{sT0}, s{sT0}, 3")
    I(f"s_or_b32 s{sT0}, s{sT0}, s{sT1}")
    I(f"v_and_b32 v6, 6, v{vL}")
    I(f"v_and_b32 v7, 1, v{vL}")
    I(f"v_lshl_or_b32 v6, v7, 6, v6")
    I(f"v_bfe_u32 v7, v{vL}, 3, 1")
    I(f"v_lshl_or_b32 v6, v7, 7, v6")
    I(f"v_or_b32 v6, s{sT0}, v6")
    I(f"s_mul_i32 s{sT0}, s{sQB}, 36")
    I(f"v_subrev_u32 v7, 16, v{vL}")
    I(f"v_min_u32 v7, 35, v7")
    I(f"v_add_u32 v7, s{sT0}, v7")
    I(f"v_and_b32 v7, 255, v7")
    I(f"v_cmp_gt_u32 vcc, 16, v{vL}")
    I(f"s_add_u32 s{sT2}, s{sT2}, {F2_OFF - FL_OFF}")
    I(f"s_mov_b32 s{sLS}, {F2_OFF}")
    I(f"v_cndmask_b32 v6, v7, v6, vcc")
    I(f"v_lshlrev_b32 v6, 6, v6")
    I(f"s_lshr_b32 s{sT0}, s{sH}, 2")
    I(f"s_lshl_b32 s{sT0}, s{sT0}, 5")
    I(f"v_and_b32 v7, 31, v{vL}")
    I(f"v_add_u32 v7, s{sT0}, v7")
    I(f"s_lshl_b32 s{sT0}, s{sH}, 3")
    I(f"v_and_b32 v12, 7, v{vL}")
    I(f"v_cmp_gt_u32 vcc, 32, v{vL}")
    I(f"v_add_u32 v12, s{sT0}, v12")
    I("s_nop 0")
    I(f"v_cndmask_b32 v7, v12, v7, vcc")
    I(f"v_lshlrev_b32 v7, 6, v7")
    I("s_waitcnt vmcnt(0)")
    I("s_barrier")
    stamp(a, 5)
    I(f"s_cmp_lg_u32 s{sJ}, 0")
    I("s_cbranch_scc1 P2_F2POLL")
    I("s_mov_b64 exec, 1")
    I(f"buffer_store_dwordx2 v[4:5], v2, s[{SWS}:{SWS+3}], s{sT2} offen sc0 sc1")
    I("s_mov_b64 exec, -1")
    def pollflags(vaddr, lab, done, sl):
        a.label(lab)
        I(f"buffer_load_dwordx2 v[{FR+88}:{FR+89}], v{vaddr}, s[{SWS}:{SWS+3}], s{sKV} offen sc0 sc1")
        I("s_waitcnt vmcnt(0)")
        I(f"v_cmp_eq_u64 vcc, s[{sN}:{sN+1}], v[{FR+88}:{FR+89}]")
        I("s_nop 4")
        I(f"s_cmp_eq_u64 vcc, -1")
        I(f"s_cbranch_scc1 {done}")
        I(f"s_cmp_eq_u32 s{sTO}, 0")
        I(f"s_cbranch_scc1 {done}")
        I(f"s_sub_u32 s{sTO}, s{sTO}, 1")
        I(f"s_sleep {sl}")
        I(f"s_branch {lab}")
    a.label("P2_F2POLL")
    I(f"s_mov_b32 s{sKV}, {F2_OFF}")
    pollflags(6, "P2_F2P", "P2_F2GOT", 8)
    a.label("P2_F2GOT")
    stamp(a, 6)
    def ld(u):
        fb = FR + 16*u
        for q, r in enumerate((sA0, sB0, sA1, sB1)):
            I(f"buffer_load_dwordx4 v[{fb+4*q}:{fb+4*q+3}], v{vLO}, s[{SWS}:{SWS+3}], s{r} offen offset:{1024*u}")
    def mm4(A0, A1, B0, B1):
        for tau, (A, B) in ((3, (A1, B1)), (2, (A1, B0)), (1, (A0, B1)), (0, (A0, B0))):
            acc = ACC2 + 16*tau
            I(f"{MF} v[{acc}:{acc+15}], v[{A}:{A+3}], v[{B}:{B+3}], v[{acc}:{acc+15}]")
    def mmf(fb): mm4(fb, fb+8, fb+4, fb+12)
    for u in range(4): ld(u)
    I(f"s_setprio 0")
    I(f"s_mov_b32 s{sCNT}, 6")
    for r in (sA0, sA1, sB0, sB1): I(f"s_add_u32 s{r}, s{r}, 4096")
    I("s_waitcnt vmcnt(12)")
    for tau, (A, B) in ((3, (FR+8, FR+12)), (2, (FR+8, FR+4)), (1, (FR, FR+12)), (0, (FR, FR+4))):
        acc = ACC2 + 16*tau
        I(f"{MF} v[{acc}:{acc+15}], v[{A}:{A+3}], v[{B}:{B+3}], 0")
    I("s_branch P2_GIN")
    a.label("P2_GLOOP")
    for r in (sA0, sA1, sB0, sB1): I(f"s_add_u32 s{r}, s{r}, 4096")
    for u in range(4):
        I("s_waitcnt vmcnt(12)")
        mmf(FR + 16*u)
        if u == 0: a.label("P2_GIN")
        ld(u)
    I(f"s_sub_u32 s{sCNT}, s{sCNT}, 1")
    I(f"s_cmp_lg_u32 s{sCNT}, 0")
    I("s_cbranch_scc1 P2_GLOOP")
    WA, OB = 72, 104
    for u in range(4):
        I(f"s_waitcnt vmcnt({12 - 4*u})")
        mmf(FR + 16*u)
    for s_ in range(4):
        for q, r in ((0, sWA0), (1, sWA1)):
            b = WA + 8*s_ + 4*q
            I(f"buffer_load_dwordx4 v[{b}:{b+3}], v{vLO}, s[{SWS}:{SWS+3}], s{r} offen offset:{1024*s_}")
    I(f"s_lshl_b32 s{sLS}, s{sJ}, 13")
    I(f"s_add_u32 s{sLS}, s{sLS}, 131072")
    for q, r in ((0, sWA0), (1, sWA1)):
        I(f"s_add_u32 m0, s{sLS}, {4096*q}")
        I(f"s_add_u32 s{sT0}, s{r}, 4096")
        for s_ in range(4):
            I(f"buffer_load_dwordx4 v{vLO}, s[{SWS}:{SWS+3}], s{sT0} offen offset:{1024*s_} lds")
    stamp(a, 7)
    I(f"s_setprio {SHPRIO2}")
    pollflags(7, "P2_F3P", "P2_F3GOT", 8)
    a.label("P2_F3GOT")
    I(f"v_and_b32 v2, 31, v{vL}")
    I(f"v_lshlrev_b32 v2, 2, v2")
    I(f"buffer_load_dword v4, v2, s[{SWS}:{SWS+3}], s32 offen")
    I(f"buffer_load_dword v5, v2, s[{SWS}:{SWS+3}], s33 offen")
    I("s_waitcnt vmcnt(0)")
    I(f"v_sub_f32 v4, 1.0, v4")
    I(f"v_sub_f32 v5, 1.0, v5")
    for tau in (3, 2, 1, 0):
        for k in range(16): I(f"v_mul_f32 v{ACC2+16*tau+k}, v{ACC2+16*tau+k}, v{4 + (tau & 1)}")
    I(f"s_add_u32 s{sOB2}, s{sOB0}, 4096")
    I(f"s_add_u32 s{sOB3}, s{sOB1}, 4096")
    I(f"v_add_u32 v2, s{sLS}, v{vLO}")
    I(f"s_mul_i32 s{sT0}, s{sJ}, 12288")
    I(f"v_add_u32 v4, s{sT0}, v{vLO}")
    for r in (1, 2, 3):
        I(f"s_xor_b32 s{sT0}, s{sJ}, {r}")
        I(f"s_mul_i32 s{sT0}, s{sT0}, 12288")
        I(f"v_add_u32 v{4+r}, s{sT0}, v{vLO}")
    I("s_waitcnt vmcnt(0)")
    I("s_barrier")
    stamp(a, 8)
    def ldo(s_):
        for q in range(2):
            r = (sOB0, sOB1)[q] if s_ < 4 else (sOB2, sOB3)[q]
            b = OB + 8*s_ + 4*q
            I(f"buffer_load_dwordx4 v[{b}:{b+3}], v{vLO}, s[{SWS}:{SWS+3}], s{r} offen offset:{1024*(s_%4)} sc0 sc1")
    for s_ in range(8): ldo(s_)
    for s_ in range(8):
        b = OB + 8*s_
        a.label(f"P2_CHK{s_}")
        I(f"s_waitcnt vmcnt({14 - 2*s_})")
        I(f"v_max3_u32 v0, v{b}, v{b+1}, v{b+2}")
        I(f"v_max3_u32 v0, v{b+3}, v{b+4}, v0")
        I(f"v_max3_u32 v0, v{b+5}, v{b+6}, v0")
        I(f"v_max_u32 v0, v{b+7}, v0")
        I(f"v_cmp_eq_u32 vcc, -1, v0")
        if s_ >= 4: I("s_waitcnt lgkmcnt(%d)" % (2*(7 - s_)))
        else: I("s_nop 0")
        I("s_nop 2")
        I(f"s_cbranch_vccnz P2_RETRY{s_}")
        a.label(f"P2_GO{s_}")
        wa = WA + 8*(s_ % 4)
        mm4(wa, wa+4, b, b+4)
        if s_ < 4:
            for q in range(2):
                I(f"ds_read_b128 v[{wa+4*q}:{wa+4*q+3}], v2 offset:{4096*q + 1024*s_}")
    I(f"s_lshl_b32 s{sT0}, s{sOR}, 15")
    I(f"s_lshl_b32 s{sT1}, s{sOC}, 6")
    I(f"s_add_u32 s{sT0}, s{sT0}, s{sT1}")
    I(f"v_and_b32 v2, 31, v{vL}")
    I(f"v_lshlrev_b32 v2, 10, v2")
    I(f"v_lshrrev_b32 v{vL}, 5, v{vL}")
    I(f"v_lshl_add_u32 v2, v{vL}, 5, v2")
    I("s_nop 2")
    for r in (3, 2, 1):
        for q in range(4):
            b = ACC2 + 16*r + 4*q
            I(f"ds_write_b128 v{4+r}, v[{b}:{b+3}] offset:{(r-1)*4096 + q*1024}")
    I("s_waitcnt lgkmcnt(0)")
    I("s_barrier")
    for r in range(3):
        for q in range(4):
            b = FR + 16*r + 4*q
            I(f"ds_read_b128 v[{b}:{b+3}], v4 offset:{r*4096 + q*1024}")
    for r in range(3):
        I(f"s_waitcnt lgkmcnt({8-4*r})")
        for k in range(16): I(f"v_add_f32 v{ACC2+k}, v{ACC2+k}, v{FR+16*r+k}")
    for r in range(8): I(f"v_cvt_pk_bf16_f32 v{FR+r}, v{ACC2+2*r}, v{ACC2+2*r+1}")
    I(f"buffer_store_dwordx4 v[{FR}:{FR+3}], v2, s[{SO}:{SO+3}], s{sT0} offen")
    I(f"buffer_store_dwordx4 v[{FR+4}:{FR+7}], v2, s[{SO}:{SO+3}], s{sT0} offen offset:16")
    if DBG:
        I("s_waitcnt vmcnt(0)")
        I("s_mov_b32 s65, s72")
    stamp(a, 8)
    stamp_flush(a, 9, SWS, sW, 0)
    I("s_endpgm")
    for s_ in range(8):
        a.label(f"P2_RETRY{s_}")
        I(f"s_cmp_eq_u32 s{sTO}, 0")
        I(f"s_cbranch_scc1 P2_GO{s_}")
        I(f"s_sub_u32 s{sTO}, s{sTO}, 1")
        if POLLS: I(f"s_sleep {POLLS}")
        for q_ in range(s_, 8): ldo(q_)
        I(f"s_branch P2_CHK{s_}")
    a.label("MK_END")
    I("s_endpgm")
    return a.text(), kdesc(KN, NV, 102, NV), 163840

if __name__ == "__main__":
    txt, kd, lds = gen()
    ref = open(f"cdna_kernels/{NAME}.s.ref").read().splitlines()
    head = [l for l in ref if l.startswith(";") and "@launch" not in l and "Override launch" not in l and "grid=ceil" not in l and "TODO" not in l][:12]
    s = "\n".join(head) + "\n" + f"; @launch grid=(256,1,1) block=(768,1,1) lds={lds}\n"
    s += '.amdgcn_target "amdgcn-amd-amdhsa--gfx950"\n.text\n' + txt + '.section .rodata,"a"\n' + kd
    open(sys.argv[1], "w").write(s)
```

```python
from common import *
PKMISH = opt("--pkmish", 1)
WTF = " sc0 sc1"
TRIT = opt("--trit", 4)
PFIT = opt("--pfit", 3)
TRIT2 = opt("--trit2", 6)
ROTX = opt("--rotx", 7)
ROTR = opt("--rotr", 1)
SHPRIO2 = opt("--shprio2", 3)
ATPRIO = opt("--atprio", 1)
POLLS = opt("--polls", 8)
MPF = opt("--mpf", 0)
DBG2 = opt('--dbg2', 0)
WT1 = opt('--wt1', 'sc0_sc1').replace('_', ' ')
EXP = opt('--exp', 0)
KV0 = opt('--kv0', 5)
NST = 5
LFIRST = opt('--lfirst', 0)
HLATE = opt('--hlate', 1)
TLBW = opt('--tlbw', 0)
GIT = opt('--git', 1)
DEP = opt('--dep', 2)
STG = 32768
SB0 = 98304
XAB = 131072
QL = 147456
GL = 155648
F1IT = opt('--f1it', 1)
Y2IT = opt('--y2it', 6)
F2_OFF = FL_OFF + 16384
KN = NAME + "_kernel"
MF = "v_mfma_f32_32x32x16_bf16"

_stamp = stamp
def stamp(a, idx, comp=True):
    if DBG2 and 1 <= idx <= 7 and COMP[0]: return
    _stamp(a, idx)
COMP = [True]
def gen():
    a = Asm()
    I = a.i
    a.raw(khead(KN))
    I("s_cmp_ge_u32 s2, 256")
    I("s_cbranch_scc1 MK_END")
    SX, SWQ, SWO, SW1, SB1, SW2, SG, SWS = 8, 12, 16, 20, 24, 28, 32, 36
    for s, off in [(SX, 0), (SWQ, 8), (SW1, 32), (SWO, 16), (SB1, 40), (SW2, 48), (SG, 56), (SWS, 80), (100, 72)]:
        I(f"s_load_dwordx2 s[{s}:{s+1}], s[0:1], {off}")
    srd(a, SX, 2048*512*2); srd(a, SWQ, 512*1536*2); srd(a, SW1, 512*1792*2); srd(a, SWS, WS_BYTES)
    sW, sC, sRB, sRT, sT0, sT1, sT2, sHF, sIT = 40, 41, 42, 43, 44, 45, 46, 47, 48
    sRS = 58
    sCOL = [[59, 60], [61, 62]]
    sL2E, sTWO, sQS, s30 = 84, 86, 5, 6
    sTR = 94
    sH, sQB = 95, 96
    vL = 1
    t0, t1, t2, t3 = 2, 3, 4, 5
    vXE, vXO, vWQ, vWF, vWS, vST, vSV, vTS = 6, 7, 8, 9, 10, 11, 12, 13
    vXR = [14, 15, 16, 17]
    vTP = [18]
    vTT = [20, 21]
    vTD = 22
    vG0, vG1 = 23, 24
    XF = [28, 32, 36, 40]
    WF = [[44 + 8*k, 48 + 8*k] for k in range(4)]
    ACC = [76, 92, 108, 124]
    PK = 44
    BIAS, BONE, GX, GW = 140, 146, 150, 154
    NV = 168
    HKR = [152, 156, 160, 164]
    I(f"v_and_b32 v{vL}, 63, v0")
    I(f"v_lshrrev_b32 v{t0}, 6, v0")
    I(f"s_and_b32 s{sT0}, s2, 1")
    I(f"v_readfirstlane_b32 s{sW}, v{t0}")
    I(f"s_lshl_b32 s{sT0}, s{sT0}, 3")
    I(f"s_bfe_u32 s{sT1}, s2, 0x30003")
    I(f"s_add_u32 s{sRB}, s{sT0}, s{sT1}")
    I(f"s_and_b32 s{sC}, s2, 6")
    I(f"s_bfe_u32 s{sT0}, s2, 0x10006")
    I(f"s_add_u32 s{sC}, s{sC}, s{sT0}")
    if LFIRST:
        I(f"s_add_u32 s{sW}, s{sW}, 8")
        I(f"s_sub_u32 s{sT0}, s{sW}, 12")
        I(f"s_cmp_ge_u32 s{sW}, 12")
        I(f"s_cselect_b32 s{sW}, s{sT0}, s{sW}")
        I(f"v_subrev_u32 v0, 256, v0")
    I(f"s_lshr_b32 s{sHF}, s{sW}, 2")
    I(f"s_and_b32 s{sT0}, s{sW}, 3")
    I(f"s_lshl_b32 s{sRT}, s{sRB}, 2")
    I(f"s_add_u32 s{sRT}, s{sRT}, s{sT0}")
    I(f"v_lshrrev_b32 v{t0}, 3, v{vL}")
    I(f"v_and_b32 v{t1}, 7, v{vL}")
    I(f"v_lshrrev_b32 v{t2}, 1, v{t0}")
    I(f"v_xor_b32 v{t3}, v{t1}, v{t2}")
    I(f"v_lshlrev_b32 v{vXE}, 10, v{t0}")
    I(f"v_lshl_add_u32 v{vXE}, v{t3}, 4, v{vXE}")
    I(f"v_xor_b32 v{vXO}, 64, v{vXE}")
    I(f"v_and_b32 v{t2}, 1, v{t2}")
    I(f"v_lshlrev_b32 v{t2}, 2, v{t2}")
    I(f"v_xor_b32 v{t3}, v{t1}, v{t2}")
    I(f"v_lshlrev_b32 v{t3}, 4, v{t3}")
    I(f"v_mul_u32_u24 v{vWQ}, 3072, v{t0}")
    I(f"v_add_u32 v{vWQ}, v{vWQ}, v{t3}")
    I(f"v_mul_u32_u24 v{vWF}, 3584, v{t0}")
    I(f"v_add_u32 v{vWF}, v{vWF}, v{t3}")
    I(f"v_lshl_add_u32 v{vTD}, v{t0}, 10, v{t3}")
    I(f"v_lshlrev_b32 v{vST}, 4, v{vL}")
    I(f"s_and_b32 s{sT0}, s2, 7")
    I(f"s_lshl_b32 s{sT0}, s{sT0}, 2")
    I(f"s_bfe_u32 s{sT1}, s2, 0x20003")
    I(f"s_add_u32 s{sH}, s{sT0}, s{sT1}")
    I(f"s_lshr_b32 s{sQB}, s2, 5")
    I(f"s_cmp_ge_u32 s2, 128")
    I("s_cbranch_scc1 P1_B")

    def path(ty):
        isA = ty == "A"
        a.vm = []; a.lg = []
        if isA:
            sw = [["Q", "K"], ["F", "S"]]
            I(f"s_lshl_b32 s{sCOL[0][0]}, s{sC}, 7")
            I(f"s_add_u32 s{sCOL[0][1]}, s{sCOL[0][0]}, 1024")
            I(f"s_add_u32 s{sCOL[1][0]}, s{sCOL[0][0]}, {16*128}")
            I(f"s_lshl_b32 s{sCOL[1][1]}, s{sC}, 6")
            I(f"s_add_u32 s{sCOL[1][1]}, s{sCOL[1][1]}, {24*128}")
            I(f"v_lshrrev_b32 v{t0}, 2, v{vL}")
            I(f"v_mul_u32_u24 v{vWS}, 3584, v{t0}")
            I(f"v_and_b32 v{t0}, 3, v{vL}")
            I(f"v_lshl_add_u32 v{vWS}, v{t0}, 4, v{vWS}")
        else:
            sw = [["V"], ["F", "F"]]
            I(f"s_lshl_b32 s{sCOL[0][0]}, s{sC}, 7")
            I(f"s_add_u32 s{sCOL[0][0]}, s{sCOL[0][0]}, 2048")
            I(f"s_lshl_b32 s{sCOL[1][0]}, s{sC}, 8")
            I(f"s_add_u32 s{sCOL[1][1]}, s{sCOL[1][0]}, 128")
        I(f"s_cmp_ge_u32 s{sW}, 8")
        I(f"s_cbranch_scc0 P1{ty}_COMP")
        sJ, sCH, sSTG, sXB = 63, 57, 58, 53
        sPB = [[49, 50], [51, 52]]
        sKXl, sKWl, sSXl, sSPl, sSSl = 97, 98, 54, 55, 56
        I(f"s_sub_u32 s{sJ}, s{sW}, 8")
        I(f"s_and_b32 s{sCH}, s2, {ROTX}")
        if ROTR:
            I(f"s_bfe_u32 s{sT0}, s2, 0x30003")
            I(f"s_and_b32 s{sT0}, s{sT0}, {ROTR}")
            I(f"s_add_u32 s{sCH}, s{sCH}, s{sT0}")
            I(f"s_and_b32 s{sCH}, s{sCH}, 7")
        I(f"s_mov_b32 s{sSTG}, {SB0}")
        I(f"s_lshl_b32 s{sXB}, s{sRB}, 2")
        I(f"s_add_u32 s{sXB}, s{sXB}, s{sJ}")
        I(f"s_lshl_b32 s{sXB}, s{sXB}, 15")
        I(f"s_mul_i32 s{sT1}, s{sJ}, {16*3072}")
        I(f"s_mul_i32 s{sT2}, s{sJ}, {16*3584}")
        for k in range(2):
            for p in range(len(sw[k])):
                I(f"s_add_u32 s{sPB[k][p]}, s{sCOL[k][p]}, s{sT2 if k else sT1}")
        I(f"s_mov_b32 s{sIT}, 0")
        I("s_waitcnt lgkmcnt(0)")
        stamp(a, 0)
        def dma(ms, mc, k, pb, oc, vo, S_):
            I(f"s_add_u32 m0, s{ms}, {mc}")
            if pb is None:
                I(f"s_add_u32 s7, s{k}, {oc}")
            else:
                I(f"s_add_u32 s7, s{k}, s{pb}")
                if oc: I(f"s_add_u32 s7, s7, {oc}")
            I(f"buffer_load_dwordx4 v{vo}, s[{S_}:{S_+3}], s7 offen lds")
        nds = [(0 if (k == 1 and EXP & 4) else 4) + sum(1 if kd == "S" else 2 for kd in sw[k]) for k in range(2)]
        for k in range(2):
            ld = 3584 if k else 3072
            a.label(f"P1{ty}_LD{k}")
            I(f"s_lshl_b32 s{sKXl}, s{sCH}, 7")
            I(f"s_add_u32 s{sKXl}, s{sKXl}, s{sXB}")
            I(f"s_mul_i32 s{sKWl}, s{sCH}, {64*ld}")
            I(f"s_lshl_b32 s{sT0}, s{sJ}, 10")
            I(f"s_add_u32 s{sSSl}, s{sSTG}, s{sT0}")
            I(f"s_add_u32 s{sSPl}, s{sSSl}, s{sT0}")
            I(f"s_lshl_b32 s{sT0}, s{sT0}, 1")
            I(f"s_add_u32 s{sSXl}, s{sSPl}, s{sT0}")
            if not (k == 1 and EXP & 4):
                for i in range(4): dma(sSXl, 1024*i, sKXl, None, 8192*i, vXO if i % 2 else vXE, SX)
            for p, kd in enumerate(sw[k]):
                if kd == "S":
                    dma(sSSl, 16384 + 8192*p, sKWl, sPB[k][p], 0, vWS, SW1)
                else:
                    for i in range(2):
                        dma(sSPl, 16384 + 8192*p + 1024*i, sKWl, sPB[k][p], 8*i*ld, vWF if k else vWQ, SW1 if k else SWQ)
            I(f"s_add_u32 s{sCH}, s{sCH}, 1")
            I(f"s_and_b32 s{sCH}, s{sCH}, 7")
            I(f"s_add_u32 s{sSTG}, s{sSTG}, {STG}")
            I(f"s_cmp_eq_u32 s{sSTG}, {NST*STG}")
            I(f"s_cselect_b32 s{sSTG}, 0, s{sSTG}")
            I(f"s_add_u32 s{sIT}, s{sIT}, 1")
            if k == 0:
                I(f"s_cmp_lt_u32 s{sIT}, {DEP}")
                I(f"s_cbranch_scc1 P1{ty}_LD0")
            I(f"s_waitcnt vmcnt({(DEP-1)*(nds[0] if k == 0 else min(nds))})")
            I("s_barrier")
            I(f"s_cmp_lt_u32 s{sIT}, {8*(k+1)}")
            I(f"s_cbranch_scc1 P1{ty}_LD{k}")
        for r in range(DEP - 2, 0, -1):
            I(f"s_waitcnt vmcnt({r*nds[1]})")
            I("s_barrier")
        I(f"s_mov_b32 s{sIT}, {1 if isA else 0}")
        I("s_branch P2_SHADOW")
        a.label(f"P1{ty}_COMP")
        I("s_waitcnt lgkmcnt(0)")
        stamp(a, 0)
        code_prefetch(a, "MK_END", 8, 1, "p1" + ty, vt=25)
        srd(a, SB1, 1792*2); srd(a, SG, 512*2)
        I(f"s_lshl_b32 s{sT0}, s{sQB}, 3")
        I(f"s_add_u32 s{sT0}, s{sT0}, s{sW}")
        I(f"s_lshl_b32 s{sT0}, s{sT0}, 5")
        I(f"s_add_u32 s{sT0}, s{sT0}, s{sH}")
        I(f"s_lshl_b32 s{sT0}, s{sT0}, 10")
        I(f"s_add_u32 s97, s{sT0}, {OF_OFF}")
        if isA:
            I(f"s_or_b32 s{sT0}, s2, s{sW}")
            I(f"s_cmp_lg_u32 s{sT0}, 0")
            I("s_cbranch_scc1 P1_NONONCE")
            I("s_memrealtime s[50:51]")
            I(f"v_mov_b32 v{t0}, 0")
            I("s_waitcnt lgkmcnt(0)")
            I("s_or_b32 s50, s50, 1")
            I(f"v_mov_b32 v{PK+8}, s50")
            I(f"v_mov_b32 v{PK+9}, s51")
            I("s_mov_b64 exec, 1")
            I(f"global_store_dwordx2 v{t0}, v[{PK+8}:{PK+9}], s[100:101] sc0 sc1")
            I("s_mov_b64 exec, -1")
            a.label("P1_NONONCE")
        if TLBW:
            I(f"s_cmp_lg_u32 s{sW}, 2")
            I(f"s_cbranch_scc1 P1{ty}_NOTLB")
            I(f"v_mul_u32_u24 v{t0}, {TLBW * 1024}, v{vL}")
            for r_ in range(max(1, (23 << 10) // (64 * TLBW) + 1)):
                I(f"s_mov_b32 s{sT0}, {r_ * 64 * TLBW * 1024}")
                I(f"buffer_load_dword v27, v{t0}, s[{SWS}:{SWS+3}], s{sT0} offen sc0 sc1")
            a.label(f"P1{ty}_NOTLB")
        for r in range(6): I(f"v_mov_b32 v{BIAS+r}, 0")
        I(f"s_lshl_b32 s{sT1}, s2, 3")
        I(f"s_add_u32 s{sT1}, s{sT1}, s{sW}")
        I(f"s_lshl_b32 s{sT1}, s{sT1}, 10")
        I(f"buffer_load_dwordx4 v[{GX}:{GX+3}], v{vST}, s[{SX}:{SX+3}], s{sT1} offen")
        I(f"buffer_load_dwordx4 v[{GW}:{GW+3}], v{vST}, s[{SG}:{SG+3}], 0 offen")
        I(f"v_and_b32 v{t0}, 31, v{vL}")
        I(f"v_lshlrev_b32 v{t0}, 1, v{t0}")
        I(f"s_lshl_b32 s{sT1}, s{sHF}, 6")
        for p, kd in enumerate(sw[1]):
            if kd == "F":
                I(f"s_add_u32 s7, s{sCOL[1][p]}, s{sT1}")
                I(f"buffer_load_ushort v{BIAS+2*p}, v{t0}, s[{SB1}:{SB1+3}], s7 offen")
            else:
                I(f"buffer_load_ushort v{BIAS+2*p}, v{t0}, s[{SB1}:{SB1+3}], s{sCOL[1][p]} offen")
        I(f"v_and_b32 v{t0}, 31, v{vL}")
        I(f"v_lshrrev_b32 v{t1}, 5, v{vL}")
        I(f"v_bfe_u32 v{t2}, v{t0}, 1, 3")
        I(f"v_xor_b32 v{t2}, v{t2}, v{t1}")
        I(f"v_lshlrev_b32 v{t3}, 7, v{t0}")
        I(f"s_and_b32 s{sT0}, s{sW}, 3")
        I(f"s_lshl_b32 s{sT0}, s{sT0}, 12")
        I(f"s_add_u32 s{sT0}, s{sT0}, {SB0}")
        I(f"v_add_u32 v{t3}, s{sT0}, v{t3}")
        I(f"v_lshl_add_u32 v{t3}, v{t2}, 4, v{t3}")
        I(f"v_mov_b32 v{vXR[0]}, v{t3}")
        for sp in range(1, 4): I(f"v_xor_b32 v{vXR[sp]}, {32*sp}, v{vXR[0]}")
        I(f"v_bfe_u32 v{t0}, v{vL}, 2, 2")
        I(f"v_and_b32 v{t2}, 3, v{vL}")
        I(f"v_bfe_u32 v{t3}, v{vL}, 4, 1")
        p0 = vTP[0]
        I(f"v_lshlrev_b32 v{p0}, 10, v{t1}")
        I(f"v_lshl_add_u32 v{p0}, v{t0}, 7, v{p0}")
        I(f"v_lshl_add_u32 v{p0}, v{t3}, 5, v{p0}")
        I(f"v_lshl_add_u32 v{p0}, v{t2}, 3, v{p0}")
        I(f"v_lshrrev_b32 v25, 1, v{t0}")
        I(f"v_lshl_add_u32 v{p0}, v25, 6, v{p0}")
        I(f"v_xor_b32 v{p0}, s{sT1}, v{p0}")
        I(f"v_add_u32 v{p0}, {SB0 + 16384}, v{p0}")
        if isA:
            I(f"v_lshlrev_b32 v{vTS}, 9, v{t1}")
            I(f"v_lshl_add_u32 v{vTS}, v{t0}, 6, v{vTS}")
            I(f"v_lshl_add_u32 v{vTS}, v{t3}, 5, v{vTS}")
            I(f"v_lshl_add_u32 v{vTS}, v{t2}, 3, v{vTS}")
            I(f"v_add_u32 v{vTS}, {SB0 + 24576}, v{vTS}")
            I(f"v_and_b32 v{vSV}, 0x33, v{vL}")
            I(f"v_bfe_u32 v26, v{vL}, 2, 1")
            I(f"v_lshl_or_b32 v{vSV}, v26, 3, v{vSV}")
            I(f"v_bfe_u32 v26, v{vL}, 3, 1")
            I(f"v_lshl_or_b32 v{vSV}, v26, 2, v{vSV}")
            I(f"v_lshlrev_b32 v{vSV}, 4, v{vSV}")
        else:
            I(f"v_and_b32 v26, 15, v{vL}")
            I(f"v_lshlrev_b32 v{vSV}, 4, v26")
            I(f"v_lshl_add_u32 v{vSV}, v{t1}, 8, v{vSV}")
            I(f"v_lshl_add_u32 v{vSV}, v{t3}, 17, v{vSV}")
            I(f"v_add_u32 v{vSV}, 1024, v{vSV}")
        I(f"s_lshl_b32 s98, s{sW}, 11")
        I(f"v_cmp_gt_u32 vcc, 32, v{vL}")
        I(f"v_mov_b32 v{BONE+1}, 0")
        I(f"v_mov_b32 v{BONE+2}, 0")
        I(f"v_mov_b32 v{BONE+3}, 0")
        I(f"v_mov_b32 v{t0}, 0x3f80")
        I(f"v_cndmask_b32 v{BONE}, 0, v{t0}, vcc")
        I(f"s_mov_b32 s{sL2E}, {fhex(LOG2E)}")
        I(f"s_mov_b32 s{sL2E+1}, {fhex(LOG2E)}")
        I(f"s_mov_b32 s{sTWO}, 2.0")
        I(f"s_mov_b32 s{sTWO+1}, 2.0")
        I(f"s_mov_b32 s{sQS}, {fhex(QSCALE)}")
        I(f"s_mov_b32 s{s30}, {fhex(30.0)}")
        for k in range(64): I(f"v_mov_b32 v{ACC[0]+k}, 0")
        for r in list(range(XF[2], XF[2]+8)) + list(range(WF[2][0], WF[2][0]+16)): I(f"v_mov_b32 v{r}, 0")
        I(f"s_mov_b32 s{sRS}, 3")

        def sweep(k, kinds, sfx=""):
            def reads(s):
                R = [(f"ds_read_b128 v[{XF[s]}:{XF[s]+3}], v{vXR[s]}", 0)]
                for p, kd in enumerate(kinds):
                    b = WF[s][p]
                    if kd == "S":
                        R.append((f"ds_read_b64_tr_b16 v[{b}:{b+1}], v{vTS} offset:{1024*s}", p))
                        R.append((f"ds_read_b64_tr_b16 v[{b+2}:{b+3}], v{vTS} offset:{1024*s + 256}", p))
                    else:
                        off = 8192*p + 2048*s
                        R.append((f"ds_read_b64_tr_b16 v[{b}:{b+1}], v{vTP[0]} offset:{off}", p))
                        R.append((f"ds_read_b64_tr_b16 v[{b+2}:{b+3}], v{vTP[0]} offset:{off+512}", p))
                return R
            def mfs(s):
                M = []
                for p, kd in enumerate(kinds):
                    acc, xf, wf = ACC[2*k + p], XF[s], WF[s][p]
                    if kd == "V": M.append((p, f"{MF} v[{acc}:{acc+15}], v[{xf}:{xf+3}], v[{wf}:{wf+3}], v[{acc}:{acc+15}]"))
                    else: M.append((p, f"{MF} v[{acc}:{acc+15}], v[{wf}:{wf+3}], v[{xf}:{xf+3}], v[{acc}:{acc+15}]"))
                return M
            L = f"P1{ty}_S{k}{sfx}"
            I(f"s_mov_b32 s{sIT}, 0")
            a.label(f"{L}_LOOP")
            if k == 1:
                I(f"s_cmp_lg_u32 s{sIT}, {F1IT}")
                I(f"s_cbranch_scc1 {L}_NW")
                I("s_waitcnt vmcnt(0)")
                a.label(f"{L}_NW")
            I("s_barrier")
            if DBG and k == 1 and DBG2:
                I("s_memtime s[90:91]")
                I("s_waitcnt lgkmcnt(0)")
                for n_, it_ in enumerate((0, 1, 2, 3, 4, 5, 6)):
                    I(f"s_cmp_eq_u32 s{sIT}, {it_}"); I(f"s_cselect_b32 s{65+n_}, s90, s{65+n_}")
            if DBG and k == 0 and not DBG2:
                I(f"s_cmp_lg_u32 s{sIT}, 0")
                I(f"s_cbranch_scc1 {L}_NS")
                stamp(a, 1)
                a.label(f"{L}_NS")
            a.lg = []
            def rd(s):
                for t_, tag in reads(s): a.lds(t_, (s, tag))
            def mm(s, w):
                for p, m in mfs(s):
                    if w: a.wait(lg=(s, p))
                    I(m)
            a.lg = [(2, tag) for _, tag in reads(2)] + [(3, tag) for _, tag in reads(3)]
            def step(sm, sr):
                M = mfs(sm); R = reads(sr)
                for n, (p, m) in enumerate(M):
                    a.wait(lg=(sm, p))
                    I(m)
                    take = [r for r in R if r[1] <= n] if n + 1 < len(M) else R
                    for t_, tag in take: a.lds(t_, (sr + 4, tag))
                    R = [r for r in R if r not in take]
            def retag():
                a.lg = [((x[0] - 4) if x[0] >= 4 else x[0], x[1]) for x in a.lg]
            step(2, 0); step(3, 1); retag()
            if not sfx:
                for it_, lab in (((PFIT, "PF"), (GIT, "G")) if k == 0 else ((F1IT, "F1"),)):
                    I(f"s_cmp_eq_u32 s{sIT}, {it_}")
                    I(f"s_cbranch_scc1 P1{ty}_{lab}")
                a.label(f"P1{ty}_BACK{k}")
            step(0, 2); step(1, 3); retag()
            I(f"s_add_u32 s{sRS}, s{sRS}, 1")
            I(f"s_mov_b32 s{sT0}, {STG}")
            I(f"s_cmp_eq_u32 s{sRS}, {NST}")
            I(f"s_cselect_b32 s{sT0}, {(-(NST-1)*STG) & 0xffffffff}, s{sT0}")
            I(f"s_cselect_b32 s{sRS}, 0, s{sRS}")
            for r in vXR + vTP + ([vTS] if isA else []): I(f"v_add_u32 v{r}, s{sT0}, v{r}")
            I(f"s_add_u32 s{sIT}, s{sIT}, 1")
            I(f"s_cmp_lt_u32 s{sIT}, 8")
            I(f"s_cbranch_scc1 {L}_LOOP")
            mm(2, True); mm(3, True)

        sweep(0, sw[0])
        stamp(a, 2)
        for r in range(8): I(f"v_mov_b32 v{XF[2]+r}, 0")
        I(f"s_lshl_b32 s7, s{sC}, 1")
        I(f"s_add_u32 s50, s7, s{sHF}")
        I(f"s_lshl_b32 s51, s50, 17")
        I(f"s_lshl_b32 s{sT0}, s{sRT}, 10")
        I(f"s_add_u32 s51, s51, s{sT0}")
        I(f"s_lshl_b32 s52, s51, 1")
        I(f"s_add_u32 s52, s52, {KV_OFF}")
        I(f"s_add_u32 s53, s51, 65536")
        I(f"s_add_u32 s54, s52, 131072")
        I(f"v_mov_b32 v{t0}, 0")
        I(f"global_load_dwordx2 v[{GX}:{GX+1}], v{t0}, s[100:101] sc0 sc1")
        if isA:
            acc = ACC[1]
            for e in range(8): I(f"v_cvt_pk_bf16_f32 v{PK+e}, v{acc+2*e}, v{acc+2*e+1}")
            I(f"buffer_store_dwordx4 v[{PK}:{PK+3}], v{vSV}, s[{SWS}:{SWS+3}], s52 offen{WTF}")
            I(f"buffer_store_dwordx4 v[{PK+4}:{PK+7}], v{vSV}, s[{SWS}:{SWS+3}], s54 offen{WTF}")
            acc = ACC[0]
            for e in range(16): I(f"v_mul_f32 v{acc+e}, s{sQS}, v{acc+e}")
            for e in range(8): I(f"v_cvt_pk_bf16_f32 v{PK+8+e}, v{acc+2*e}, v{acc+2*e+1}")
            I(f"buffer_store_dwordx4 v[{PK+8}:{PK+11}], v{vST}, s[{SWS}:{SWS+3}], s51 offen{WTF}")
            I(f"buffer_store_dwordx4 v[{PK+12}:{PK+15}], v{vST}, s[{SWS}:{SWS+3}], s53 offen{WTF}")
        else:
            acc = ACC[0]
            for e in range(8): I(f"v_cvt_pk_bf16_f32 v{PK+8+e}, v{acc+2*e}, v{acc+2*e+1}")
            I(f"buffer_store_dwordx4 v[{PK+8}:{PK+11}], v{vSV}, s[{SWS}:{SWS+3}], s52 offen{WTF}")
            I(f"buffer_store_dwordx4 v[{PK+12}:{PK+15}], v{vSV}, s[{SWS}:{SWS+3}], s52 offen offset:512{WTF}")
        if isA:
            I(f"s_cmp_eq_u32 s{sHF}, 0")
            I(f"s_cbranch_scc1 P1A_H0")
            sweep(1, sw[1][:1], "h")
            I(f"s_branch P1{ty}_EPI")
            a.label("P1A_H0")
        sweep(1, sw[1])
        I(f"s_branch P1{ty}_EPI")
        a.label(f"P1{ty}_F1")
        I(f"s_cmp_lg_u32 s{sW}, 0")
        I(f"s_cbranch_scc1 P1{ty}_F1C")
        I(f"s_mov_b32 s51, 0x40000")
        a.label(f"P1{ty}_F1A")
        I(f"v_readfirstlane_b32 s50, v{GX}")
        I(f"v_mov_b32 v{t0}, 0")
        I(f"s_lshl_b32 s{sT2}, s2, 6")
        I(f"s_add_u32 s{sT2}, s{sT2}, {FL_OFF}")
        I("s_nop 1")
        I(f"s_cmp_lg_u32 s50, 0")
        I(f"s_cbranch_scc1 P1{ty}_F1B")
        I(f"s_cmp_eq_u32 s51, 0")
        I(f"s_cbranch_scc1 P1{ty}_F1B")
        I(f"s_sub_u32 s51, s51, 1")
        I(f"global_load_dwordx2 v[{GX}:{GX+1}], v{t0}, s[100:101] sc0 sc1")
        I("s_waitcnt vmcnt(0)")
        I(f"s_branch P1{ty}_F1A")
        a.label(f"P1{ty}_F1B")
        I("s_mov_b64 exec, 1")
        I(f"buffer_store_dwordx2 v[{GX}:{GX+1}], v{t0}, s[{SWS}:{SWS+3}], s{sT2} offen sc0 sc1")
        I("s_mov_b64 exec, -1")
        a.label(f"P1{ty}_F1C")
        I(f"s_branch P1{ty}_BACK1")
        a.label(f"P1{ty}_G")
        I("s_waitcnt vmcnt(0)")
        I(f"v_mov_b32 v{vG0}, 0")
        I(f"v_mov_b32 v{vG1}, 0")
        for k in range(4): I(f"v_dot2_f32_bf16 v{vG0+k%2}, v{GX+k}, v{GW+k}, v{vG0+k%2}")
        I("s_nop 2")
        I(f"v_add_f32 v{vG0}, v{vG0}, v{vG1}")
        for d in ("quad_perm:[1,0,3,2]", "quad_perm:[2,3,0,1]", "row_half_mirror", "row_mirror"):
            I("s_nop 1")
            I(f"v_add_f32_dpp v{vG0}, v{vG0}, v{vG0} {d} row_mask:0xf bank_mask:0xf")
        I("s_nop 0")
        for k in range(4): I(f"v_readlane_b32 s{50+k}, v{vG0}, {16*k}")
        I(f"s_lshl_b32 s{sT1}, s2, 3")
        I(f"s_add_u32 s{sT1}, s{sT1}, s{sW}")
        I(f"v_mov_b32 v{vG0}, s50")
        I(f"v_add_f32 v{vG0}, s51, v{vG0}")
        I(f"v_add_f32 v{vG0}, s52, v{vG0}")
        I(f"v_add_f32 v{vG0}, s53, v{vG0}")
        I(f"v_mul_f32 v{vG0}, s{sL2E}, v{vG0}")
        I(f"v_exp_f32 v{vG0}, -v{vG0}")
        I(f"s_lshl_b32 s{sT1}, s{sT1}, 2")
        I(f"v_add_f32 v{vG0}, 1.0, v{vG0}")
        I(f"v_rcp_f32 v{vG0}, v{vG0}")
        I(f"s_add_u32 s{sT1}, s{sT1}, {G_OFF}")
        I(f"v_mov_b32 v{vG1}, 0")
        I(f"s_mov_b64 exec, 1")
        I(f"buffer_store_dword v{vG0}, v{vG1}, s[{SWS}:{SWS+3}], s{sT1} offen{WTF}")
        I(f"s_mov_b64 exec, -1")
        I(f"s_branch P1{ty}_BACK0")
        a.label(f"P1{ty}_PF")
        I(f"s_cmp_ge_u32 s{sW}, 2")
        I(f"s_cbranch_scc1 P1{ty}_BACK0")
        I(f"s_cmp_eq_u32 s{sW}, 0")
        I(f"s_cselect_b32 s{sT1}, s{sCOL[1][0]}, s{sCOL[1][1]}")
        I(f"s_bfe_u32 s{sT2}, s2, 0x30003")
        I(f"s_mul_i32 s{sT2}, s{sT2}, {64*3584}")
        I(f"s_add_u32 s{sT1}, s{sT1}, s{sT2}")
        I(f"v_mul_u32_u24 v{t0}, 3584, v{vL}")
        I(f"buffer_load_dword v27, v{t0}, s[{SW1}:{SW1+3}], s{sT1} offen")
        I(f"s_branch P1{ty}_BACK0")
        a.label(f"P1{ty}_EPI")
        stamp(a, 3)
        for p in range(2):
            acc = ACC[2 + p]
            if p == 1:
                I(f"s_mul_i32 s{sT2}, s{sRT}, {144*1024}")
                I(f"s_add_u32 s{sT2}, s{sT2}, {AF_OFF + 32*1024}")
                I(f"s_lshl_b32 s{sT1}, s{sHF}, 11")
                I(f"s_add_u32 s{sT1}, s{sT1}, s{sT2}")
            I(f"{MF} v[{acc}:{acc+15}], v[{BIAS+2*p}:{BIAS+2*p+3}], v[{BONE}:{BONE+3}], v[{acc}:{acc+15}]")
        jobs = [(0, 0), (0, 1), (1, 0), (1, 1)]
        for n, (p, hh) in enumerate(jobs):
            I(f"s_lshl_b32 s7, s{sCOL[1][p]}, 5")
            I(f"s_add_u32 s7, s7, s{sT2 if (isA and p == 1) else sT1}")
            I(f"s_add_u32 s{76+n}, s7, {1024*hh}")
        I(f"s_mov_b32 s56, {'s%d' % sHF if isA else 0}")
        tb = [ACC[0], ACC[0] + 8, 44]
        def mish8(acc, pk):
            vp = lambda r: f"v[{r}:{r+1}]"
            prs = range(4)
            T = lambda e, kk: tb[kk] + 2*e
            for e in prs: I(f"v_pk_mul_f32 {vp(T(e,0))}, {vp(acc+2*e)}, s[{sL2E}:{sL2E+1}]")
            for e in range(8): I(f"v_min_f32 v{tb[0]+e}, s{s30}, v{tb[0]+e}")
            for e in range(8): I(f"v_exp_f32 v{tb[0]+e}, v{tb[0]+e}")
            for e in prs: I(f"v_pk_add_f32 {vp(T(e,1))}, {vp(T(e,0))}, s[{sTWO}:{sTWO+1}]")
            for e in prs: I(f"v_pk_mul_f32 {vp(T(e,1))}, {vp(T(e,0))}, {vp(T(e,1))}")
            for e in prs: I(f"v_pk_add_f32 {vp(T(e,2))}, {vp(T(e,1))}, s[{sTWO}:{sTWO+1}]")
            for e in range(8): I(f"v_rcp_f32 v{tb[2]+e}, v{tb[2]+e}")
            for e in prs: I(f"v_pk_mul_f32 {vp(T(e,1))}, {vp(T(e,1))}, {vp(T(e,2))}")
            for e in prs: I(f"v_pk_mul_f32 {vp(T(e,0))}, {vp(acc+2*e)}, {vp(T(e,1))}")
            for e in range(4): I(f"v_cvt_pk_bf16_f32 v{pk+e}, v{tb[0]+2*e}, v{tb[0]+2*e+1}")
        for n, (p, hh) in enumerate(jobs):
            if isA and n == 2:
                I(f"s_cmp_eq_u32 s{sHF}, 1")
                I(f"s_cbranch_scc1 P1A_EDONE")
            mish8(ACC[2 + p] + 8*hh, HKR[n])
        if isA: a.label("P1A_EDONE")
        stamp(a, 4)
        I("s_branch P2_ATT")

    path("A")
    a.label("P1_B")
    path("B")

    a.label("P2_ATT")
    sCNT, sNMAX, sFIRST, sVM = 50, 51, 52, 54
    vT, vLO, vKA, vVA, vG, vM, vT2 = 2, 11, 4, 5, 6, 7, 8
    Q, NEGM, S, O, P, KF, VF = 12, 16, [32, 48], 64, 80, [88, 92], [96, 104]
    IX = 9
    SM = "v_smfmac_f32_32x32x32_bf16"
    SA = opt("--sa", 3); SBK = opt("--sbk", 11)
    I(f"s_mov_b32 s{sVM}, 0xffff")
    I(f"s_mov_b32 s{sVM+1}, 0xffff")
    I(f"v_and_b32 v{vT}, 27, v{vL}")
    I(f"v_cmp_eq_u32 vcc, 16, v{vT}")
    I(f"v_mov_b32 v{vT}, 0x3f803f80")
    I(f"s_lshl_b32 s{sT0}, s{sW}, 10")
    I(f"v_cndmask_b32 v{VF[0]}, 0, v{vT}, vcc")
    for r in range(1, 16): I(f"v_mov_b32 v{VF[0]+r}, v{VF[0]}")
    I(f"s_add_u32 s{sT0}, s{sT0}, {QL}")
    I(f"v_add_u32 v{vT}, s{sT0}, v{vLO}")
    I(f"v_and_b32 v{vT2}, 31, v{vL}")
    I(f"v_lshlrev_b32 v{vT2}, 2, v{vT2}")
    I(f"s_lshl_b32 s{sT0}, s{sW}, 7")
    I(f"s_add_u32 s{sT0}, s{sT0}, {GL}")
    I(f"v_add_u32 v{vT2}, s{sT0}, v{vT2}")
    for r in range(4): I(f"v_mov_b32 v{148+r}, -1")
    I(f"s_mov_b32 s{sNMAX}, 1")
    I(f"s_mov_b32 s53, 8")
    I(f"s_mov_b32 s{sFIRST}, {Y2IT}")
    if ATPRIO: I("s_setprio 2")
    I("s_barrier")
    stamp(a, 5)
    I(f"ds_read_b128 v[{Q}:{Q+3}], v{vT}")
    I(f"ds_read_b32 v{vG}, v{vT2}")
    def hstores():
        for n in range(4):
            if n == 2:
                I(f"s_cmp_eq_u32 s56, 1")
                I(f"s_cbranch_scc1 P2_NOH3")
            I(f"buffer_store_dwordx4 v[{HKR[n]}:{HKR[n]+3}], v{vLO}, s[{SWS}:{SWS+3}], s{76+n} offen{WTF}")
        a.label("P2_NOH3")
        I(f"buffer_store_dwordx4 v[148:151], v{vLO}, s[{SWS}:{SWS+3}], s97 offen{WTF}")
    if not HLATE: hstores()
    a.label("P2_MAXPASS")
    I(f"v_mov_b32 v{vKA}, v{vLO}")
    I(f"v_mov_b32 v{vM}, 0xff800000")
    I(f"s_mov_b32 s{sCNT}, s{sNMAX}")
    a.label("P2_MAXLOOP")
    I(f"ds_read_b128 v[{KF[0]}:{KF[0]+3}], v{vKA}")
    I(f"v_add_u32 v{vKA}, 2048, v{vKA}")
    I("s_waitcnt lgkmcnt(0)")
    I(f"{MF} v[{S[0]}:{S[0]+15}], v[{KF[0]}:{KF[0]+3}], v[{Q}:{Q+3}], 0")
    I("s_nop 11")
    for r in range(8): I(f"v_max3_f32 v{vM}, v{S[0]+2*r}, v{S[0]+2*r+1}, v{vM}")
    I(f"s_sub_u32 s{sCNT}, s{sCNT}, 1")
    I(f"s_cmp_lg_u32 s{sCNT}, 0")
    I("s_cbranch_scc1 P2_MAXLOOP")
    I(f"v_mov_b32 v{vT}, v{vM}")
    I(f"v_mov_b32 v{vKA}, v{vLO}")
    I(f"v_and_b32 v{vT2}, 15, v{vL}")
    I(f"v_permlane32_swap_b32 v{vM}, v{vT}")
    I(f"v_lshlrev_b32 v{vVA}, 4, v{vT2}")
    I(f"v_lshrrev_b32 v{vT2}, 5, v{vL}")
    I(f"v_max_f32 v{vM}, v{vM}, v{vT}")
    I(f"v_lshl_add_u32 v{vVA}, v{vT2}, 8, v{vVA}")
    I(f"v_add_u32 v{vVA}, 1024, v{vVA}")
    def rdK(t, buf): I(f"ds_read_b128 v[{KF[buf]}:{KF[buf]+3}], v{vKA} offset:{2048*t}")
    def rdV(t, buf):
        I(f"s_mov_b64 exec, s[{sVM}:{sVM+1}]")
        I(f"ds_read_b128 v[{VF[buf]}:{VF[buf]+3}], v{vVA} offset:{2048*t}")
        I(f"ds_read_b128 v[{VF[buf]+4}:{VF[buf]+7}], v{vVA} offset:{2048*t+512}")
        I(f"s_mov_b64 exec, -1")
    rdK(0, 0); rdK(1, 1); rdV(0, 0)
    for r in range(16): I(f"v_sub_f32 v{NEGM+r}, 0, v{vM}")
    for r in range(8, 16): I(f"v_mov_b32 v{S[1]+r}, 0")
    I(f"v_mov_b32 v{IX}, 0xdddddddd")
    I("s_waitcnt lgkmcnt(3)")
    I(f"{MF} v[{S[0]}:{S[0]+15}], v[{KF[0]}:{KF[0]+3}], v[{Q}:{Q+3}], v[{NEGM}:{NEGM+15}]")
    for r in range(16): I(f"v_mov_b32 v{O+r}, 0")
    I(f"s_mov_b32 s{sCNT}, 8")
    a.label("P2_LOOP")
    for t in range(8):
        cur, nxt = t % 2, (t + 1) % 2
        sc, sn = S[cur], S[nxt]
        e = lambda k: I(f"v_exp_f32 v{sc+k}, v{sc+k}")
        e(0); e(1)
        I(f"{SM} v[{O}:{O+15}], v[{VF[nxt]+4}:{VF[nxt]+7}], v[{sn+8}:{sn+15}], v{IX}")
        rdV(t + 1, nxt)
        for k in range(2, 2 + SA): e(k)
        I("s_waitcnt lgkmcnt(2)")
        I(f"{MF} v[{sn}:{sn+15}], v[{KF[nxt]}:{KF[nxt]+3}], v[{Q}:{Q+3}], v[{NEGM}:{NEGM+15}]")
        rdK(t + 2, cur)
        for k in range(2 + SA, SBK): e(k)
        I(f"{SM} v[{O}:{O+15}], v[{VF[cur]}:{VF[cur]+3}], v[{sc}:{sc+7}], v{IX}")
        for k in range(SBK, 16): e(k)
    I(f"v_add_u32 v{vKA}, 0x4000, v{vKA}")
    I(f"v_add_u32 v{vVA}, 0x4000, v{vVA}")
    I(f"s_cmp_lg_u32 s53, s{sCNT}")
    I("s_cbranch_scc1 P2_NOBAR0")
    I(f"s_mov_b32 s53, 100")
    if HLATE: hstores()
    I("s_barrier")
    a.label("P2_NOBAR0")
    I(f"s_cmp_lg_u32 s{sFIRST}, s{sCNT}")
    I("s_cbranch_scc1 P2_NOBAR")
    I(f"s_mov_b32 s{sFIRST}, 100")
    I("s_waitcnt vmcnt(0)")
    I("s_barrier")
    stamp(a, 6)
    a.label("P2_NOBAR")
    if ATPRIO:
        I(f"s_cmp_lg_u32 s{sCNT}, 5")
        I("s_cbranch_scc1 P2_NP1")
        I("s_setprio 1")
        a.label("P2_NP1")
        I(f"s_cmp_lg_u32 s{sCNT}, 2")
        I("s_cbranch_scc1 P2_NP2")
        I("s_setprio 0")
        a.label("P2_NP2")
    I(f"s_sub_u32 s{sCNT}, s{sCNT}, 1")
    I(f"s_cmp_lg_u32 s{sCNT}, 0")
    I("s_cbranch_scc1 P2_LOOP")
    I(f"{SM} v[{O}:{O+15}], v[{VF[1]+4}:{VF[1]+7}], v[{S[1]+8}:{S[1]+15}], v{IX}")
    I("s_waitcnt lgkmcnt(0)")
    I("s_nop 11")
    stamp(a, 7)
    I(f"v_mov_b32 v{vT}, v{O+8}")
    I(f"v_rcp_f32 v{vT2}, v{O+8}")
    for r in range(8): I(f"v_fma_f32 v{vT}, v{O+r}, 0, v{vT}")
    I(f"v_cmp_gt_f32 vcc, {fhex(2.0**100)}, v{vT}")
    I(f"v_mul_f32 v{vT2}, v{vT2}, v{vG}")
    I("s_nop 3")
    I(f"s_cmp_eq_u64 vcc, -1")
    I("s_cbranch_scc1 P2_OK")
    I(f"s_cmp_eq_u32 s{sNMAX}, 64")
    I("s_cbranch_scc1 P2_OK")
    I(f"s_mov_b32 s{sNMAX}, 64")
    I("s_branch P2_MAXPASS")
    a.label("P2_OK")
    for r in range(8): I(f"v_mul_f32 v{O+r}, v{O+r}, v{vT2}")
    for r in range(4): I(f"v_cvt_pk_bf16_f32 v{P+r}, v{O+2*r}, v{O+2*r+1}")
    I(f"buffer_store_dwordx4 v[{P}:{P+3}], v{vLO}, s[{SWS}:{SWS+3}], s97 offen sc0 sc1")
    stamp(a, 8)
    stamp_flush(a, 9, SWS, sW, 0)
    I("s_endpgm")

    COMP[0] = False
    a.label("P2_SHADOW")
    sJ = 63
    sN = 8
    SO = 12
    sA0, sA1, sB0, sB1 = 80, 81, 82, 83
    sKV, sM0 = 20, 21
    sOC, sOR, sWA0, sWA1, sOB0, sOB1, sLS, sOB2, sOB3 = 22, 23, 24, 25, 26, 27, 84, 85, 86
    sTO = 87
    vLO = 3
    I(f"s_load_dwordx2 s[{SO}:{SO+1}], s[0:1], 64")
    I(f"s_setprio {SHPRIO2}")
    I(f"v_mov_b32 v{vLO}, v{vST}")
    I(f"v_mov_b32 v2, 0")
    I(f"s_mov_b32 s{sTO}, 0x40000")
    I(f"s_and_b32 s{sT0}, s2, 6")
    I(f"s_and_b32 s{sT1}, s2, 1")
    I(f"s_lshl_b32 s{sT1}, s{sT1}, 6")
    I(f"s_or_b32 s{sT0}, s{sT0}, s{sT1}")
    I(f"v_and_b32 v6, 1, v{vL}")
    I(f"v_bfe_u32 v7, v{vL}, 1, 3")
    I(f"v_lshl_or_b32 v6, v7, 3, v6")
    I(f"v_bfe_u32 v7, v{vL}, 4, 1")
    I(f"v_lshl_or_b32 v6, v7, 7, v6")
    I(f"v_or_b32 v6, s{sT0}, v6")
    I(f"s_lshl_b32 s{sT0}, s{sQB}, 5")
    I(f"v_and_b32 v7, 31, v{vL}")
    I(f"v_add_u32 v7, s{sT0}, v7")
    I(f"v_cmp_gt_u32 vcc, 32, v{vL}")
    I(f"s_lshl_b32 s{sKV}, s{sH}, 17")
    I(f"s_lshl_b32 s{sM0}, s{sJ}, 10")
    I(f"v_cndmask_b32 v6, v7, v6, vcc")
    I(f"v_lshlrev_b32 v6, 6, v6")
    I(f"s_add_u32 s{sKV}, s{sKV}, s{sM0}")
    I(f"s_add_u32 s{sKV}, s{sKV}, {KV_OFF}")
    I(f"s_lshl_b32 s{sT2}, s2, 6")
    I(f"s_add_u32 s{sT2}, s{sT2}, {FL_OFF}")
    I(f"s_mov_b32 s{sLS}, {FL_OFF}")
    I(f"global_load_dwordx2 v[4:5], v2, s[100:101] sc0 sc1")
    I(f"buffer_load_dwordx2 v[8:9], v6, s[{SWS}:{SWS+3}], s{sLS} offen sc0 sc1")
    I("s_waitcnt vmcnt(0) lgkmcnt(0)")
    I("s_barrier")
    stamp(a, 2)
    srd(a, SO, 2048*512*2)
    a.label("P2_F1CHK")
    I(f"v_readfirstlane_b32 s{sN}, v4")
    I(f"v_readfirstlane_b32 s{sN+1}, v5")
    I("s_nop 1")
    I(f"v_cmp_eq_u64 vcc, s[{sN}:{sN+1}], v[8:9]")
    I(f"s_cmp_eq_u32 s{sN}, 0")
    I("s_cbranch_scc1 P2_F1RE")
    I("s_nop 3")
    I(f"s_cmp_eq_u64 vcc, -1")
    I("s_cbranch_scc1 P2_F1GOT")
    a.label("P2_F1RE")
    I(f"s_cmp_eq_u32 s{sTO}, 0")
    I(f"s_cbranch_scc1 P2_F1GOT")
    I(f"s_sub_u32 s{sTO}, s{sTO}, 1")
    I(f"s_sleep {POLLS}")
    I(f"global_load_dwordx2 v[4:5], v2, s[100:101] sc0 sc1")
    I(f"buffer_load_dwordx2 v[8:9], v6, s[{SWS}:{SWS+3}], s{sLS} offen sc0 sc1")
    I("s_waitcnt vmcnt(0)")
    I("s_branch P2_F1CHK")
    a.label("P2_F1GOT")
    stamp(a, 3)
    def kvdma():
        I(f"s_mov_b32 m0, s{sM0}")
        I(f"s_add_u32 s{sM0}, s{sM0}, 4096")
        I(f"buffer_load_dwordx4 v{vLO}, s[{SWS}:{SWS+3}], s{sKV} offen lds")
        I(f"s_add_u32 s{sKV}, s{sKV}, 4096")
    I(f"s_lshl_b32 s{sT0}, s{sH}, 6")
    I(f"s_lshl_b32 s{sT1}, s{sQB}, 3")
    I(f"s_add_u32 s{sT0}, s{sT0}, s{sT1}")
    I(f"s_lshl_b32 s{sT1}, s{sJ}, 1")
    I(f"s_add_u32 s{sT0}, s{sT0}, s{sT1}")
    I(f"s_lshl_b32 s{sT0}, s{sT0}, 10")
    I(f"s_lshl_b32 s{sT1}, s{sJ}, 11")
    I(f"s_add_u32 m0, s{sT1}, {QL}")
    I(f"s_lshl_b32 s{sT1}, s{sQB}, 10")
    I(f"buffer_load_dwordx4 v{vLO}, s[{SWS}:{SWS+3}], s{sT0} offen lds")
    I(f"buffer_load_dwordx4 v{vLO}, s[{SWS}:{SWS+3}], s{sT0} offen offset:1024 lds")
    I(f"s_mov_b32 m0, {GL}")
    I(f"s_add_u32 s{sT1}, s{sT1}, {G_OFF}")
    I(f"buffer_load_dwordx4 v{vLO}, s[{SWS}:{SWS+3}], s{sT1} offen lds")
    for half in range(3):
        I(f"s_mov_b32 s{sCNT}, {(KV0, 16 - KV0, 16)[half]}")
        a.label(f"P2_KVLOOP{half}")
        kvdma()
        I(f"s_sub_u32 s{sCNT}, s{sCNT}, 1")
        I(f"s_cmp_lg_u32 s{sCNT}, 0")
        I(f"s_cbranch_scc1 P2_KVLOOP{half}")
        if half == 1:
            I(f"s_waitcnt vmcnt({16 - KV0})")
            I("s_barrier")
            stamp(a, 4)
            I("s_waitcnt vmcnt(0)")
            I("s_barrier")
            srd(a, SWO, 512*512*2); srd(a, SW2, 1792*512*2)
            I(f"s_lshl_b32 s{sLS}, s{sJ}, 12")
            I(f"s_add_u32 s{sLS}, s{sLS}, {131072}")
            I(f"v_lshrrev_b32 v12, 5, v{vL}")
            I(f"v_bfe_u32 v13, v{vL}, 2, 2")
            I(f"v_and_b32 v14, 3, v{vL}")
            I(f"v_bfe_u32 v15, v{vL}, 4, 1")
            I(f"v_lshlrev_b32 v10, 9, v12")
            I(f"v_lshl_add_u32 v10, v13, 7, v10")
            I(f"v_lshrrev_b32 v16, 1, v13")
            I(f"v_lshl_add_u32 v10, v16, 6, v10")
            I(f"v_lshl_add_u32 v10, v15, 4, v10")
            I(f"v_and_b32 v16, 1, v14")
            I(f"v_lshl_add_u32 v10, v16, 5, v10")
            I(f"v_lshrrev_b32 v16, 1, v14")
            I(f"v_lshl_add_u32 v10, v16, 3, v10")
            I(f"v_add_u32 v10, s{sLS}, v10")
            I(f"v_xor_b32 v11, 64, v10")
            I(f"s_lshl_b32 s52, s2, 2")
            I(f"s_add_u32 s52, s52, s{sJ}")
            for n in range(2):
                if n == 1:
                    I(f"s_cmp_ge_u32 s52, 128")
                    I(f"s_cbranch_scc1 P2_TR1")
                    I(f"s_add_u32 s52, s52, 1024")
                I(f"s_mul_i32 s53, s52, 7282")
                I(f"s_lshr_b32 s53, s53, 20")
                I(f"s_mul_i32 s54, s53, 144")
                I(f"s_sub_u32 s54, s52, s54")
                I(f"s_add_u32 s{56+n}, s52, s52")
                I(f"s_sub_u32 s{56+n}, s{56+n}, s54")
                I(f"s_lshl_b32 s{56+n}, s{56+n}, 10")
                I(f"s_lshl_b32 s{sT0}, s54, 14")
                I(f"s_lshl_b32 s{sT1}, s53, 7")
                I(f"s_add_u32 s{sT0}, s{sT0}, s{sT1}")
                I(f"s_add_u32 m0, s{sLS}, {2048*n}")
                I(f"s_cmp_ge_u32 s54, 32")
                I(f"s_cbranch_scc1 P2_TW2{n}")
                I(f"s_add_u32 s{sT1}, s{sT0}, {8192 - 1024}")
                I(f"buffer_load_dwordx4 v{vTD}, s[{SWO}:{SWO+3}], s{sT0} offen lds")
                I(f"buffer_load_dwordx4 v{vTD}, s[{SWO}:{SWO+3}], s{sT1} offen offset:1024 lds")
                I(f"s_branch P2_TD{n}")
                a.label(f"P2_TW2{n}")
                I(f"s_sub_u32 s{sT0}, s{sT0}, {32*16384}")
                I(f"s_add_u32 s{sT1}, s{sT0}, {8192 - 1024}")
                I(f"buffer_load_dwordx4 v{vTD}, s[{SW2}:{SW2+3}], s{sT0} offen lds")
                I(f"buffer_load_dwordx4 v{vTD}, s[{SW2}:{SW2+3}], s{sT1} offen offset:1024 lds")
                a.label(f"P2_TD{n}")
            a.label("P2_TR1")
    I("s_waitcnt vmcnt(16)")
    for n in range(2):
        for ct in range(2):
            b = 24 + 8*n + 4*ct
            I(f"ds_read_b64_tr_b16 v[{b}:{b+1}], v{10+ct} offset:{2048*n}")
            I(f"ds_read_b64_tr_b16 v[{b+2}:{b+3}], v{10+ct} offset:{2048*n+1024}")
    I("s_waitcnt lgkmcnt(0)")
    for n in range(2):
        if n == 1:
            I(f"s_cmp_lt_u32 s52, 1024")
            I(f"s_cbranch_scc1 P2_TR2")
        for ct in range(2):
            b = 24 + 8*n + 4*ct
            I(f"s_add_u32 s7, s{56+n}, {WF_OFF + ct*144*1024}")
            I(f"buffer_store_dwordx4 v[{b}:{b+3}], v{vLO}, s[{SWS}:{SWS+3}], s7 offen{WTF}")
    a.label("P2_TR2")
    I(f"s_lshr_b32 s{sT0}, s{sJ}, 1")
    I(f"s_lshl_b32 s{sT1}, s{sQB}, 1")
    I(f"s_add_u32 s{sA0}, s{sT1}, s{sT0}")
    I(f"s_xor_b32 s{sA1}, s{sA0}, 1")
    I(f"s_and_b32 s{sT0}, s{sJ}, 1")
    I(f"s_lshl_b32 s{sT1}, s{sH}, 1")
    I(f"s_add_u32 s{sB0}, s{sT1}, s{sT0}")
    I(f"s_xor_b32 s{sB1}, s{sB0}, 1")
    I(f"s_mov_b32 s{sOC}, s{sA0}")
    I(f"s_mov_b32 s{sOR}, s{sB0}")
    I(f"s_lshl_b32 s32, s{sB0}, 7")
    I(f"s_add_u32 s32, s32, {G_OFF}")
    I(f"s_lshl_b32 s33, s{sB1}, 7")
    I(f"s_add_u32 s33, s33, {G_OFF}")
    I(f"s_lshl_b32 s{sT0}, s{sJ}, 13")
    for d, r in ((sWA0, sA0), (sWA1, sA1)):
        I(f"s_mul_i32 s{d}, s{r}, {144*1024}")
        I(f"s_add_u32 s{d}, s{d}, s{sT0}")
        I(f"s_add_u32 s{d}, s{d}, {WF_OFF}")
    for d, r in ((sOB0, sB0), (sOB1, sB1)):
        I(f"s_lshl_b32 s{d}, s{r}, 15")
        I(f"s_add_u32 s{d}, s{d}, s{sT0}")
        I(f"s_add_u32 s{d}, s{d}, {OF_OFF}")
    I(f"s_mul_i32 s{sT0}, s{sJ}, {28*1024}")
    for r, off in ((sA0, WF_OFF), (sA1, WF_OFF), (sB0, AF_OFF), (sB1, AF_OFF)):
        I(f"s_mul_i32 s{r}, s{r}, {144*1024}")
        I(f"s_add_u32 s{r}, s{r}, s{sT0}")
        I(f"s_add_u32 s{r}, s{r}, {off + 32*1024}")
    ACC2, FR = 8, 72
    I(f"s_lshr_b32 s{sT0}, s{sH}, 1")
    I(f"s_lshr_b32 s{sT1}, s{sT0}, 3")
    I(f"s_and_b32 s{sT0}, s{sT0}, 7")
    I(f"s_lshl_b32 s{sT0}, s{sT0}, 3")
    I(f"s_or_b32 s{sT0}, s{sT0}, s{sT1}")
    I(f"v_and_b32 v6, 6, v{vL}")
    I(f"v_and_b32 v7, 1, v{vL}")
    I(f"v_lshl_or_b32 v6, v7, 6, v6")
    I(f"v_bfe_u32 v7, v{vL}, 3, 1")
    I(f"v_lshl_or_b32 v6, v7, 7, v6")
    I(f"v_or_b32 v6, s{sT0}, v6")
    I(f"s_mul_i32 s{sT0}, s{sQB}, 36")
    I(f"v_subrev_u32 v7, 16, v{vL}")
    I(f"v_min_u32 v7, 35, v7")
    I(f"v_add_u32 v7, s{sT0}, v7")
    I(f"v_and_b32 v7, 255, v7")
    I(f"v_cmp_gt_u32 vcc, 16, v{vL}")
    I(f"s_add_u32 s{sT2}, s{sT2}, {F2_OFF - FL_OFF}")
    I(f"s_mov_b32 s{sLS}, {F2_OFF}")
    I(f"v_cndmask_b32 v6, v7, v6, vcc")
    I(f"v_lshlrev_b32 v6, 6, v6")
    I(f"s_lshr_b32 s{sT0}, s{sH}, 2")
    I(f"s_lshl_b32 s{sT0}, s{sT0}, 5")
    I(f"v_and_b32 v7, 31, v{vL}")
    I(f"v_add_u32 v7, s{sT0}, v7")
    I(f"s_lshl_b32 s{sT0}, s{sH}, 3")
    I(f"v_and_b32 v12, 7, v{vL}")
    I(f"v_cmp_gt_u32 vcc, 32, v{vL}")
    I(f"v_add_u32 v12, s{sT0}, v12")
    I("s_nop 0")
    I(f"v_cndmask_b32 v7, v12, v7, vcc")
    I(f"v_lshlrev_b32 v7, 6, v7")
    I("s_waitcnt vmcnt(0)")
    I("s_barrier")
    stamp(a, 5)
    I(f"s_cmp_lg_u32 s{sJ}, 0")
    I("s_cbranch_scc1 P2_F2POLL")
    I("s_mov_b64 exec, 1")
    I(f"buffer_store_dwordx2 v[4:5], v2, s[{SWS}:{SWS+3}], s{sT2} offen sc0 sc1")
    I("s_mov_b64 exec, -1")
    def pollflags(vaddr, lab, done, sl):
        a.label(lab)
        I(f"buffer_load_dwordx2 v[{FR+88}:{FR+89}], v{vaddr}, s[{SWS}:{SWS+3}], s{sKV} offen sc0 sc1")
        I("s_waitcnt vmcnt(0)")
        I(f"v_cmp_eq_u64 vcc, s[{sN}:{sN+1}], v[{FR+88}:{FR+89}]")
        I("s_nop 4")
        I(f"s_cmp_eq_u64 vcc, -1")
        I(f"s_cbranch_scc1 {done}")
        I(f"s_cmp_eq_u32 s{sTO}, 0")
        I(f"s_cbranch_scc1 {done}")
        I(f"s_sub_u32 s{sTO}, s{sTO}, 1")
        I(f"s_sleep {sl}")
        I(f"s_branch {lab}")
    a.label("P2_F2POLL")
    I(f"s_mov_b32 s{sKV}, {F2_OFF}")
    pollflags(6, "P2_F2P", "P2_F2GOT", 8)
    a.label("P2_F2GOT")
    stamp(a, 6)
    def ld(u):
        fb = FR + 16*u
        for q, r in enumerate((sA0, sB0, sA1, sB1)):
            I(f"buffer_load_dwordx4 v[{fb+4*q}:{fb+4*q+3}], v{vLO}, s[{SWS}:{SWS+3}], s{r} offen offset:{1024*u}")
    def mm4(A0, A1, B0, B1):
        for tau, (A, B) in ((3, (A1, B1)), (2, (A1, B0)), (1, (A0, B1)), (0, (A0, B0))):
            acc = ACC2 + 16*tau
            I(f"{MF} v[{acc}:{acc+15}], v[{A}:{A+3}], v[{B}:{B+3}], v[{acc}:{acc+15}]")
    def mmf(fb): mm4(fb, fb+8, fb+4, fb+12)
    for u in range(4): ld(u)
    I(f"s_setprio 0")
    I(f"s_mov_b32 s{sCNT}, 6")
    for r in (sA0, sA1, sB0, sB1): I(f"s_add_u32 s{r}, s{r}, 4096")
    I("s_waitcnt vmcnt(12)")
    for tau, (A, B) in ((3, (FR+8, FR+12)), (2, (FR+8, FR+4)), (1, (FR, FR+12)), (0, (FR, FR+4))):
        acc = ACC2 + 16*tau
        I(f"{MF} v[{acc}:{acc+15}], v[{A}:{A+3}], v[{B}:{B+3}], 0")
    I("s_branch P2_GIN")
    a.label("P2_GLOOP")
    for r in (sA0, sA1, sB0, sB1): I(f"s_add_u32 s{r}, s{r}, 4096")
    for u in range(4):
        I("s_waitcnt vmcnt(12)")
        mmf(FR + 16*u)
        if u == 0: a.label("P2_GIN")
        ld(u)
    I(f"s_sub_u32 s{sCNT}, s{sCNT}, 1")
    I(f"s_cmp_lg_u32 s{sCNT}, 0")
    I("s_cbranch_scc1 P2_GLOOP")
    WA, OB = 72, 104
    for u in range(4):
        I(f"s_waitcnt vmcnt({12 - 4*u})")
        mmf(FR + 16*u)
    for s_ in range(4):
        for q, r in ((0, sWA0), (1, sWA1)):
            b = WA + 8*s_ + 4*q
            I(f"buffer_load_dwordx4 v[{b}:{b+3}], v{vLO}, s[{SWS}:{SWS+3}], s{r} offen offset:{1024*s_}")
    I(f"s_lshl_b32 s{sLS}, s{sJ}, 13")
    I(f"s_add_u32 s{sLS}, s{sLS}, 131072")
    for q, r in ((0, sWA0), (1, sWA1)):
        I(f"s_add_u32 m0, s{sLS}, {4096*q}")
        I(f"s_add_u32 s{sT0}, s{r}, 4096")
        for s_ in range(4):
            I(f"buffer_load_dwordx4 v{vLO}, s[{SWS}:{SWS+3}], s{sT0} offen offset:{1024*s_} lds")
    stamp(a, 7)
    I(f"s_setprio {SHPRIO2}")
    pollflags(7, "P2_F3P", "P2_F3GOT", 8)
    a.label("P2_F3GOT")
    I(f"v_and_b32 v2, 31, v{vL}")
    I(f"v_lshlrev_b32 v2, 2, v2")
    I(f"buffer_load_dword v4, v2, s[{SWS}:{SWS+3}], s32 offen")
    I(f"buffer_load_dword v5, v2, s[{SWS}:{SWS+3}], s33 offen")
    I("s_waitcnt vmcnt(0)")
    I(f"v_sub_f32 v4, 1.0, v4")
    I(f"v_sub_f32 v5, 1.0, v5")
    for tau in (3, 2, 1, 0):
        for k in range(16): I(f"v_mul_f32 v{ACC2+16*tau+k}, v{ACC2+16*tau+k}, v{4 + (tau & 1)}")
    I(f"s_add_u32 s{sOB2}, s{sOB0}, 4096")
    I(f"s_add_u32 s{sOB3}, s{sOB1}, 4096")
    I(f"v_add_u32 v2, s{sLS}, v{vLO}")
    I(f"s_mul_i32 s{sT0}, s{sJ}, 12288")
    I(f"v_add_u32 v4, s{sT0}, v{vLO}")
    for r in (1, 2, 3):
        I(f"s_xor_b32 s{sT0}, s{sJ}, {r}")
        I(f"s_mul_i32 s{sT0}, s{sT0}, 12288")
        I(f"v_add_u32 v{4+r}, s{sT0}, v{vLO}")
    I("s_waitcnt vmcnt(0)")
    I("s_barrier")
    stamp(a, 8)
    def ldo(s_):
        for q in range(2):
            r = (sOB0, sOB1)[q] if s_ < 4 else (sOB2, sOB3)[q]
            b = OB + 8*s_ + 4*q
            I(f"buffer_load_dwordx4 v[{b}:{b+3}], v{vLO}, s[{SWS}:{SWS+3}], s{r} offen offset:{1024*(s_%4)} sc0 sc1")
    for s_ in range(8): ldo(s_)
    for s_ in range(8):
        b = OB + 8*s_
        a.label(f"P2_CHK{s_}")
        I(f"s_waitcnt vmcnt({14 - 2*s_})")
        I(f"v_max3_u32 v0, v{b}, v{b+1}, v{b+2}")
        I(f"v_max3_u32 v0, v{b+3}, v{b+4}, v0")
        I(f"v_max3_u32 v0, v{b+5}, v{b+6}, v0")
        I(f"v_max_u32 v0, v{b+7}, v0")
        I(f"v_cmp_eq_u32 vcc, -1, v0")
        if s_ >= 4: I("s_waitcnt lgkmcnt(%d)" % (2*(7 - s_)))
        else: I("s_nop 0")
        I("s_nop 2")
        I(f"s_cbranch_vccnz P2_RETRY{s_}")
        a.label(f"P2_GO{s_}")
        wa = WA + 8*(s_ % 4)
        mm4(wa, wa+4, b, b+4)
        if s_ < 4:
            for q in range(2):
                I(f"ds_read_b128 v[{wa+4*q}:{wa+4*q+3}], v2 offset:{4096*q + 1024*s_}")
    I(f"s_lshl_b32 s{sT0}, s{sOR}, 15")
    I(f"s_lshl_b32 s{sT1}, s{sOC}, 6")
    I(f"s_add_u32 s{sT0}, s{sT0}, s{sT1}")
    I(f"v_and_b32 v2, 31, v{vL}")
    I(f"v_lshlrev_b32 v2, 10, v2")
    I(f"v_lshrrev_b32 v{vL}, 5, v{vL}")
    I(f"v_lshl_add_u32 v2, v{vL}, 5, v2")
    I("s_nop 2")
    for r in (3, 2, 1):
        for q in range(4):
            b = ACC2 + 16*r + 4*q
            I(f"ds_write_b128 v{4+r}, v[{b}:{b+3}] offset:{(r-1)*4096 + q*1024}")
    I("s_waitcnt lgkmcnt(0)")
    I("s_barrier")
    for r in range(3):
        for q in range(4):
            b = FR + 16*r + 4*q
            I(f"ds_read_b128 v[{b}:{b+3}], v4 offset:{r*4096 + q*1024}")
    for r in range(3):
        I(f"s_waitcnt lgkmcnt({8-4*r})")
        for k in range(16): I(f"v_add_f32 v{ACC2+k}, v{ACC2+k}, v{FR+16*r+k}")
    for r in range(8): I(f"v_cvt_pk_bf16_f32 v{FR+r}, v{ACC2+2*r}, v{ACC2+2*r+1}")
    I(f"buffer_store_dwordx4 v[{FR}:{FR+3}], v2, s[{SO}:{SO+3}], s{sT0} offen")
    I(f"buffer_store_dwordx4 v[{FR+4}:{FR+7}], v2, s[{SO}:{SO+3}], s{sT0} offen offset:16")
    if DBG:
        I("s_waitcnt vmcnt(0)")
        I("s_mov_b32 s65, s72")
    stamp(a, 8)
    stamp_flush(a, 9, SWS, sW, 0)
    I("s_endpgm")
    for s_ in range(8):
        a.label(f"P2_RETRY{s_}")
        I(f"s_cmp_eq_u32 s{sTO}, 0")
        I(f"s_cbranch_scc1 P2_GO{s_}")
        I(f"s_sub_u32 s{sTO}, s{sTO}, 1")
        if POLLS: I(f"s_sleep {POLLS}")
        for q_ in range(s_, 8): ldo(q_)
        I(f"s_branch P2_CHK{s_}")
    a.label("MK_END")
    I("s_endpgm")
    return a.text(), kdesc(KN, NV, 102, NV), 163840

if __name__ == "__main__":
    txt, kd, lds = gen()
    ref = open(f"cdna_kernels/{NAME}.s.ref").read().splitlines()
    head = [l for l in ref if l.startswith(";") and "@launch" not in l and "Override launch" not in l and "grid=ceil" not in l and "TODO" not in l][:12]
    s = "\n".join(head) + "\n" + f"; @launch grid=(256,1,1) block=(768,1,1) lds={lds}\n"
    s += '.amdgcn_target "amdgcn-amd-amdhsa--gfx950"\n.text\n' + txt + '.section .rodata,"a"\n' + kd
    open(sys.argv[1], "w").write(s)
```

```python
from common import *
PKMISH = opt("--pkmish", 1)
WTF = " sc0 sc1"
TRIT = opt("--trit", 4)
PFIT = opt("--pfit", 3)
TRIT2 = opt("--trit2", 6)
ROTX = opt("--rotx", 7)
ROTR = opt("--rotr", 1)
SHPRIO2 = opt("--shprio2", 3)
ATPRIO = opt("--atprio", 1)
POLLS = opt("--polls", 8)
MPF = opt("--mpf", 0)
DBG2 = opt('--dbg2', 0)
WT1 = opt('--wt1', 'sc0_sc1').replace('_', ' ')
EXP = opt('--exp', 0)
KV0 = opt('--kv0', 5)
NST = 5
PR1 = opt('--pr1', 5)
PR2 = opt('--pr2', 2)
LFIRST = opt('--lfirst', 0)
HLATE = opt('--hlate', 1)
TLBW = opt('--tlbw', 0)
GIT = opt('--git', 1)
DEP = opt('--dep', 2)
STG = 32768
SB0 = 98304
XAB = 131072
QL = 147456
GL = 155648
F1IT = opt('--f1it', 1)
Y2IT = opt('--y2it', 6)
F2_OFF = FL_OFF + 16384
KN = NAME + "_kernel"
MF = "v_mfma_f32_32x32x16_bf16"

_stamp = stamp
def stamp(a, idx, comp=True):
    if DBG2 and 1 <= idx <= 7 and COMP[0]: return
    _stamp(a, idx)
COMP = [True]
def gen():
    a = Asm()
    I = a.i
    a.raw(khead(KN))
    I("s_cmp_ge_u32 s2, 256")
    I("s_cbranch_scc1 MK_END")
    SX, SWQ, SWO, SW1, SB1, SW2, SG, SWS = 8, 12, 16, 20, 24, 28, 32, 36
    for s, off in [(SX, 0), (SWQ, 8), (SW1, 32), (SWO, 16), (SB1, 40), (SW2, 48), (SG, 56), (SWS, 80), (100, 72)]:
        I(f"s_load_dwordx2 s[{s}:{s+1}], s[0:1], {off}")
    srd(a, SX, 2048*512*2); srd(a, SWQ, 512*1536*2); srd(a, SW1, 512*1792*2); srd(a, SWS, WS_BYTES)
    sW, sC, sRB, sRT, sT0, sT1, sT2, sHF, sIT = 40, 41, 42, 43, 44, 45, 46, 47, 48
    sRS = 58
    sCOL = [[59, 60], [61, 62]]
    sL2E, sTWO, sQS, s30 = 84, 86, 5, 6
    sTR = 94
    sH, sQB = 95, 96
    vL = 1
    t0, t1, t2, t3 = 2, 3, 4, 5
    vXE, vXO, vWQ, vWF, vWS, vST, vSV, vTS = 6, 7, 8, 9, 10, 11, 12, 13
    vXR = [14, 15, 16, 17]
    vTP = [18]
    vTT = [20, 21]
    vTD = 22
    vG0, vG1 = 23, 24
    XF = [28, 32, 36, 40]
    WF = [[44 + 8*k, 48 + 8*k] for k in range(4)]
    ACC = [76, 92, 108, 124]
    PK = 44
    BIAS, BONE, GX, GW = 140, 146, 150, 154
    NV = 168
    HKR = [152, 156, 160, 164]
    I(f"v_and_b32 v{vL}, 63, v0")
    I(f"v_lshrrev_b32 v{t0}, 6, v0")
    I(f"s_and_b32 s{sT0}, s2, 1")
    I(f"v_readfirstlane_b32 s{sW}, v{t0}")
    I(f"s_lshl_b32 s{sT0}, s{sT0}, 3")
    I(f"s_bfe_u32 s{sT1}, s2, 0x30003")
    I(f"s_add_u32 s{sRB}, s{sT0}, s{sT1}")
    I(f"s_and_b32 s{sC}, s2, 6")
    I(f"s_bfe_u32 s{sT0}, s2, 0x10006")
    I(f"s_add_u32 s{sC}, s{sC}, s{sT0}")
    if LFIRST:
        I(f"s_add_u32 s{sW}, s{sW}, 8")
        I(f"s_sub_u32 s{sT0}, s{sW}, 12")
        I(f"s_cmp_ge_u32 s{sW}, 12")
        I(f"s_cselect_b32 s{sW}, s{sT0}, s{sW}")
        I(f"v_subrev_u32 v0, 256, v0")
    I(f"s_lshr_b32 s{sHF}, s{sW}, 2")
    I(f"s_and_b32 s{sT0}, s{sW}, 3")
    I(f"s_lshl_b32 s{sRT}, s{sRB}, 2")
    I(f"s_add_u32 s{sRT}, s{sRT}, s{sT0}")
    I(f"v_lshrrev_b32 v{t0}, 3, v{vL}")
    I(f"v_and_b32 v{t1}, 7, v{vL}")
    I(f"v_lshrrev_b32 v{t2}, 1, v{t0}")
    I(f"v_xor_b32 v{t3}, v{t1}, v{t2}")
    I(f"v_lshlrev_b32 v{vXE}, 10, v{t0}")
    I(f"v_lshl_add_u32 v{vXE}, v{t3}, 4, v{vXE}")
    I(f"v_xor_b32 v{vXO}, 64, v{vXE}")
    I(f"v_and_b32 v{t2}, 1, v{t2}")
    I(f"v_lshlrev_b32 v{t2}, 2, v{t2}")
    I(f"v_xor_b32 v{t3}, v{t1}, v{t2}")
    I(f"v_lshlrev_b32 v{t3}, 4, v{t3}")
    I(f"v_mul_u32_u24 v{vWQ}, 3072, v{t0}")
    I(f"v_add_u32 v{vWQ}, v{vWQ}, v{t3}")
    I(f"v_mul_u32_u24 v{vWF}, 3584, v{t0}")
    I(f"v_add_u32 v{vWF}, v{vWF}, v{t3}")
    I(f"v_lshl_add_u32 v{vTD}, v{t0}, 10, v{t3}")
    I(f"v_lshlrev_b32 v{vST}, 4, v{vL}")
    I(f"s_and_b32 s{sT0}, s2, 7")
    I(f"s_lshl_b32 s{sT0}, s{sT0}, 2")
    I(f"s_bfe_u32 s{sT1}, s2, 0x20003")
    I(f"s_add_u32 s{sH}, s{sT0}, s{sT1}")
    I(f"s_lshr_b32 s{sQB}, s2, 5")
    I(f"s_cmp_ge_u32 s2, 128")
    I("s_cbranch_scc1 P1_B")

    def path(ty):
        isA = ty == "A"
        a.vm = []; a.lg = []
        if isA:
            sw = [["Q", "K"], ["F", "S"]]
            I(f"s_lshl_b32 s{sCOL[0][0]}, s{sC}, 7")
            I(f"s_xor_b32 s{sCOL[0][1]}, s{sCOL[0][0]}, 512")
            I(f"s_add_u32 s{sCOL[0][1]}, s{sCOL[0][1]}, 1024")
            I(f"s_add_u32 s{sCOL[1][0]}, s{sCOL[0][0]}, {16*128}")
            I(f"s_lshl_b32 s{sCOL[1][1]}, s{sC}, 6")
            I(f"s_add_u32 s{sCOL[1][1]}, s{sCOL[1][1]}, {24*128}")
            I(f"v_lshrrev_b32 v{t0}, 2, v{vL}")
            I(f"v_mul_u32_u24 v{vWS}, 3584, v{t0}")
            I(f"v_and_b32 v{t0}, 3, v{vL}")
            I(f"v_lshl_add_u32 v{vWS}, v{t0}, 4, v{vWS}")
        else:
            sw = [["V"], ["F", "F"]]
            I(f"s_lshl_b32 s{sCOL[0][0]}, s{sC}, 7")
            I(f"s_add_u32 s{sCOL[0][0]}, s{sCOL[0][0]}, 2048")
            I(f"s_lshl_b32 s{sCOL[1][0]}, s{sC}, 8")
            I(f"s_add_u32 s{sCOL[1][1]}, s{sCOL[1][0]}, 128")
        I(f"s_cmp_ge_u32 s{sW}, 8")
        I(f"s_cbranch_scc0 P1{ty}_COMP")
        sJ, sCH, sSTG, sXB = 63, 57, 58, 53
        sPB = [[49, 50], [51, 52]]
        sKXl, sKWl, sSXl, sSPl, sSSl = 97, 98, 54, 55, 56
        I(f"s_sub_u32 s{sJ}, s{sW}, 8")
        I(f"s_and_b32 s{sCH}, s2, {ROTX}")
        if ROTR:
            I(f"s_bfe_u32 s{sT0}, s2, 0x30003")
            I(f"s_and_b32 s{sT0}, s{sT0}, {ROTR}")
            I(f"s_add_u32 s{sCH}, s{sCH}, s{sT0}")
            I(f"s_and_b32 s{sCH}, s{sCH}, 7")
        I(f"s_mov_b32 s{sSTG}, {SB0}")
        I(f"s_lshl_b32 s{sXB}, s{sRB}, 2")
        I(f"s_add_u32 s{sXB}, s{sXB}, s{sJ}")
        I(f"s_lshl_b32 s{sXB}, s{sXB}, 15")
        I(f"s_mul_i32 s{sT1}, s{sJ}, {16*3072}")
        I(f"s_mul_i32 s{sT2}, s{sJ}, {16*3584}")
        for k in range(2):
            for p in range(len(sw[k])):
                I(f"s_add_u32 s{sPB[k][p]}, s{sCOL[k][p]}, s{sT2 if k else sT1}")
        I(f"s_mov_b32 s{sIT}, 0")
        I("s_waitcnt lgkmcnt(0)")
        stamp(a, 0)
        def dma(ms, mc, k, pb, oc, vo, S_):
            I(f"s_add_u32 m0, s{ms}, {mc}")
            if pb is None:
                I(f"s_add_u32 s7, s{k}, {oc}")
            else:
                I(f"s_add_u32 s7, s{k}, s{pb}")
                if oc: I(f"s_add_u32 s7, s7, {oc}")
            I(f"buffer_load_dwordx4 v{vo}, s[{S_}:{S_+3}], s7 offen lds")
        nds = [(0 if (k == 1 and EXP & 4) else 4) + sum(1 if kd == "S" else 2 for kd in sw[k]) for k in range(2)]
        for k in range(2):
            ld = 3584 if k else 3072
            a.label(f"P1{ty}_LD{k}")
            I(f"s_lshl_b32 s{sKXl}, s{sCH}, 7")
            I(f"s_add_u32 s{sKXl}, s{sKXl}, s{sXB}")
            I(f"s_mul_i32 s{sKWl}, s{sCH}, {64*ld}")
            I(f"s_lshl_b32 s{sT0}, s{sJ}, 10")
            I(f"s_add_u32 s{sSSl}, s{sSTG}, s{sT0}")
            I(f"s_add_u32 s{sSPl}, s{sSSl}, s{sT0}")
            I(f"s_lshl_b32 s{sT0}, s{sT0}, 1")
            I(f"s_add_u32 s{sSXl}, s{sSPl}, s{sT0}")
            if not (k == 1 and EXP & 4):
                for i in range(4): dma(sSXl, 1024*i, sKXl, None, 8192*i, vXO if i % 2 else vXE, SX)
            for p, kd in enumerate(sw[k]):
                if kd == "S":
                    dma(sSSl, 16384 + 8192*p, sKWl, sPB[k][p], 0, vWS, SW1)
                else:
                    for i in range(2):
                        dma(sSPl, 16384 + 8192*p + 1024*i, sKWl, sPB[k][p], 8*i*ld, vWF if k else vWQ, SW1 if k else SWQ)
            I(f"s_add_u32 s{sCH}, s{sCH}, 1")
            I(f"s_and_b32 s{sCH}, s{sCH}, 7")
            I(f"s_add_u32 s{sSTG}, s{sSTG}, {STG}")
            I(f"s_cmp_eq_u32 s{sSTG}, {NST*STG}")
            I(f"s_cselect_b32 s{sSTG}, 0, s{sSTG}")
            I(f"s_add_u32 s{sIT}, s{sIT}, 1")
            if k == 0:
                I(f"s_cmp_lt_u32 s{sIT}, {DEP}")
                I(f"s_cbranch_scc1 P1{ty}_LD0")
            I(f"s_waitcnt vmcnt({(DEP-1)*(nds[0] if k == 0 else min(nds))})")
            I("s_barrier")
            I(f"s_cmp_lt_u32 s{sIT}, {8*(k+1)}")
            I(f"s_cbranch_scc1 P1{ty}_LD{k}")
        for r in range(DEP - 2, 0, -1):
            I(f"s_waitcnt vmcnt({r*nds[1]})")
            I("s_barrier")
        I(f"s_mov_b32 s{sIT}, {1 if isA else 0}")
        I("s_branch P2_SHADOW")
        a.label(f"P1{ty}_COMP")
        I("s_waitcnt lgkmcnt(0)")
        stamp(a, 0)
        code_prefetch(a, "MK_END", 8, 1, "p1" + ty, vt=25)
        srd(a, SB1, 1792*2); srd(a, SG, 512*2)
        I(f"s_lshl_b32 s{sT0}, s{sQB}, 3")
        I(f"s_add_u32 s{sT0}, s{sT0}, s{sW}")
        I(f"s_lshl_b32 s{sT0}, s{sT0}, 5")
        I(f"s_add_u32 s{sT0}, s{sT0}, s{sH}")
        I(f"s_lshl_b32 s{sT0}, s{sT0}, 10")
        I(f"s_add_u32 s97, s{sT0}, {OF_OFF}")
        if isA:
            I(f"s_or_b32 s{sT0}, s2, s{sW}")
            I(f"s_cmp_lg_u32 s{sT0}, 0")
            I("s_cbranch_scc1 P1_NONONCE")
            I("s_memrealtime s[50:51]")
            I(f"v_mov_b32 v{t0}, 0")
            I("s_waitcnt lgkmcnt(0)")
            I("s_or_b32 s50, s50, 1")
            I(f"v_mov_b32 v{PK+8}, s50")
            I(f"v_mov_b32 v{PK+9}, s51")
            I("s_mov_b64 exec, 1")
            I(f"global_store_dwordx2 v{t0}, v[{PK+8}:{PK+9}], s[100:101] sc0 sc1")
            I("s_mov_b64 exec, -1")
            a.label("P1_NONONCE")
        if TLBW:
            I(f"s_cmp_lg_u32 s{sW}, 2")
            I(f"s_cbranch_scc1 P1{ty}_NOTLB")
            I(f"v_mul_u32_u24 v{t0}, {TLBW * 1024}, v{vL}")
            for r_ in range(max(1, (23 << 10) // (64 * TLBW) + 1)):
                I(f"s_mov_b32 s{sT0}, {r_ * 64 * TLBW * 1024}")
                I(f"buffer_load_dword v27, v{t0}, s[{SWS}:{SWS+3}], s{sT0} offen sc0 sc1")
            a.label(f"P1{ty}_NOTLB")
        for r in range(6): I(f"v_mov_b32 v{BIAS+r}, 0")
        I(f"s_lshl_b32 s{sTR}, s{sRB}, 4")
        I(f"s_add_u32 s{sTR}, s{sTR}, s{sC}")
        I(f"s_lshl_b32 s{sTR}, s{sTR}, 3")
        I(f"s_add_u32 s{sTR}, s{sTR}, s{sW}")
        if not isA: I(f"s_add_u32 s{sTR}, s{sTR}, 64")
        I(f"s_lshl_b32 s{sT1}, s{sTR}, 10")
        I(f"buffer_load_dwordx4 v[{GX}:{GX+3}], v{vST}, s[{SX}:{SX+3}], s{sT1} offen")
        I(f"buffer_load_dwordx4 v[{GW}:{GW+3}], v{vST}, s[{SG}:{SG+3}], 0 offen")
        I(f"v_and_b32 v{t0}, 31, v{vL}")
        I(f"v_lshlrev_b32 v{t0}, 1, v{t0}")
        I(f"s_lshl_b32 s{sT1}, s{sHF}, 6")
        for p, kd in enumerate(sw[1]):
            if kd == "F":
                I(f"s_add_u32 s7, s{sCOL[1][p]}, s{sT1}")
                I(f"buffer_load_ushort v{BIAS+2*p}, v{t0}, s[{SB1}:{SB1+3}], s7 offen")
            else:
                I(f"buffer_load_ushort v{BIAS+2*p}, v{t0}, s[{SB1}:{SB1+3}], s{sCOL[1][p]} offen")
        I(f"v_and_b32 v{t0}, 31, v{vL}")
        I(f"v_lshrrev_b32 v{t1}, 5, v{vL}")
        I(f"v_bfe_u32 v{t2}, v{t0}, 1, 3")
        I(f"v_xor_b32 v{t2}, v{t2}, v{t1}")
        I(f"v_lshlrev_b32 v{t3}, 7, v{t0}")
        I(f"s_and_b32 s{sT0}, s{sW}, 3")
        I(f"s_lshl_b32 s{sT0}, s{sT0}, 12")
        I(f"s_add_u32 s{sT0}, s{sT0}, {SB0}")
        I(f"v_add_u32 v{t3}, s{sT0}, v{t3}")
        I(f"v_lshl_add_u32 v{t3}, v{t2}, 4, v{t3}")
        I(f"v_mov_b32 v{vXR[0]}, v{t3}")
        for sp in range(1, 4): I(f"v_xor_b32 v{vXR[sp]}, {32*sp}, v{vXR[0]}")
        I(f"v_bfe_u32 v{t0}, v{vL}, 2, 2")
        I(f"v_and_b32 v{t2}, 3, v{vL}")
        I(f"v_bfe_u32 v{t3}, v{vL}, 4, 1")
        p0 = vTP[0]
        I(f"v_lshlrev_b32 v{p0}, 10, v{t1}")
        I(f"v_lshl_add_u32 v{p0}, v{t0}, 7, v{p0}")
        I(f"v_lshl_add_u32 v{p0}, v{t3}, 5, v{p0}")
        I(f"v_lshl_add_u32 v{p0}, v{t2}, 3, v{p0}")
        I(f"v_lshrrev_b32 v25, 1, v{t0}")
        I(f"v_lshl_add_u32 v{p0}, v25, 6, v{p0}")
        I(f"v_xor_b32 v{p0}, s{sT1}, v{p0}")
        I(f"v_add_u32 v{p0}, {SB0 + 16384}, v{p0}")
        if isA:
            I(f"v_lshlrev_b32 v{vTS}, 9, v{t1}")
            I(f"v_lshl_add_u32 v{vTS}, v{t0}, 6, v{vTS}")
            I(f"v_lshl_add_u32 v{vTS}, v{t3}, 5, v{vTS}")
            I(f"v_lshl_add_u32 v{vTS}, v{t2}, 3, v{vTS}")
            I(f"v_add_u32 v{vTS}, {SB0 + 24576}, v{vTS}")
            I(f"v_and_b32 v{vSV}, 0x33, v{vL}")
            I(f"v_bfe_u32 v26, v{vL}, 2, 1")
            I(f"v_lshl_or_b32 v{vSV}, v26, 3, v{vSV}")
            I(f"v_bfe_u32 v26, v{vL}, 3, 1")
            I(f"v_lshl_or_b32 v{vSV}, v26, 2, v{vSV}")
            I(f"v_lshlrev_b32 v{vSV}, 4, v{vSV}")
        else:
            I(f"v_and_b32 v26, 15, v{vL}")
            I(f"v_lshlrev_b32 v{vSV}, 4, v26")
            I(f"v_lshl_add_u32 v{vSV}, v{t1}, 8, v{vSV}")
            I(f"v_lshl_add_u32 v{vSV}, v{t3}, 17, v{vSV}")
            I(f"v_add_u32 v{vSV}, 1024, v{vSV}")
        I(f"s_lshl_b32 s98, s{sW}, 11")
        I(f"v_cmp_gt_u32 vcc, 32, v{vL}")
        I(f"v_mov_b32 v{BONE+1}, 0")
        I(f"v_mov_b32 v{BONE+2}, 0")
        I(f"v_mov_b32 v{BONE+3}, 0")
        I(f"v_mov_b32 v{t0}, 0x3f80")
        I(f"v_cndmask_b32 v{BONE}, 0, v{t0}, vcc")
        I(f"s_mov_b32 s{sL2E}, {fhex(LOG2E)}")
        I(f"s_mov_b32 s{sL2E+1}, {fhex(LOG2E)}")
        I(f"s_mov_b32 s{sTWO}, 2.0")
        I(f"s_mov_b32 s{sTWO+1}, 2.0")
        I(f"s_mov_b32 s{sQS}, {fhex(QSCALE)}")
        I(f"s_mov_b32 s{s30}, {fhex(30.0)}")
        for k in range(64): I(f"v_mov_b32 v{ACC[0]+k}, 0")
        for r in list(range(XF[2], XF[2]+8)) + list(range(WF[2][0], WF[2][0]+16)): I(f"v_mov_b32 v{r}, 0")
        I(f"s_mov_b32 s{sRS}, 3")

        def sweep(k, kinds, sfx=""):
            def reads(s):
                R = [(f"ds_read_b128 v[{XF[s]}:{XF[s]+3}], v{vXR[s]}", 0)]
                for p, kd in enumerate(kinds):
                    b = WF[s][p]
                    if kd == "S":
                        R.append((f"ds_read_b64_tr_b16 v[{b}:{b+1}], v{vTS} offset:{1024*s}", p))
                        R.append((f"ds_read_b64_tr_b16 v[{b+2}:{b+3}], v{vTS} offset:{1024*s + 256}", p))
                    else:
                        off = 8192*p + 2048*s
                        R.append((f"ds_read_b64_tr_b16 v[{b}:{b+1}], v{vTP[0]} offset:{off}", p))
                        R.append((f"ds_read_b64_tr_b16 v[{b+2}:{b+3}], v{vTP[0]} offset:{off+512}", p))
                return R
            def mfs(s):
                M = []
                for p, kd in enumerate(kinds):
                    acc, xf, wf = ACC[2*k + p], XF[s], WF[s][p]
                    if kd == "V": M.append((p, f"{MF} v[{acc}:{acc+15}], v[{xf}:{xf+3}], v[{wf}:{wf+3}], v[{acc}:{acc+15}]"))
                    else: M.append((p, f"{MF} v[{acc}:{acc+15}], v[{wf}:{wf+3}], v[{xf}:{xf+3}], v[{acc}:{acc+15}]"))
                return M
            L = f"P1{ty}_S{k}{sfx}"
            I(f"s_mov_b32 s{sIT}, 0")
            a.label(f"{L}_LOOP")
            if k == 1:
                I(f"s_cmp_lg_u32 s{sIT}, {F1IT}")
                I(f"s_cbranch_scc1 {L}_NW")
                I("s_waitcnt vmcnt(0)")
                a.label(f"{L}_NW")
            I("s_barrier")
            if DBG and k == 1 and DBG2:
                I("s_memtime s[90:91]")
                I("s_waitcnt lgkmcnt(0)")
                for n_, it_ in enumerate((0, 1, 2, 3, 4, 5, 6)):
                    I(f"s_cmp_eq_u32 s{sIT}, {it_}"); I(f"s_cselect_b32 s{65+n_}, s90, s{65+n_}")
            if DBG and k == 0 and not DBG2:
                I(f"s_cmp_lg_u32 s{sIT}, 0")
                I(f"s_cbranch_scc1 {L}_NS")
                stamp(a, 1)
                a.label(f"{L}_NS")
            a.lg = []
            def rd(s):
                for t_, tag in reads(s): a.lds(t_, (s, tag))
            def mm(s, w):
                for p, m in mfs(s):
                    if w: a.wait(lg=(s, p))
                    I(m)
            a.lg = [(2, tag) for _, tag in reads(2)] + [(3, tag) for _, tag in reads(3)]
            def step(sm, sr):
                M = mfs(sm); R = reads(sr)
                for n, (p, m) in enumerate(M):
                    a.wait(lg=(sm, p))
                    I(m)
                    take = [r for r in R if r[1] <= n] if n + 1 < len(M) else R
                    for t_, tag in take: a.lds(t_, (sr + 4, tag))
                    R = [r for r in R if r not in take]
            def retag():
                a.lg = [((x[0] - 4) if x[0] >= 4 else x[0], x[1]) for x in a.lg]
            step(2, 0); step(3, 1); retag()
            if not sfx:
                for it_, lab in (((PFIT, "PF"), (GIT, "G")) if k == 0 else ((F1IT, "F1"),)):
                    I(f"s_cmp_eq_u32 s{sIT}, {it_}")
                    I(f"s_cbranch_scc1 P1{ty}_{lab}")
                a.label(f"P1{ty}_BACK{k}")
            step(0, 2); step(1, 3); retag()
            I(f"s_add_u32 s{sRS}, s{sRS}, 1")
            I(f"s_mov_b32 s{sT0}, {STG}")
            I(f"s_cmp_eq_u32 s{sRS}, {NST}")
            I(f"s_cselect_b32 s{sT0}, {(-(NST-1)*STG) & 0xffffffff}, s{sT0}")
            I(f"s_cselect_b32 s{sRS}, 0, s{sRS}")
            for r in vXR + vTP + ([vTS] if isA else []): I(f"v_add_u32 v{r}, s{sT0}, v{r}")
            I(f"s_add_u32 s{sIT}, s{sIT}, 1")
            I(f"s_cmp_lt_u32 s{sIT}, 8")
            I(f"s_cbranch_scc1 {L}_LOOP")
            mm(2, True); mm(3, True)

        sweep(0, sw[0])
        stamp(a, 2)
        for r in range(8): I(f"v_mov_b32 v{XF[2]+r}, 0")
        I(f"s_lshl_b32 s7, s{sC}, 1")
        I(f"s_add_u32 s50, s7, s{sHF}")
        I(f"s_lshl_b32 s51, s50, 17")
        I(f"s_lshl_b32 s{sT0}, s{sRT}, 10")
        I(f"s_add_u32 s51, s51, s{sT0}")
        I(f"s_lshl_b32 s52, s51, 1")
        if isA: I(f"s_xor_b32 s52, s52, {1 << 21}")
        I(f"s_add_u32 s52, s52, {KV_OFF}")
        I(f"s_add_u32 s53, s51, 65536")
        I(f"s_add_u32 s54, s52, 131072")
        I(f"v_mov_b32 v{t0}, 0")
        I(f"global_load_dwordx2 v[{GX}:{GX+1}], v{t0}, s[100:101] sc0 sc1")
        if isA:
            acc = ACC[1]
            for e in range(8): I(f"v_cvt_pk_bf16_f32 v{PK+e}, v{acc+2*e}, v{acc+2*e+1}")
            I(f"buffer_store_dwordx4 v[{PK}:{PK+3}], v{vSV}, s[{SWS}:{SWS+3}], s52 offen{WTF}")
            I(f"buffer_store_dwordx4 v[{PK+4}:{PK+7}], v{vSV}, s[{SWS}:{SWS+3}], s54 offen{WTF}")
            acc = ACC[0]
            for e in range(16): I(f"v_mul_f32 v{acc+e}, s{sQS}, v{acc+e}")
            for e in range(8): I(f"v_cvt_pk_bf16_f32 v{PK+8+e}, v{acc+2*e}, v{acc+2*e+1}")
            I(f"buffer_store_dwordx4 v[{PK+8}:{PK+11}], v{vST}, s[{SWS}:{SWS+3}], s51 offen{WTF}")
            I(f"buffer_store_dwordx4 v[{PK+12}:{PK+15}], v{vST}, s[{SWS}:{SWS+3}], s53 offen{WTF}")
        else:
            acc = ACC[0]
            for e in range(8): I(f"v_cvt_pk_bf16_f32 v{PK+8+e}, v{acc+2*e}, v{acc+2*e+1}")
            I(f"buffer_store_dwordx4 v[{PK+8}:{PK+11}], v{vSV}, s[{SWS}:{SWS+3}], s52 offen{WTF}")
            I(f"buffer_store_dwordx4 v[{PK+12}:{PK+15}], v{vSV}, s[{SWS}:{SWS+3}], s52 offen offset:512{WTF}")
        if isA:
            I(f"s_cmp_eq_u32 s{sHF}, 0")
            I(f"s_cbranch_scc1 P1A_H0")
            sweep(1, sw[1][:1], "h")
            I(f"s_branch P1{ty}_EPI")
            a.label("P1A_H0")
        sweep(1, sw[1])
        I(f"s_branch P1{ty}_EPI")
        a.label(f"P1{ty}_F1")
        I(f"s_cmp_lg_u32 s{sW}, 0")
        I(f"s_cbranch_scc1 P1{ty}_F1C")
        I(f"s_mov_b32 s51, 0x40000")
        a.label(f"P1{ty}_F1A")
        I(f"v_readfirstlane_b32 s50, v{GX}")
        I(f"v_mov_b32 v{t0}, 0")
        I(f"s_lshl_b32 s{sT2}, s2, 6")
        I(f"s_add_u32 s{sT2}, s{sT2}, {FL_OFF}")
        I("s_nop 1")
        I(f"s_cmp_lg_u32 s50, 0")
        I(f"s_cbranch_scc1 P1{ty}_F1B")
        I(f"s_cmp_eq_u32 s51, 0")
        I(f"s_cbranch_scc1 P1{ty}_F1B")
        I(f"s_sub_u32 s51, s51, 1")
        I(f"global_load_dwordx2 v[{GX}:{GX+1}], v{t0}, s[100:101] sc0 sc1")
        I("s_waitcnt vmcnt(0)")
        I(f"s_branch P1{ty}_F1A")
        a.label(f"P1{ty}_F1B")
        I("s_mov_b64 exec, 1")
        I(f"buffer_store_dwordx2 v[{GX}:{GX+1}], v{t0}, s[{SWS}:{SWS+3}], s{sT2} offen sc0 sc1")
        I("s_mov_b64 exec, -1")
        a.label(f"P1{ty}_F1C")
        I(f"s_branch P1{ty}_BACK1")
        a.label(f"P1{ty}_G")
        I("s_waitcnt vmcnt(0)")
        I(f"v_mov_b32 v{vG0}, 0")
        I(f"v_mov_b32 v{vG1}, 0")
        for k in range(4): I(f"v_dot2_f32_bf16 v{vG0+k%2}, v{GX+k}, v{GW+k}, v{vG0+k%2}")
        I("s_nop 2")
        I(f"v_add_f32 v{vG0}, v{vG0}, v{vG1}")
        for d in ("quad_perm:[1,0,3,2]", "quad_perm:[2,3,0,1]", "row_half_mirror", "row_mirror"):
            I("s_nop 1")
            I(f"v_add_f32_dpp v{vG0}, v{vG0}, v{vG0} {d} row_mask:0xf bank_mask:0xf")
        I("s_nop 0")
        for k in range(4): I(f"v_readlane_b32 s{50+k}, v{vG0}, {16*k}")
        I(f"s_mov_b32 s{sT1}, s{sTR}")
        I("s_nop 0")
        I(f"v_mov_b32 v{vG0}, s50")
        I(f"v_add_f32 v{vG0}, s51, v{vG0}")
        I(f"v_add_f32 v{vG0}, s52, v{vG0}")
        I(f"v_add_f32 v{vG0}, s53, v{vG0}")
        I(f"v_mul_f32 v{vG0}, s{sL2E}, v{vG0}")
        I(f"v_exp_f32 v{vG0}, -v{vG0}")
        I(f"s_lshl_b32 s{sT1}, s{sT1}, 2")
        I(f"v_add_f32 v{vG0}, 1.0, v{vG0}")
        I(f"v_rcp_f32 v{vG0}, v{vG0}")
        I(f"s_add_u32 s{sT1}, s{sT1}, {G_OFF}")
        I(f"v_mov_b32 v{vG1}, 0")
        I(f"s_mov_b64 exec, 1")
        I(f"buffer_store_dword v{vG0}, v{vG1}, s[{SWS}:{SWS+3}], s{sT1} offen{WTF}")
        I(f"s_mov_b64 exec, -1")
        I(f"s_branch P1{ty}_BACK0")
        a.label(f"P1{ty}_PF")
        I(f"s_cmp_ge_u32 s{sW}, 2")
        I(f"s_cbranch_scc1 P1{ty}_BACK0")
        I(f"s_cmp_eq_u32 s{sW}, 0")
        I(f"s_cselect_b32 s{sT1}, s{sCOL[1][0]}, s{sCOL[1][1]}")
        I(f"s_bfe_u32 s{sT2}, s2, 0x30003")
        I(f"s_mul_i32 s{sT2}, s{sT2}, {64*3584}")
        I(f"s_add_u32 s{sT1}, s{sT1}, s{sT2}")
        I(f"v_mul_u32_u24 v{t0}, 3584, v{vL}")
        I(f"buffer_load_dword v27, v{t0}, s[{SW1}:{SW1+3}], s{sT1} offen")
        I(f"s_branch P1{ty}_BACK0")
        a.label(f"P1{ty}_EPI")
        stamp(a, 3)
        for p in range(2):
            acc = ACC[2 + p]
            if p == 1:
                I(f"s_mul_i32 s{sT2}, s{sRT}, {144*1024}")
                I(f"s_add_u32 s{sT2}, s{sT2}, {AF_OFF + 32*1024}")
                I(f"s_lshl_b32 s{sT1}, s{sHF}, 11")
                I(f"s_add_u32 s{sT1}, s{sT1}, s{sT2}")
            I(f"{MF} v[{acc}:{acc+15}], v[{BIAS+2*p}:{BIAS+2*p+3}], v[{BONE}:{BONE+3}], v[{acc}:{acc+15}]")
        jobs = [(0, 0), (0, 1), (1, 0), (1, 1)]
        for n, (p, hh) in enumerate(jobs):
            I(f"s_lshl_b32 s7, s{sCOL[1][p]}, 5")
            I(f"s_add_u32 s7, s7, s{sT2 if (isA and p == 1) else sT1}")
            I(f"s_add_u32 s{76+n}, s7, {1024*hh}")
        I(f"s_mov_b32 s56, {'s%d' % sHF if isA else 0}")
        tb = [ACC[0], ACC[0] + 8, 44]
        def mish8(acc, pk):
            vp = lambda r: f"v[{r}:{r+1}]"
            prs = range(4)
            T = lambda e, kk: tb[kk] + 2*e
            for e in prs: I(f"v_pk_mul_f32 {vp(T(e,0))}, {vp(acc+2*e)}, s[{sL2E}:{sL2E+1}]")
            for e in range(8): I(f"v_min_f32 v{tb[0]+e}, s{s30}, v{tb[0]+e}")
            for e in range(8): I(f"v_exp_f32 v{tb[0]+e}, v{tb[0]+e}")
            for e in prs: I(f"v_pk_add_f32 {vp(T(e,1))}, {vp(T(e,0))}, s[{sTWO}:{sTWO+1}]")
            for e in prs: I(f"v_pk_mul_f32 {vp(T(e,1))}, {vp(T(e,0))}, {vp(T(e,1))}")
            for e in prs: I(f"v_pk_add_f32 {vp(T(e,2))}, {vp(T(e,1))}, s[{sTWO}:{sTWO+1}]")
            for e in range(8): I(f"v_rcp_f32 v{tb[2]+e}, v{tb[2]+e}")
            for e in prs: I(f"v_pk_mul_f32 {vp(T(e,1))}, {vp(T(e,1))}, {vp(T(e,2))}")
            for e in prs: I(f"v_pk_mul_f32 {vp(T(e,0))}, {vp(acc+2*e)}, {vp(T(e,1))}")
            for e in range(4): I(f"v_cvt_pk_bf16_f32 v{pk+e}, v{tb[0]+2*e}, v{tb[0]+2*e+1}")
        for n, (p, hh) in enumerate(jobs):
            if isA and n == 2:
                I(f"s_cmp_eq_u32 s{sHF}, 1")
                I(f"s_cbranch_scc1 P1A_EDONE")
            mish8(ACC[2 + p] + 8*hh, HKR[n])
        if isA: a.label("P1A_EDONE")
        stamp(a, 4)
        I("s_branch P2_ATT")

    path("A")
    a.label("P1_B")
    path("B")

    a.label("P2_ATT")
    sCNT, sNMAX, sFIRST, sVM = 50, 51, 52, 54
    vT, vLO, vKA, vVA, vG, vM, vT2 = 2, 11, 4, 5, 6, 7, 8
    Q, NEGM, S, O, P, KF, VF = 12, 16, [32, 48], 64, 80, [88, 92], [96, 104]
    IX = 9
    SM = "v_smfmac_f32_32x32x32_bf16"
    SA = opt("--sa", 3); SBK = opt("--sbk", 11)
    I(f"s_mov_b32 s{sVM}, 0xffff")
    I(f"s_mov_b32 s{sVM+1}, 0xffff")
    I(f"v_and_b32 v{vT}, 27, v{vL}")
    I(f"v_cmp_eq_u32 vcc, 16, v{vT}")
    I(f"v_mov_b32 v{vT}, 0x3f803f80")
    I(f"s_lshl_b32 s{sT0}, s{sW}, 10")
    I(f"v_cndmask_b32 v{VF[0]}, 0, v{vT}, vcc")
    for r in range(1, 16): I(f"v_mov_b32 v{VF[0]+r}, v{VF[0]}")
    I(f"s_add_u32 s{sT0}, s{sT0}, {QL}")
    I(f"v_add_u32 v{vT}, s{sT0}, v{vLO}")
    I(f"v_and_b32 v{vT2}, 31, v{vL}")
    I(f"v_lshlrev_b32 v{vT2}, 2, v{vT2}")
    I(f"s_lshl_b32 s{sT0}, s{sW}, 7")
    I(f"s_add_u32 s{sT0}, s{sT0}, {GL}")
    I(f"v_add_u32 v{vT2}, s{sT0}, v{vT2}")
    for r in range(4): I(f"v_mov_b32 v{148+r}, -1")
    I(f"s_mov_b32 s{sNMAX}, 1")
    I(f"s_mov_b32 s53, 8")
    I(f"s_mov_b32 s{sFIRST}, {Y2IT}")
    if ATPRIO: I("s_setprio 2")
    I("s_barrier")
    stamp(a, 5)
    I(f"ds_read_b128 v[{Q}:{Q+3}], v{vT}")
    I(f"ds_read_b32 v{vG}, v{vT2}")
    def hstores():
        for n in range(4):
            if n == 2:
                I(f"s_cmp_eq_u32 s56, 1")
                I(f"s_cbranch_scc1 P2_NOH3")
            I(f"buffer_store_dwordx4 v[{HKR[n]}:{HKR[n]+3}], v{vLO}, s[{SWS}:{SWS+3}], s{76+n} offen{WTF}")
        a.label("P2_NOH3")
        I(f"buffer_store_dwordx4 v[148:151], v{vLO}, s[{SWS}:{SWS+3}], s97 offen{WTF}")
    if not HLATE: hstores()
    a.label("P2_MAXPASS")
    I(f"v_mov_b32 v{vKA}, v{vLO}")
    I(f"v_mov_b32 v{vM}, 0xff800000")
    I(f"s_mov_b32 s{sCNT}, s{sNMAX}")
    a.label("P2_MAXLOOP")
    I(f"ds_read_b128 v[{KF[0]}:{KF[0]+3}], v{vKA}")
    I(f"v_add_u32 v{vKA}, 2048, v{vKA}")
    I("s_waitcnt lgkmcnt(0)")
    I(f"{MF} v[{S[0]}:{S[0]+15}], v[{KF[0]}:{KF[0]+3}], v[{Q}:{Q+3}], 0")
    I("s_nop 11")
    for r in range(8): I(f"v_max3_f32 v{vM}, v{S[0]+2*r}, v{S[0]+2*r+1}, v{vM}")
    I(f"s_sub_u32 s{sCNT}, s{sCNT}, 1")
    I(f"s_cmp_lg_u32 s{sCNT}, 0")
    I("s_cbranch_scc1 P2_MAXLOOP")
    I(f"v_mov_b32 v{vT}, v{vM}")
    I(f"v_mov_b32 v{vKA}, v{vLO}")
    I(f"v_and_b32 v{vT2}, 15, v{vL}")
    I(f"v_permlane32_swap_b32 v{vM}, v{vT}")
    I(f"v_lshlrev_b32 v{vVA}, 4, v{vT2}")
    I(f"v_lshrrev_b32 v{vT2}, 5, v{vL}")
    I(f"v_max_f32 v{vM}, v{vM}, v{vT}")
    I(f"v_lshl_add_u32 v{vVA}, v{vT2}, 8, v{vVA}")
    I(f"v_add_u32 v{vVA}, 1024, v{vVA}")
    def rdK(t, buf): I(f"ds_read_b128 v[{KF[buf]}:{KF[buf]+3}], v{vKA} offset:{2048*t}")
    def rdV(t, buf):
        I(f"s_mov_b64 exec, s[{sVM}:{sVM+1}]")
        I(f"ds_read_b128 v[{VF[buf]}:{VF[buf]+3}], v{vVA} offset:{2048*t}")
        I(f"ds_read_b128 v[{VF[buf]+4}:{VF[buf]+7}], v{vVA} offset:{2048*t+512}")
        I(f"s_mov_b64 exec, -1")
    rdK(0, 0); rdK(1, 1); rdV(0, 0)
    for r in range(16): I(f"v_sub_f32 v{NEGM+r}, 0, v{vM}")
    for r in range(8, 16): I(f"v_mov_b32 v{S[1]+r}, 0")
    I(f"v_mov_b32 v{IX}, 0xdddddddd")
    I("s_waitcnt lgkmcnt(3)")
    I(f"{MF} v[{S[0]}:{S[0]+15}], v[{KF[0]}:{KF[0]+3}], v[{Q}:{Q+3}], v[{NEGM}:{NEGM+15}]")
    for r in range(16): I(f"v_mov_b32 v{O+r}, 0")
    I(f"s_mov_b32 s{sCNT}, 8")
    a.label("P2_LOOP")
    for t in range(8):
        cur, nxt = t % 2, (t + 1) % 2
        sc, sn = S[cur], S[nxt]
        e = lambda k: I(f"v_exp_f32 v{sc+k}, v{sc+k}")
        e(0); e(1)
        I(f"{SM} v[{O}:{O+15}], v[{VF[nxt]+4}:{VF[nxt]+7}], v[{sn+8}:{sn+15}], v{IX}")
        rdV(t + 1, nxt)
        for k in range(2, 2 + SA): e(k)
        I("s_waitcnt lgkmcnt(2)")
        I(f"{MF} v[{sn}:{sn+15}], v[{KF[nxt]}:{KF[nxt]+3}], v[{Q}:{Q+3}], v[{NEGM}:{NEGM+15}]")
        rdK(t + 2, cur)
        for k in range(2 + SA, SBK): e(k)
        I(f"{SM} v[{O}:{O+15}], v[{VF[cur]}:{VF[cur]+3}], v[{sc}:{sc+7}], v{IX}")
        for k in range(SBK, 16): e(k)
    I(f"v_add_u32 v{vKA}, 0x4000, v{vKA}")
    I(f"v_add_u32 v{vVA}, 0x4000, v{vVA}")
    I(f"s_cmp_lg_u32 s53, s{sCNT}")
    I("s_cbranch_scc1 P2_NOBAR0")
    I(f"s_mov_b32 s53, 100")
    if HLATE: hstores()
    I("s_barrier")
    a.label("P2_NOBAR0")
    I(f"s_cmp_lg_u32 s{sFIRST}, s{sCNT}")
    I("s_cbranch_scc1 P2_NOBAR")
    I(f"s_mov_b32 s{sFIRST}, 100")
    I("s_waitcnt vmcnt(0)")
    I("s_barrier")
    stamp(a, 6)
    a.label("P2_NOBAR")
    if ATPRIO:
        I(f"s_cmp_lg_u32 s{sCNT}, {PR1}")
        I("s_cbranch_scc1 P2_NP1")
        I("s_setprio 1")
        a.label("P2_NP1")
        I(f"s_cmp_lg_u32 s{sCNT}, {PR2}")
        I("s_cbranch_scc1 P2_NP2")
        I("s_setprio 0")
        a.label("P2_NP2")
    I(f"s_sub_u32 s{sCNT}, s{sCNT}, 1")
    I(f"s_cmp_lg_u32 s{sCNT}, 0")
    I("s_cbranch_scc1 P2_LOOP")
    I(f"{SM} v[{O}:{O+15}], v[{VF[1]+4}:{VF[1]+7}], v[{S[1]+8}:{S[1]+15}], v{IX}")
    I("s_waitcnt lgkmcnt(0)")
    I("s_nop 11")
    stamp(a, 7)
    I(f"v_mov_b32 v{vT}, v{O+8}")
    I(f"v_rcp_f32 v{vT2}, v{O+8}")
    for r in range(8): I(f"v_fma_f32 v{vT}, v{O+r}, 0, v{vT}")
    I(f"v_cmp_gt_f32 vcc, {fhex(2.0**100)}, v{vT}")
    I(f"v_mul_f32 v{vT2}, v{vT2}, v{vG}")
    I("s_nop 3")
    I(f"s_cmp_eq_u64 vcc, -1")
    I("s_cbranch_scc1 P2_OK")
    I(f"s_cmp_eq_u32 s{sNMAX}, 64")
    I("s_cbranch_scc1 P2_OK")
    I(f"s_mov_b32 s{sNMAX}, 64")
    I("s_branch P2_MAXPASS")
    a.label("P2_OK")
    for r in range(8): I(f"v_mul_f32 v{O+r}, v{O+r}, v{vT2}")
    for r in range(4): I(f"v_cvt_pk_bf16_f32 v{P+r}, v{O+2*r}, v{O+2*r+1}")
    I(f"buffer_store_dwordx4 v[{P}:{P+3}], v{vLO}, s[{SWS}:{SWS+3}], s97 offen sc0 sc1")
    stamp(a, 8)
    stamp_flush(a, 9, SWS, sW, 0)
    I("s_endpgm")

    COMP[0] = False
    a.label("P2_SHADOW")
    sJ = 63
    sN = 8
    SO = 12
    sA0, sA1, sB0, sB1 = 80, 81, 82, 83
    sKV, sM0 = 20, 21
    sOC, sOR, sWA0, sWA1, sOB0, sOB1, sLS, sOB2, sOB3 = 22, 23, 24, 25, 26, 27, 84, 85, 86
    sTO = 87
    vLO = 3
    I(f"s_load_dwordx2 s[{SO}:{SO+1}], s[0:1], 64")
    I(f"s_setprio {SHPRIO2}")
    I(f"v_mov_b32 v{vLO}, v{vST}")
    I(f"v_mov_b32 v2, 0")
    I(f"s_mov_b32 s{sTO}, 0x40000")
    I(f"s_and_b32 s{sT0}, s2, 6")
    I(f"s_and_b32 s{sT1}, s2, 1")
    I(f"s_lshl_b32 s{sT1}, s{sT1}, 6")
    I(f"s_or_b32 s{sT0}, s{sT0}, s{sT1}")
    I(f"v_and_b32 v6, 1, v{vL}")
    I(f"v_bfe_u32 v7, v{vL}, 1, 3")
    I(f"v_lshl_or_b32 v6, v7, 3, v6")
    I(f"v_bfe_u32 v7, v{vL}, 4, 1")
    I(f"v_lshl_or_b32 v6, v7, 7, v6")
    I(f"v_or_b32 v6, s{sT0}, v6")
    I(f"v_xor_b32 v7, 1, v7")
    I(f"v_lshlrev_b32 v7, 2, v7")
    I(f"v_xor_b32 v6, v7, v6")
    I(f"s_lshr_b32 s{sT0}, s{sQB}, 2")
    I(f"s_and_b32 s{sT1}, s{sQB}, 3")
    I(f"s_lshl_b32 s{sT1}, s{sT1}, 4")
    I(f"s_or_b32 s{sT0}, s{sT0}, s{sT1}")
    I(f"v_and_b32 v7, 6, v{vL}")
    I(f"v_or_b32 v7, s{sT0}, v7")
    I(f"v_bfe_u32 v12, v{vL}, 4, 1")
    I(f"v_lshl_or_b32 v7, v12, 3, v7")
    I(f"v_and_b32 v12, 1, v{vL}")
    I(f"v_lshl_or_b32 v7, v12, 6, v7")
    I(f"v_bfe_u32 v12, v{vL}, 3, 1")
    I(f"v_lshl_or_b32 v7, v12, 7, v7")
    I(f"v_cmp_gt_u32 vcc, 32, v{vL}")
    I(f"s_lshl_b32 s{sKV}, s{sH}, 17")
    I(f"s_lshl_b32 s{sM0}, s{sJ}, 10")
    I(f"v_cndmask_b32 v6, v7, v6, vcc")
    I(f"v_lshlrev_b32 v6, 6, v6")
    I(f"s_add_u32 s{sKV}, s{sKV}, s{sM0}")
    I(f"s_add_u32 s{sKV}, s{sKV}, {KV_OFF}")
    I(f"s_lshl_b32 s{sT2}, s2, 6")
    I(f"s_add_u32 s{sT2}, s{sT2}, {FL_OFF}")
    I(f"s_mov_b32 s{sLS}, {FL_OFF}")
    I(f"global_load_dwordx2 v[4:5], v2, s[100:101] sc0 sc1")
    I(f"buffer_load_dwordx2 v[8:9], v6, s[{SWS}:{SWS+3}], s{sLS} offen sc0 sc1")
    I("s_waitcnt vmcnt(2) lgkmcnt(0)")
    I("s_barrier")
    I("s_waitcnt vmcnt(0)")
    stamp(a, 2)
    srd(a, SO, 2048*512*2)
    a.label("P2_F1CHK")
    I(f"v_readfirstlane_b32 s{sN}, v4")
    I(f"v_readfirstlane_b32 s{sN+1}, v5")
    I("s_nop 1")
    I(f"v_cmp_eq_u64 vcc, s[{sN}:{sN+1}], v[8:9]")
    I(f"s_cmp_eq_u32 s{sN}, 0")
    I("s_cbranch_scc1 P2_F1RE")
    I("s_nop 3")
    I(f"s_cmp_eq_u64 vcc, -1")
    I("s_cbranch_scc1 P2_F1GOT")
    a.label("P2_F1RE")
    I(f"s_cmp_eq_u32 s{sTO}, 0")
    I(f"s_cbranch_scc1 P2_F1GOT")
    I(f"s_sub_u32 s{sTO}, s{sTO}, 1")
    I(f"s_sleep {POLLS}")
    I(f"global_load_dwordx2 v[4:5], v2, s[100:101] sc0 sc1")
    I(f"buffer_load_dwordx2 v[8:9], v6, s[{SWS}:{SWS+3}], s{sLS} offen sc0 sc1")
    I("s_waitcnt vmcnt(0)")
    I("s_branch P2_F1CHK")
    a.label("P2_F1GOT")
    stamp(a, 3)
    def kvdma():
        I(f"s_mov_b32 m0, s{sM0}")
        I(f"s_add_u32 s{sM0}, s{sM0}, 4096")
        I(f"buffer_load_dwordx4 v{vLO}, s[{SWS}:{SWS+3}], s{sKV} offen lds")
        I(f"s_add_u32 s{sKV}, s{sKV}, 4096")
    I(f"s_lshl_b32 s{sT0}, s{sH}, 6")
    I(f"s_lshl_b32 s{sT1}, s{sQB}, 3")
    I(f"s_add_u32 s{sT0}, s{sT0}, s{sT1}")
    I(f"s_lshl_b32 s{sT1}, s{sJ}, 1")
    I(f"s_add_u32 s{sT0}, s{sT0}, s{sT1}")
    I(f"s_lshl_b32 s{sT0}, s{sT0}, 10")
    I(f"s_lshl_b32 s{sT1}, s{sJ}, 11")
    I(f"s_add_u32 m0, s{sT1}, {QL}")
    I(f"s_lshl_b32 s{sT1}, s{sQB}, 10")
    I(f"buffer_load_dwordx4 v{vLO}, s[{SWS}:{SWS+3}], s{sT0} offen lds")
    I(f"buffer_load_dwordx4 v{vLO}, s[{SWS}:{SWS+3}], s{sT0} offen offset:1024 lds")
    I(f"s_mov_b32 m0, {GL}")
    I(f"s_add_u32 s{sT1}, s{sT1}, {G_OFF}")
    I(f"buffer_load_dwordx4 v{vLO}, s[{SWS}:{SWS+3}], s{sT1} offen lds")
    for half in range(3):
        I(f"s_mov_b32 s{sCNT}, {(KV0, 16 - KV0, 16)[half]}")
        a.label(f"P2_KVLOOP{half}")
        kvdma()
        I(f"s_sub_u32 s{sCNT}, s{sCNT}, 1")
        I(f"s_cmp_lg_u32 s{sCNT}, 0")
        I(f"s_cbranch_scc1 P2_KVLOOP{half}")
        if half == 0:
            I(f"s_waitcnt vmcnt(0)")
            I("s_barrier")
            stamp(a, 4)
        if half == 1:
            I("s_waitcnt vmcnt(0)")
            I("s_barrier")
            srd(a, SWO, 512*512*2); srd(a, SW2, 1792*512*2)
            I(f"s_lshl_b32 s{sLS}, s{sJ}, 12")
            I(f"s_add_u32 s{sLS}, s{sLS}, {131072}")
            I(f"v_lshrrev_b32 v12, 5, v{vL}")
            I(f"v_bfe_u32 v13, v{vL}, 2, 2")
            I(f"v_and_b32 v14, 3, v{vL}")
            I(f"v_bfe_u32 v15, v{vL}, 4, 1")
            I(f"v_lshlrev_b32 v10, 9, v12")
            I(f"v_lshl_add_u32 v10, v13, 7, v10")
            I(f"v_lshrrev_b32 v16, 1, v13")
            I(f"v_lshl_add_u32 v10, v16, 6, v10")
            I(f"v_lshl_add_u32 v10, v15, 4, v10")
            I(f"v_and_b32 v16, 1, v14")
            I(f"v_lshl_add_u32 v10, v16, 5, v10")
            I(f"v_lshrrev_b32 v16, 1, v14")
            I(f"v_lshl_add_u32 v10, v16, 3, v10")
            I(f"v_add_u32 v10, s{sLS}, v10")
            I(f"v_xor_b32 v11, 64, v10")
            I(f"s_lshl_b32 s52, s2, 2")
            I(f"s_add_u32 s52, s52, s{sJ}")
            for n in range(2):
                if n == 1:
                    I(f"s_cmp_ge_u32 s52, 128")
                    I(f"s_cbranch_scc1 P2_TR1")
                    I(f"s_add_u32 s52, s52, 1024")
                I(f"s_mul_i32 s53, s52, 7282")
                I(f"s_lshr_b32 s53, s53, 20")
                I(f"s_mul_i32 s54, s53, 144")
                I(f"s_sub_u32 s54, s52, s54")
                I(f"s_add_u32 s{56+n}, s52, s52")
                I(f"s_sub_u32 s{56+n}, s{56+n}, s54")
                I(f"s_lshl_b32 s{56+n}, s{56+n}, 10")
                I(f"s_lshl_b32 s{sT0}, s54, 14")
                I(f"s_lshl_b32 s{sT1}, s53, 7")
                I(f"s_add_u32 s{sT0}, s{sT0}, s{sT1}")
                I(f"s_add_u32 m0, s{sLS}, {2048*n}")
                I(f"s_cmp_ge_u32 s54, 32")
                I(f"s_cbranch_scc1 P2_TW2{n}")
                I(f"s_add_u32 s{sT1}, s{sT0}, {8192 - 1024}")
                I(f"buffer_load_dwordx4 v{vTD}, s[{SWO}:{SWO+3}], s{sT0} offen lds")
                I(f"buffer_load_dwordx4 v{vTD}, s[{SWO}:{SWO+3}], s{sT1} offen offset:1024 lds")
                I(f"s_branch P2_TD{n}")
                a.label(f"P2_TW2{n}")
                I(f"s_sub_u32 s{sT0}, s{sT0}, {32*16384}")
                I(f"s_add_u32 s{sT1}, s{sT0}, {8192 - 1024}")
                I(f"buffer_load_dwordx4 v{vTD}, s[{SW2}:{SW2+3}], s{sT0} offen lds")
                I(f"buffer_load_dwordx4 v{vTD}, s[{SW2}:{SW2+3}], s{sT1} offen offset:1024 lds")
                a.label(f"P2_TD{n}")
            a.label("P2_TR1")
    I("s_waitcnt vmcnt(16)")
    for n in range(2):
        for ct in range(2):
            b = 24 + 8*n + 4*ct
            I(f"ds_read_b64_tr_b16 v[{b}:{b+1}], v{10+ct} offset:{2048*n}")
            I(f"ds_read_b64_tr_b16 v[{b+2}:{b+3}], v{10+ct} offset:{2048*n+1024}")
    I("s_waitcnt lgkmcnt(0)")
    for n in range(2):
        if n == 1:
            I(f"s_cmp_lt_u32 s52, 1024")
            I(f"s_cbranch_scc1 P2_TR2")
        for ct in range(2):
            b = 24 + 8*n + 4*ct
            I(f"s_add_u32 s7, s{56+n}, {WF_OFF + ct*144*1024}")
            I(f"buffer_store_dwordx4 v[{b}:{b+3}], v{vLO}, s[{SWS}:{SWS+3}], s7 offen{WTF}")
    a.label("P2_TR2")
    I(f"s_lshr_b32 s{sT0}, s{sJ}, 1")
    I(f"s_lshl_b32 s{sT1}, s{sQB}, 1")
    I(f"s_add_u32 s{sA0}, s{sT1}, s{sT0}")
    I(f"s_xor_b32 s{sA1}, s{sA0}, 1")
    I(f"s_and_b32 s{sT0}, s{sJ}, 1")
    I(f"s_lshl_b32 s{sT1}, s{sH}, 1")
    I(f"s_add_u32 s{sB0}, s{sT1}, s{sT0}")
    I(f"s_xor_b32 s{sB1}, s{sB0}, 1")
    I(f"s_mov_b32 s{sOC}, s{sA0}")
    I(f"s_mov_b32 s{sOR}, s{sB0}")
    I(f"s_lshl_b32 s32, s{sB0}, 7")
    I(f"s_add_u32 s32, s32, {G_OFF}")
    I(f"s_lshl_b32 s33, s{sB1}, 7")
    I(f"s_add_u32 s33, s33, {G_OFF}")
    I(f"s_lshl_b32 s{sT0}, s{sJ}, 13")
    for d, r in ((sWA0, sA0), (sWA1, sA1)):
        I(f"s_mul_i32 s{d}, s{r}, {144*1024}")
        I(f"s_add_u32 s{d}, s{d}, s{sT0}")
        I(f"s_add_u32 s{d}, s{d}, {WF_OFF}")
    for d, r in ((sOB0, sB0), (sOB1, sB1)):
        I(f"s_lshl_b32 s{d}, s{r}, 15")
        I(f"s_add_u32 s{d}, s{d}, s{sT0}")
        I(f"s_add_u32 s{d}, s{d}, {OF_OFF}")
    I(f"s_mul_i32 s{sT0}, s{sJ}, {28*1024}")
    for r, off in ((sA0, WF_OFF), (sA1, WF_OFF), (sB0, AF_OFF), (sB1, AF_OFF)):
        I(f"s_mul_i32 s{r}, s{r}, {144*1024}")
        I(f"s_add_u32 s{r}, s{r}, s{sT0}")
        I(f"s_add_u32 s{r}, s{r}, {off + 32*1024}")
    ACC2, FR = 8, 72
    I(f"s_lshr_b32 s{sT0}, s{sH}, 1")
    I(f"s_lshr_b32 s{sT1}, s{sT0}, 3")
    I(f"s_and_b32 s{sT0}, s{sT0}, 7")
    I(f"s_lshl_b32 s{sT0}, s{sT0}, 3")
    I(f"s_or_b32 s{sT0}, s{sT0}, s{sT1}")
    I(f"v_and_b32 v6, 6, v{vL}")
    I(f"v_and_b32 v7, 1, v{vL}")
    I(f"v_lshl_or_b32 v6, v7, 6, v6")
    I(f"v_bfe_u32 v7, v{vL}, 3, 1")
    I(f"v_lshl_or_b32 v6, v7, 7, v6")
    I(f"v_or_b32 v6, s{sT0}, v6")
    I(f"s_mul_i32 s{sT0}, s{sQB}, 36")
    I(f"v_subrev_u32 v7, 16, v{vL}")
    I(f"v_min_u32 v7, 35, v7")
    I(f"v_add_u32 v7, s{sT0}, v7")
    I(f"v_and_b32 v7, 255, v7")
    I(f"v_cmp_gt_u32 vcc, 16, v{vL}")
    I(f"s_add_u32 s{sT2}, s{sT2}, {F2_OFF - FL_OFF}")
    I(f"s_mov_b32 s{sLS}, {F2_OFF}")
    I(f"v_cndmask_b32 v6, v7, v6, vcc")
    I(f"v_lshlrev_b32 v6, 6, v6")
    I(f"s_lshr_b32 s{sT0}, s{sH}, 2")
    I(f"s_lshl_b32 s{sT0}, s{sT0}, 5")
    I(f"v_and_b32 v7, 31, v{vL}")
    I(f"v_add_u32 v7, s{sT0}, v7")
    I(f"v_lshlrev_b32 v7, 6, v7")
    I("s_waitcnt vmcnt(0)")
    I("s_barrier")
    stamp(a, 5)
    I(f"s_cmp_lg_u32 s{sJ}, 0")
    I("s_cbranch_scc1 P2_F2POLL")
    I("s_mov_b64 exec, 1")
    I(f"buffer_store_dwordx2 v[4:5], v2, s[{SWS}:{SWS+3}], s{sT2} offen sc0 sc1")
    I("s_mov_b64 exec, -1")
    def pollflags(vaddr, lab, done, sl):
        a.label(lab)
        I(f"buffer_load_dwordx2 v[{FR+88}:{FR+89}], v{vaddr}, s[{SWS}:{SWS+3}], s{sKV} offen sc0 sc1")
        I("s_waitcnt vmcnt(0)")
        I(f"v_cmp_eq_u64 vcc, s[{sN}:{sN+1}], v[{FR+88}:{FR+89}]")
        I("s_nop 4")
        I(f"s_cmp_eq_u64 vcc, -1")
        I(f"s_cbranch_scc1 {done}")
        I(f"s_cmp_eq_u32 s{sTO}, 0")
        I(f"s_cbranch_scc1 {done}")
        I(f"s_sub_u32 s{sTO}, s{sTO}, 1")
        I(f"s_sleep {sl}")
        I(f"s_branch {lab}")
    a.label("P2_F2POLL")
    I(f"s_mov_b32 s{sKV}, {F2_OFF}")
    pollflags(6, "P2_F2P", "P2_F2GOT", 8)
    a.label("P2_F2GOT")
    stamp(a, 6)
    def ld(u):
        fb = FR + 16*u
        for q, r in enumerate((sA0, sB0, sA1, sB1)):
            I(f"buffer_load_dwordx4 v[{fb+4*q}:{fb+4*q+3}], v{vLO}, s[{SWS}:{SWS+3}], s{r} offen offset:{1024*u}")
    def mm4(A0, A1, B0, B1):
        for tau, (A, B) in ((3, (A1, B1)), (2, (A1, B0)), (1, (A0, B1)), (0, (A0, B0))):
            acc = ACC2 + 16*tau
            I(f"{MF} v[{acc}:{acc+15}], v[{A}:{A+3}], v[{B}:{B+3}], v[{acc}:{acc+15}]")
    def mmf(fb): mm4(fb, fb+8, fb+4, fb+12)
    for u in range(4): ld(u)
    I(f"s_setprio 0")
    I(f"s_mov_b32 s{sCNT}, 6")
    for r in (sA0, sA1, sB0, sB1): I(f"s_add_u32 s{r}, s{r}, 4096")
    I("s_waitcnt vmcnt(12)")
    for tau, (A, B) in ((3, (FR+8, FR+12)), (2, (FR+8, FR+4)), (1, (FR, FR+12)), (0, (FR, FR+4))):
        acc = ACC2 + 16*tau
        I(f"{MF} v[{acc}:{acc+15}], v[{A}:{A+3}], v[{B}:{B+3}], 0")
    I("s_branch P2_GIN")
    a.label("P2_GLOOP")
    for r in (sA0, sA1, sB0, sB1): I(f"s_add_u32 s{r}, s{r}, 4096")
    for u in range(4):
        I("s_waitcnt vmcnt(12)")
        mmf(FR + 16*u)
        if u == 0: a.label("P2_GIN")
        ld(u)
    I(f"s_sub_u32 s{sCNT}, s{sCNT}, 1")
    I(f"s_cmp_lg_u32 s{sCNT}, 0")
    I("s_cbranch_scc1 P2_GLOOP")
    WA, OB = 72, 104
    for u in range(4):
        I(f"s_waitcnt vmcnt({12 - 4*u})")
        mmf(FR + 16*u)
    for s_ in range(4):
        for q, r in ((0, sWA0), (1, sWA1)):
            b = WA + 8*s_ + 4*q
            I(f"buffer_load_dwordx4 v[{b}:{b+3}], v{vLO}, s[{SWS}:{SWS+3}], s{r} offen offset:{1024*s_}")
    I(f"s_lshl_b32 s{sLS}, s{sJ}, 13")
    I(f"s_add_u32 s{sLS}, s{sLS}, 131072")
    for q, r in ((0, sWA0), (1, sWA1)):
        I(f"s_add_u32 m0, s{sLS}, {4096*q}")
        I(f"s_add_u32 s{sT0}, s{r}, 4096")
        for s_ in range(4):
            I(f"buffer_load_dwordx4 v{vLO}, s[{SWS}:{SWS+3}], s{sT0} offen offset:{1024*s_} lds")
    stamp(a, 7)
    I(f"s_setprio {SHPRIO2}")
    pollflags(7, "P2_F3P", "P2_F3GOT", 8)
    a.label("P2_F3GOT")
    I(f"v_and_b32 v2, 31, v{vL}")
    I(f"v_lshlrev_b32 v2, 2, v2")
    I(f"buffer_load_dword v4, v2, s[{SWS}:{SWS+3}], s32 offen")
    I(f"buffer_load_dword v5, v2, s[{SWS}:{SWS+3}], s33 offen")
    I("s_waitcnt vmcnt(0)")
    I(f"v_sub_f32 v4, 1.0, v4")
    I(f"v_sub_f32 v5, 1.0, v5")
    for tau in (3, 2, 1, 0):
        for k in range(16): I(f"v_mul_f32 v{ACC2+16*tau+k}, v{ACC2+16*tau+k}, v{4 + (tau & 1)}")
    I(f"s_add_u32 s{sOB2}, s{sOB0}, 4096")
    I(f"s_add_u32 s{sOB3}, s{sOB1}, 4096")
    I(f"v_add_u32 v2, s{sLS}, v{vLO}")
    I(f"s_mul_i32 s{sT0}, s{sJ}, 12288")
    I(f"v_add_u32 v4, s{sT0}, v{vLO}")
    for r in (1, 2, 3):
        I(f"s_xor_b32 s{sT0}, s{sJ}, {r}")
        I(f"s_mul_i32 s{sT0}, s{sT0}, 12288")
        I(f"v_add_u32 v{4+r}, s{sT0}, v{vLO}")
    I("s_waitcnt vmcnt(0)")
    I("s_barrier")
    stamp(a, 8)
    def ldo(s_):
        for q in range(2):
            r = (sOB0, sOB1)[q] if s_ < 4 else (sOB2, sOB3)[q]
            b = OB + 8*s_ + 4*q
            I(f"buffer_load_dwordx4 v[{b}:{b+3}], v{vLO}, s[{SWS}:{SWS+3}], s{r} offen offset:{1024*(s_%4)} sc0 sc1")
    for s_ in range(8): ldo(s_)
    for s_ in range(8):
        b = OB + 8*s_
        a.label(f"P2_CHK{s_}")
        I(f"s_waitcnt vmcnt({14 - 2*s_})")
        I(f"v_max3_u32 v0, v{b}, v{b+1}, v{b+2}")
        I(f"v_max3_u32 v0, v{b+3}, v{b+4}, v0")
        I(f"v_max3_u32 v0, v{b+5}, v{b+6}, v0")
        I(f"v_max_u32 v0, v{b+7}, v0")
        I(f"v_cmp_eq_u32 vcc, -1, v0")
        if s_ >= 4: I("s_waitcnt lgkmcnt(%d)" % (2*(7 - s_)))
        else: I("s_nop 0")
        I("s_nop 2")
        I(f"s_cbranch_vccnz P2_RETRY{s_}")
        a.label(f"P2_GO{s_}")
        wa = WA + 8*(s_ % 4)
        mm4(wa, wa+4, b, b+4)
        if s_ < 4:
            for q in range(2):
                I(f"ds_read_b128 v[{wa+4*q}:{wa+4*q+3}], v2 offset:{4096*q + 1024*s_}")
    I(f"s_lshl_b32 s{sT0}, s{sOR}, 15")
    I(f"s_lshl_b32 s{sT1}, s{sOC}, 6")
    I(f"s_add_u32 s{sT0}, s{sT0}, s{sT1}")
    I(f"v_and_b32 v2, 31, v{vL}")
    I(f"v_lshlrev_b32 v2, 10, v2")
    I(f"v_lshrrev_b32 v{vL}, 5, v{vL}")
    I(f"v_lshl_add_u32 v2, v{vL}, 5, v2")
    I("s_nop 2")
    for r in (3, 2, 1):
        for q in range(4):
            b = ACC2 + 16*r + 4*q
            I(f"ds_write_b128 v{4+r}, v[{b}:{b+3}] offset:{(r-1)*4096 + q*1024}")
    I("s_waitcnt lgkmcnt(0)")
    I("s_barrier")
    for r in range(3):
        for q in range(4):
            b = FR + 16*r + 4*q
            I(f"ds_read_b128 v[{b}:{b+3}], v4 offset:{r*4096 + q*1024}")
    for r in range(3):
        I(f"s_waitcnt lgkmcnt({8-4*r})")
        for k in range(16): I(f"v_add_f32 v{ACC2+k}, v{ACC2+k}, v{FR+16*r+k}")
    for r in range(8): I(f"v_cvt_pk_bf16_f32 v{FR+r}, v{ACC2+2*r}, v{ACC2+2*r+1}")
    I(f"buffer_store_dwordx4 v[{FR}:{FR+3}], v2, s[{SO}:{SO+3}], s{sT0} offen")
    I(f"buffer_store_dwordx4 v[{FR+4}:{FR+7}], v2, s[{SO}:{SO+3}], s{sT0} offen offset:16")
    if DBG:
        I("s_waitcnt vmcnt(0)")
        I("s_mov_b32 s65, s72")
    stamp(a, 8)
    stamp_flush(a, 9, SWS, sW, 0)
    I("s_endpgm")
    for s_ in range(8):
        a.label(f"P2_RETRY{s_}")
        I(f"s_cmp_eq_u32 s{sTO}, 0")
        I(f"s_cbranch_scc1 P2_GO{s_}")
        I(f"s_sub_u32 s{sTO}, s{sTO}, 1")
        if POLLS: I(f"s_sleep {POLLS}")
        for q_ in range(s_, 8): ldo(q_)
        I(f"s_branch P2_CHK{s_}")
    a.label("MK_END")
    I("s_endpgm")
    return a.text(), kdesc(KN, NV, 102, NV), 163840

if __name__ == "__main__":
    txt, kd, lds = gen()
    ref = open(f"cdna_kernels/{NAME}.s.ref").read().splitlines()
    head = [l for l in ref if l.startswith(";") and "@launch" not in l and "Override launch" not in l and "grid=ceil" not in l and "TODO" not in l][:12]
    s = "\n".join(head) + "\n" + f"; @launch grid=(256,1,1) block=(768,1,1) lds={lds}\n"
    s += '.amdgcn_target "amdgcn-amd-amdhsa--gfx950"\n.text\n' + txt + '.section .rodata,"a"\n' + kd
    open(sys.argv[1], "w").write(s)
```

```python
from common import *
PKMISH = opt("--pkmish", 1)
WTF = " sc0 sc1"
TRIT = opt("--trit", 4)
PFIT = opt("--pfit", 3)
TRIT2 = opt("--trit2", 6)
ROTX = opt("--rotx", 7)
ROTR = opt("--rotr", 1)
SHPRIO2 = opt("--shprio2", 3)
ATPRIO = opt("--atprio", 1)
POLLS = opt("--polls", 8)
MPF = opt("--mpf", 0)
DBG2 = opt('--dbg2', 0)
WT1 = opt('--wt1', 'sc0_sc1').replace('_', ' ')
EXP = opt('--exp', 0)
KV0 = opt('--kv0', 5)
NST = 5
PR1 = opt('--pr1', 5)
PR2 = opt('--pr2', 2)
LFIRST = opt('--lfirst', 0)
HLATE = opt('--hlate', 1)
TLBW = opt('--tlbw', 0)
GIT = opt('--git', 1)
DEP = opt('--dep', 2)
STG = 32768
SB0 = 98304
XAB = 131072
QL = 147456
GL = 155648
F1IT = opt('--f1it', 1)
Y2IT = opt('--y2it', 6)
F2_OFF = FL_OFF + 16384
KN = NAME + "_kernel"
MF = "v_mfma_f32_32x32x16_bf16"

_stamp = stamp
def stamp(a, idx, comp=True):
    if DBG2 and 1 <= idx <= 7 and COMP[0]: return
    _stamp(a, idx)
COMP = [True]
def gen():
    a = Asm()
    I = a.i
    a.raw(khead(KN))
    I("s_cmp_ge_u32 s2, 256")
    I("s_cbranch_scc1 MK_END")
    SX, SWQ, SWO, SW1, SB1, SW2, SG, SWS = 8, 12, 16, 20, 24, 28, 32, 36
    for s, off in [(SX, 0), (SWQ, 8), (SW1, 32), (SWO, 16), (SB1, 40), (SW2, 48), (SG, 56), (SWS, 80), (100, 72)]:
        I(f"s_load_dwordx2 s[{s}:{s+1}], s[0:1], {off}")
    srd(a, SX, 2048*512*2); srd(a, SWQ, 512*1536*2); srd(a, SW1, 512*1792*2); srd(a, SWS, WS_BYTES)
    sW, sC, sRB, sRT, sT0, sT1, sT2, sHF, sIT = 40, 41, 42, 43, 44, 45, 46, 47, 48
    sRS = 58
    sCOL = [[59, 60], [61, 62]]
    sL2E, sTWO, sQS, s30 = 84, 86, 5, 6
    sTR = 94
    sH, sQB = 95, 96
    vL = 1
    t0, t1, t2, t3 = 2, 3, 4, 5
    vXE, vXO, vWQ, vWF, vWS, vST, vSV, vTS = 6, 7, 8, 9, 10, 11, 12, 13
    vXR = [14, 15, 16, 17]
    vTP = [18]
    vTT = [20, 21]
    vTD = 22
    vG0, vG1 = 23, 24
    XF = [28, 32, 36, 40]
    WF = [[44 + 8*k, 48 + 8*k] for k in range(4)]
    ACC = [76, 92, 108, 124]
    PK = 44
    BIAS, BONE, GX, GW = 140, 146, 150, 154
    NV = 168
    HKR = [152, 156, 160, 164]
    I(f"v_and_b32 v{vL}, 63, v0")
    I(f"v_lshrrev_b32 v{t0}, 6, v0")
    I(f"s_and_b32 s{sT0}, s2, 1")
    I(f"v_readfirstlane_b32 s{sW}, v{t0}")
    I(f"s_lshl_b32 s{sT0}, s{sT0}, 3")
    I(f"s_bfe_u32 s{sT1}, s2, 0x30003")
    I(f"s_add_u32 s{sRB}, s{sT0}, s{sT1}")
    I(f"s_and_b32 s{sC}, s2, 6")
    I(f"s_bfe_u32 s{sT0}, s2, 0x10006")
    I(f"s_add_u32 s{sC}, s{sC}, s{sT0}")
    if LFIRST:
        I(f"s_add_u32 s{sW}, s{sW}, 8")
        I(f"s_sub_u32 s{sT0}, s{sW}, 12")
        I(f"s_cmp_ge_u32 s{sW}, 12")
        I(f"s_cselect_b32 s{sW}, s{sT0}, s{sW}")
        I(f"v_subrev_u32 v0, 256, v0")
    I(f"s_lshr_b32 s{sHF}, s{sW}, 2")
    I(f"s_and_b32 s{sT0}, s{sW}, 3")
    I(f"s_lshl_b32 s{sRT}, s{sRB}, 2")
    I(f"s_add_u32 s{sRT}, s{sRT}, s{sT0}")
    I(f"v_lshrrev_b32 v{t0}, 3, v{vL}")
    I(f"v_and_b32 v{t1}, 7, v{vL}")
    I(f"v_lshrrev_b32 v{t2}, 1, v{t0}")
    I(f"v_xor_b32 v{t3}, v{t1}, v{t2}")
    I(f"v_lshlrev_b32 v{vXE}, 10, v{t0}")
    I(f"v_lshl_add_u32 v{vXE}, v{t3}, 4, v{vXE}")
    I(f"v_xor_b32 v{vXO}, 64, v{vXE}")
    I(f"v_and_b32 v{t2}, 1, v{t2}")
    I(f"v_lshlrev_b32 v{t2}, 2, v{t2}")
    I(f"v_xor_b32 v{t3}, v{t1}, v{t2}")
    I(f"v_lshlrev_b32 v{t3}, 4, v{t3}")
    I(f"v_mul_u32_u24 v{vWQ}, 3072, v{t0}")
    I(f"v_add_u32 v{vWQ}, v{vWQ}, v{t3}")
    I(f"v_mul_u32_u24 v{vWF}, 3584, v{t0}")
    I(f"v_add_u32 v{vWF}, v{vWF}, v{t3}")
    I(f"v_lshl_add_u32 v{vTD}, v{t0}, 10, v{t3}")
    I(f"v_lshlrev_b32 v{vST}, 4, v{vL}")
    I(f"s_and_b32 s{sT0}, s2, 7")
    I(f"s_lshl_b32 s{sT0}, s{sT0}, 2")
    I(f"s_bfe_u32 s{sT1}, s2, 0x20003")
    I(f"s_add_u32 s{sH}, s{sT0}, s{sT1}")
    I(f"s_lshr_b32 s{sQB}, s2, 5")
    I(f"s_cmp_ge_u32 s2, 128")
    I("s_cbranch_scc1 P1_B")

    def path(ty):
        isA = ty == "A"
        a.vm = []; a.lg = []
        if isA:
            sw = [["Q", "K"], ["F", "S"]]
            I(f"s_lshl_b32 s{sCOL[0][0]}, s{sC}, 7")
            I(f"s_xor_b32 s{sCOL[0][1]}, s{sCOL[0][0]}, 512")
            I(f"s_add_u32 s{sCOL[0][1]}, s{sCOL[0][1]}, 1024")
            I(f"s_add_u32 s{sCOL[1][0]}, s{sCOL[0][0]}, {16*128}")
            I(f"s_lshl_b32 s{sCOL[1][1]}, s{sC}, 6")
            I(f"s_add_u32 s{sCOL[1][1]}, s{sCOL[1][1]}, {24*128}")
            I(f"v_lshrrev_b32 v{t0}, 2, v{vL}")
            I(f"v_mul_u32_u24 v{vWS}, 3584, v{t0}")
            I(f"v_and_b32 v{t0}, 3, v{vL}")
            I(f"v_lshl_add_u32 v{vWS}, v{t0}, 4, v{vWS}")
        else:
            sw = [["V"], ["F", "F"]]
            I(f"s_lshl_b32 s{sCOL[0][0]}, s{sC}, 7")
            I(f"s_add_u32 s{sCOL[0][0]}, s{sCOL[0][0]}, 2048")
            I(f"s_lshl_b32 s{sCOL[1][0]}, s{sC}, 8")
            I(f"s_add_u32 s{sCOL[1][1]}, s{sCOL[1][0]}, 128")
        I(f"s_cmp_ge_u32 s{sW}, 8")
        I(f"s_cbranch_scc0 P1{ty}_COMP")
        sJ, sCH, sSTG, sXB = 63, 57, 58, 53
        sPB = [[49, 50], [51, 52]]
        sKXl, sKWl, sSXl, sSPl, sSSl = 97, 98, 54, 55, 56
        I(f"s_sub_u32 s{sJ}, s{sW}, 8")
        I(f"s_and_b32 s{sCH}, s2, {ROTX}")
        if ROTR:
            I(f"s_bfe_u32 s{sT0}, s2, 0x30003")
            I(f"s_and_b32 s{sT0}, s{sT0}, {ROTR}")
            I(f"s_add_u32 s{sCH}, s{sCH}, s{sT0}")
            I(f"s_and_b32 s{sCH}, s{sCH}, 7")
        I(f"s_mov_b32 s{sSTG}, {SB0}")
        I(f"s_lshl_b32 s{sXB}, s{sRB}, 2")
        I(f"s_add_u32 s{sXB}, s{sXB}, s{sJ}")
        I(f"s_lshl_b32 s{sXB}, s{sXB}, 15")
        I(f"s_mul_i32 s{sT1}, s{sJ}, {16*3072}")
        I(f"s_mul_i32 s{sT2}, s{sJ}, {16*3584}")
        for k in range(2):
            for p in range(len(sw[k])):
                I(f"s_add_u32 s{sPB[k][p]}, s{sCOL[k][p]}, s{sT2 if k else sT1}")
        I(f"s_mov_b32 s{sIT}, 0")
        I("s_waitcnt lgkmcnt(0)")
        stamp(a, 0)
        def dma(ms, mc, k, pb, oc, vo, S_):
            I(f"s_add_u32 m0, s{ms}, {mc}")
            if pb is None:
                I(f"s_add_u32 s7, s{k}, {oc}")
            else:
                I(f"s_add_u32 s7, s{k}, s{pb}")
                if oc: I(f"s_add_u32 s7, s7, {oc}")
            I(f"buffer_load_dwordx4 v{vo}, s[{S_}:{S_+3}], s7 offen lds")
        nds = [(0 if (k == 1 and EXP & 4) else 4) + sum(1 if kd == "S" else 2 for kd in sw[k]) for k in range(2)]
        for k in range(2):
            ld = 3584 if k else 3072
            a.label(f"P1{ty}_LD{k}")
            I(f"s_lshl_b32 s{sKXl}, s{sCH}, 7")
            I(f"s_add_u32 s{sKXl}, s{sKXl}, s{sXB}")
            I(f"s_mul_i32 s{sKWl}, s{sCH}, {64*ld}")
            I(f"s_lshl_b32 s{sT0}, s{sJ}, 10")
            I(f"s_add_u32 s{sSSl}, s{sSTG}, s{sT0}")
            I(f"s_add_u32 s{sSPl}, s{sSSl}, s{sT0}")
            I(f"s_lshl_b32 s{sT0}, s{sT0}, 1")
            I(f"s_add_u32 s{sSXl}, s{sSPl}, s{sT0}")
            if not (k == 1 and EXP & 4):
                for i in range(4): dma(sSXl, 1024*i, sKXl, None, 8192*i, vXO if i % 2 else vXE, SX)
            for p, kd in enumerate(sw[k]):
                if kd == "S":
                    dma(sSSl, 16384 + 8192*p, sKWl, sPB[k][p], 0, vWS, SW1)
                else:
                    for i in range(2):
                        dma(sSPl, 16384 + 8192*p + 1024*i, sKWl, sPB[k][p], 8*i*ld, vWF if k else vWQ, SW1 if k else SWQ)
            I(f"s_add_u32 s{sCH}, s{sCH}, 1")
            I(f"s_and_b32 s{sCH}, s{sCH}, 7")
            I(f"s_add_u32 s{sSTG}, s{sSTG}, {STG}")
            I(f"s_cmp_eq_u32 s{sSTG}, {NST*STG}")
            I(f"s_cselect_b32 s{sSTG}, 0, s{sSTG}")
            I(f"s_add_u32 s{sIT}, s{sIT}, 1")
            if k == 0:
                I(f"s_cmp_lt_u32 s{sIT}, {DEP}")
                I(f"s_cbranch_scc1 P1{ty}_LD0")
            I(f"s_waitcnt vmcnt({(DEP-1)*(nds[0] if k == 0 else min(nds))})")
            I("s_barrier")
            I(f"s_cmp_lt_u32 s{sIT}, {8*(k+1)}")
            I(f"s_cbranch_scc1 P1{ty}_LD{k}")
        for r in range(DEP - 2, 0, -1):
            I(f"s_waitcnt vmcnt({r*nds[1]})")
            I("s_barrier")
        I(f"s_mov_b32 s{sIT}, {1 if isA else 0}")
        I("s_branch P2_SHADOW")
        a.label(f"P1{ty}_COMP")
        I("s_waitcnt lgkmcnt(0)")
        stamp(a, 0)
        code_prefetch(a, "MK_END", 8, 1, "p1" + ty, vt=25)
        srd(a, SB1, 1792*2); srd(a, SG, 512*2)
        I(f"s_lshl_b32 s{sT0}, s{sQB}, 3")
        I(f"s_add_u32 s{sT0}, s{sT0}, s{sW}")
        I(f"s_lshl_b32 s{sT0}, s{sT0}, 5")
        I(f"s_add_u32 s{sT0}, s{sT0}, s{sH}")
        I(f"s_lshl_b32 s{sT0}, s{sT0}, 10")
        I(f"s_add_u32 s97, s{sT0}, {OF_OFF}")
        if isA:
            I(f"s_or_b32 s{sT0}, s2, s{sW}")
            I(f"s_cmp_lg_u32 s{sT0}, 0")
            I("s_cbranch_scc1 P1_NONONCE")
            I("s_memrealtime s[50:51]")
            I(f"v_mov_b32 v{t0}, 0")
            I("s_waitcnt lgkmcnt(0)")
            I("s_or_b32 s50, s50, 1")
            I(f"v_mov_b32 v{PK+8}, s50")
            I(f"v_mov_b32 v{PK+9}, s51")
            I("s_mov_b64 exec, 1")
            I(f"global_store_dwordx2 v{t0}, v[{PK+8}:{PK+9}], s[100:101] sc0 sc1")
            I("s_mov_b64 exec, -1")
            a.label("P1_NONONCE")
        if TLBW:
            I(f"s_cmp_lg_u32 s{sW}, 2")
            I(f"s_cbranch_scc1 P1{ty}_NOTLB")
            I(f"v_mul_u32_u24 v{t0}, {TLBW * 1024}, v{vL}")
            for r_ in range(max(1, (23 << 10) // (64 * TLBW) + 1)):
                I(f"s_mov_b32 s{sT0}, {r_ * 64 * TLBW * 1024}")
                I(f"buffer_load_dword v27, v{t0}, s[{SWS}:{SWS+3}], s{sT0} offen sc0 sc1")
            a.label(f"P1{ty}_NOTLB")
        for r in range(6): I(f"v_mov_b32 v{BIAS+r}, 0")
        I(f"s_lshl_b32 s{sTR}, s{sRB}, 4")
        I(f"s_add_u32 s{sTR}, s{sTR}, s{sC}")
        I(f"s_lshl_b32 s{sTR}, s{sTR}, 3")
        I(f"s_add_u32 s{sTR}, s{sTR}, s{sW}")
        if not isA: I(f"s_add_u32 s{sTR}, s{sTR}, 64")
        I(f"s_lshl_b32 s{sT1}, s{sTR}, 10")
        I(f"buffer_load_dwordx4 v[{GX}:{GX+3}], v{vST}, s[{SX}:{SX+3}], s{sT1} offen")
        I(f"buffer_load_dwordx4 v[{GW}:{GW+3}], v{vST}, s[{SG}:{SG+3}], 0 offen")
        I(f"v_and_b32 v{t0}, 31, v{vL}")
        I(f"v_lshlrev_b32 v{t0}, 1, v{t0}")
        I(f"s_lshl_b32 s{sT1}, s{sHF}, 6")
        for p, kd in enumerate(sw[1]):
            if kd == "F":
                I(f"s_add_u32 s7, s{sCOL[1][p]}, s{sT1}")
                I(f"buffer_load_ushort v{BIAS+2*p}, v{t0}, s[{SB1}:{SB1+3}], s7 offen")
            else:
                I(f"buffer_load_ushort v{BIAS+2*p}, v{t0}, s[{SB1}:{SB1+3}], s{sCOL[1][p]} offen")
        I(f"v_and_b32 v{t0}, 31, v{vL}")
        I(f"v_lshrrev_b32 v{t1}, 5, v{vL}")
        I(f"v_bfe_u32 v{t2}, v{t0}, 1, 3")
        I(f"v_xor_b32 v{t2}, v{t2}, v{t1}")
        I(f"v_lshlrev_b32 v{t3}, 7, v{t0}")
        I(f"s_and_b32 s{sT0}, s{sW}, 3")
        I(f"s_lshl_b32 s{sT0}, s{sT0}, 12")
        I(f"s_add_u32 s{sT0}, s{sT0}, {SB0}")
        I(f"v_add_u32 v{t3}, s{sT0}, v{t3}")
        I(f"v_lshl_add_u32 v{t3}, v{t2}, 4, v{t3}")
        I(f"v_mov_b32 v{vXR[0]}, v{t3}")
        for sp in range(1, 4): I(f"v_xor_b32 v{vXR[sp]}, {32*sp}, v{vXR[0]}")
        I(f"v_bfe_u32 v{t0}, v{vL}, 2, 2")
        I(f"v_and_b32 v{t2}, 3, v{vL}")
        I(f"v_bfe_u32 v{t3}, v{vL}, 4, 1")
        p0 = vTP[0]
        I(f"v_lshlrev_b32 v{p0}, 10, v{t1}")
        I(f"v_lshl_add_u32 v{p0}, v{t0}, 7, v{p0}")
        I(f"v_lshl_add_u32 v{p0}, v{t3}, 5, v{p0}")
        I(f"v_lshl_add_u32 v{p0}, v{t2}, 3, v{p0}")
        I(f"v_lshrrev_b32 v25, 1, v{t0}")
        I(f"v_lshl_add_u32 v{p0}, v25, 6, v{p0}")
        I(f"v_xor_b32 v{p0}, s{sT1}, v{p0}")
        I(f"v_add_u32 v{p0}, {SB0 + 16384}, v{p0}")
        if isA:
            I(f"v_lshlrev_b32 v{vTS}, 9, v{t1}")
            I(f"v_lshl_add_u32 v{vTS}, v{t0}, 6, v{vTS}")
            I(f"v_lshl_add_u32 v{vTS}, v{t3}, 5, v{vTS}")
            I(f"v_lshl_add_u32 v{vTS}, v{t2}, 3, v{vTS}")
            I(f"v_add_u32 v{vTS}, {SB0 + 24576}, v{vTS}")
            I(f"v_and_b32 v{vSV}, 0x33, v{vL}")
            I(f"v_bfe_u32 v26, v{vL}, 2, 1")
            I(f"v_lshl_or_b32 v{vSV}, v26, 3, v{vSV}")
            I(f"v_bfe_u32 v26, v{vL}, 3, 1")
            I(f"v_lshl_or_b32 v{vSV}, v26, 2, v{vSV}")
            I(f"v_lshlrev_b32 v{vSV}, 4, v{vSV}")
        else:
            I(f"v_and_b32 v26, 15, v{vL}")
            I(f"v_lshlrev_b32 v{vSV}, 4, v26")
            I(f"v_lshl_add_u32 v{vSV}, v{t1}, 8, v{vSV}")
            I(f"v_lshl_add_u32 v{vSV}, v{t3}, 17, v{vSV}")
            I(f"v_add_u32 v{vSV}, 1024, v{vSV}")
        I(f"s_lshl_b32 s98, s{sW}, 11")
        I(f"v_cmp_gt_u32 vcc, 32, v{vL}")
        I(f"v_mov_b32 v{BONE+1}, 0")
        I(f"v_mov_b32 v{BONE+2}, 0")
        I(f"v_mov_b32 v{BONE+3}, 0")
        I(f"v_mov_b32 v{t0}, 0x3f80")
        I(f"v_cndmask_b32 v{BONE}, 0, v{t0}, vcc")
        I(f"s_mov_b32 s{sL2E}, {fhex(LOG2E)}")
        I(f"s_mov_b32 s{sL2E+1}, {fhex(LOG2E)}")
        I(f"s_mov_b32 s{sTWO}, 2.0")
        I(f"s_mov_b32 s{sTWO+1}, 2.0")
        I(f"s_mov_b32 s{sQS}, {fhex(QSCALE)}")
        I(f"s_mov_b32 s{s30}, {fhex(30.0)}")
        for k in range(64): I(f"v_mov_b32 v{ACC[0]+k}, 0")
        for r in list(range(XF[2], XF[2]+8)) + list(range(WF[2][0], WF[2][0]+16)): I(f"v_mov_b32 v{r}, 0")
        I(f"s_mov_b32 s{sRS}, 3")

        def sweep(k, kinds, sfx=""):
            def reads(s):
                R = [(f"ds_read_b128 v[{XF[s]}:{XF[s]+3}], v{vXR[s]}", 0)]
                for p, kd in enumerate(kinds):
                    b = WF[s][p]
                    if kd == "S":
                        R.append((f"ds_read_b64_tr_b16 v[{b}:{b+1}], v{vTS} offset:{1024*s}", p))
                        R.append((f"ds_read_b64_tr_b16 v[{b+2}:{b+3}], v{vTS} offset:{1024*s + 256}", p))
                    else:
                        off = 8192*p + 2048*s
                        R.append((f"ds_read_b64_tr_b16 v[{b}:{b+1}], v{vTP[0]} offset:{off}", p))
                        R.append((f"ds_read_b64_tr_b16 v[{b+2}:{b+3}], v{vTP[0]} offset:{off+512}", p))
                return R
            def mfs(s):
                M = []
                for p, kd in enumerate(kinds):
                    acc, xf, wf = ACC[2*k + p], XF[s], WF[s][p]
                    if kd == "V": M.append((p, f"{MF} v[{acc}:{acc+15}], v[{xf}:{xf+3}], v[{wf}:{wf+3}], v[{acc}:{acc+15}]"))
                    else: M.append((p, f"{MF} v[{acc}:{acc+15}], v[{wf}:{wf+3}], v[{xf}:{xf+3}], v[{acc}:{acc+15}]"))
                return M
            L = f"P1{ty}_S{k}{sfx}"
            I(f"s_mov_b32 s{sIT}, 0")
            a.label(f"{L}_LOOP")
            if k == 1:
                I(f"s_cmp_lg_u32 s{sIT}, {F1IT}")
                I(f"s_cbranch_scc1 {L}_NW")
                I("s_waitcnt vmcnt(0)")
                a.label(f"{L}_NW")
            I("s_barrier")
            if DBG and k == 1 and DBG2:
                I("s_memtime s[90:91]")
                I("s_waitcnt lgkmcnt(0)")
                for n_, it_ in enumerate((0, 1, 2, 3, 4, 5, 6)):
                    I(f"s_cmp_eq_u32 s{sIT}, {it_}"); I(f"s_cselect_b32 s{65+n_}, s90, s{65+n_}")
            if DBG and k == 0 and not DBG2:
                I(f"s_cmp_lg_u32 s{sIT}, 0")
                I(f"s_cbranch_scc1 {L}_NS")
                stamp(a, 1)
                a.label(f"{L}_NS")
            a.lg = []
            def rd(s):
                for t_, tag in reads(s): a.lds(t_, (s, tag))
            def mm(s, w):
                for p, m in mfs(s):
                    if w: a.wait(lg=(s, p))
                    I(m)
            a.lg = [(2, tag) for _, tag in reads(2)] + [(3, tag) for _, tag in reads(3)]
            def step(sm, sr):
                M = mfs(sm); R = reads(sr)
                for n, (p, m) in enumerate(M):
                    a.wait(lg=(sm, p))
                    I(m)
                    take = [r for r in R if r[1] <= n] if n + 1 < len(M) else R
                    for t_, tag in take: a.lds(t_, (sr + 4, tag))
                    R = [r for r in R if r not in take]
            def retag():
                a.lg = [((x[0] - 4) if x[0] >= 4 else x[0], x[1]) for x in a.lg]
            step(2, 0); step(3, 1); retag()
            if not sfx:
                for it_, lab in (((PFIT, "PF"), (GIT, "G")) if k == 0 else ((F1IT, "F1"),)):
                    I(f"s_cmp_eq_u32 s{sIT}, {it_}")
                    I(f"s_cbranch_scc1 P1{ty}_{lab}")
                a.label(f"P1{ty}_BACK{k}")
            step(0, 2); step(1, 3); retag()
            I(f"s_add_u32 s{sRS}, s{sRS}, 1")
            I(f"s_mov_b32 s{sT0}, {STG}")
            I(f"s_cmp_eq_u32 s{sRS}, {NST}")
            I(f"s_cselect_b32 s{sT0}, {(-(NST-1)*STG) & 0xffffffff}, s{sT0}")
            I(f"s_cselect_b32 s{sRS}, 0, s{sRS}")
            for r in vXR + vTP + ([vTS] if isA else []): I(f"v_add_u32 v{r}, s{sT0}, v{r}")
            I(f"s_add_u32 s{sIT}, s{sIT}, 1")
            I(f"s_cmp_lt_u32 s{sIT}, 8")
            I(f"s_cbranch_scc1 {L}_LOOP")
            mm(2, True); mm(3, True)

        sweep(0, sw[0])
        stamp(a, 2)
        for r in range(8): I(f"v_mov_b32 v{XF[2]+r}, 0")
        I(f"s_lshl_b32 s7, s{sC}, 1")
        I(f"s_add_u32 s50, s7, s{sHF}")
        I(f"s_lshl_b32 s51, s50, 17")
        I(f"s_lshl_b32 s{sT0}, s{sRT}, 10")
        I(f"s_add_u32 s51, s51, s{sT0}")
        I(f"s_lshl_b32 s52, s51, 1")
        if isA: I(f"s_xor_b32 s52, s52, {1 << 21}")
        I(f"s_add_u32 s52, s52, {KV_OFF}")
        I(f"s_add_u32 s53, s51, 65536")
        I(f"s_add_u32 s54, s52, 131072")
        I(f"v_mov_b32 v{t0}, 0")
        I(f"global_load_dwordx2 v[{GX}:{GX+1}], v{t0}, s[100:101] sc0 sc1")
        if isA:
            acc = ACC[1]
            for e in range(8): I(f"v_cvt_pk_bf16_f32 v{PK+e}, v{acc+2*e}, v{acc+2*e+1}")
            I(f"buffer_store_dwordx4 v[{PK}:{PK+3}], v{vSV}, s[{SWS}:{SWS+3}], s52 offen{WTF}")
            I(f"buffer_store_dwordx4 v[{PK+4}:{PK+7}], v{vSV}, s[{SWS}:{SWS+3}], s54 offen{WTF}")
            acc = ACC[0]
            for e in range(16): I(f"v_mul_f32 v{acc+e}, s{sQS}, v{acc+e}")
            for e in range(8): I(f"v_cvt_pk_bf16_f32 v{PK+8+e}, v{acc+2*e}, v{acc+2*e+1}")
            I(f"buffer_store_dwordx4 v[{PK+8}:{PK+11}], v{vST}, s[{SWS}:{SWS+3}], s51 offen{WTF}")
            I(f"buffer_store_dwordx4 v[{PK+12}:{PK+15}], v{vST}, s[{SWS}:{SWS+3}], s53 offen{WTF}")
        else:
            acc = ACC[0]
            for e in range(8): I(f"v_cvt_pk_bf16_f32 v{PK+8+e}, v{acc+2*e}, v{acc+2*e+1}")
            I(f"buffer_store_dwordx4 v[{PK+8}:{PK+11}], v{vSV}, s[{SWS}:{SWS+3}], s52 offen{WTF}")
            I(f"buffer_store_dwordx4 v[{PK+12}:{PK+15}], v{vSV}, s[{SWS}:{SWS+3}], s52 offen offset:512{WTF}")
        if isA:
            I(f"s_cmp_eq_u32 s{sHF}, 0")
            I(f"s_cbranch_scc1 P1A_H0")
            sweep(1, sw[1][:1], "h")
            I(f"s_branch P1{ty}_EPI")
            a.label("P1A_H0")
        sweep(1, sw[1])
        I(f"s_branch P1{ty}_EPI")
        a.label(f"P1{ty}_F1")
        I(f"s_cmp_lg_u32 s{sW}, 0")
        I(f"s_cbranch_scc1 P1{ty}_F1C")
        I(f"s_mov_b32 s51, 0x40000")
        a.label(f"P1{ty}_F1A")
        I(f"v_readfirstlane_b32 s50, v{GX}")
        I(f"v_mov_b32 v{t0}, 0")
        I(f"s_lshl_b32 s{sT2}, s2, 6")
        I(f"s_add_u32 s{sT2}, s{sT2}, {FL_OFF}")
        I("s_nop 1")
        I(f"s_cmp_lg_u32 s50, 0")
        I(f"s_cbranch_scc1 P1{ty}_F1B")
        I(f"s_cmp_eq_u32 s51, 0")
        I(f"s_cbranch_scc1 P1{ty}_F1B")
        I(f"s_sub_u32 s51, s51, 1")
        I(f"global_load_dwordx2 v[{GX}:{GX+1}], v{t0}, s[100:101] sc0 sc1")
        I("s_waitcnt vmcnt(0)")
        I(f"s_branch P1{ty}_F1A")
        a.label(f"P1{ty}_F1B")
        I("s_mov_b64 exec, 1")
        I(f"buffer_store_dwordx2 v[{GX}:{GX+1}], v{t0}, s[{SWS}:{SWS+3}], s{sT2} offen sc0 sc1")
        I("s_mov_b64 exec, -1")
        a.label(f"P1{ty}_F1C")
        I(f"s_branch P1{ty}_BACK1")
        a.label(f"P1{ty}_G")
        I("s_waitcnt vmcnt(0)")
        I(f"v_mov_b32 v{vG0}, 0")
        I(f"v_mov_b32 v{vG1}, 0")
        for k in range(4): I(f"v_dot2_f32_bf16 v{vG0+k%2}, v{GX+k}, v{GW+k}, v{vG0+k%2}")
        I("s_nop 2")
        I(f"v_add_f32 v{vG0}, v{vG0}, v{vG1}")
        for d in ("quad_perm:[1,0,3,2]", "quad_perm:[2,3,0,1]", "row_half_mirror", "row_mirror"):
            I("s_nop 1")
            I(f"v_add_f32_dpp v{vG0}, v{vG0}, v{vG0} {d} row_mask:0xf bank_mask:0xf")
        I("s_nop 0")
        for k in range(4): I(f"v_readlane_b32 s{50+k}, v{vG0}, {16*k}")
        I(f"s_mov_b32 s{sT1}, s{sTR}")
        I("s_nop 0")
        I(f"v_mov_b32 v{vG0}, s50")
        I(f"v_add_f32 v{vG0}, s51, v{vG0}")
        I(f"v_add_f32 v{vG0}, s52, v{vG0}")
        I(f"v_add_f32 v{vG0}, s53, v{vG0}")
        I(f"v_mul_f32 v{vG0}, s{sL2E}, v{vG0}")
        I(f"v_exp_f32 v{vG0}, -v{vG0}")
        I(f"s_lshl_b32 s{sT1}, s{sT1}, 2")
        I(f"v_add_f32 v{vG0}, 1.0, v{vG0}")
        I(f"v_rcp_f32 v{vG0}, v{vG0}")
        I(f"s_add_u32 s{sT1}, s{sT1}, {G_OFF}")
        I(f"v_mov_b32 v{vG1}, 0")
        I(f"s_mov_b64 exec, 1")
        I(f"buffer_store_dword v{vG0}, v{vG1}, s[{SWS}:{SWS+3}], s{sT1} offen{WTF}")
        I(f"s_mov_b64 exec, -1")
        I(f"s_branch P1{ty}_BACK0")
        a.label(f"P1{ty}_PF")
        I(f"s_cmp_ge_u32 s{sW}, 2")
        I(f"s_cbranch_scc1 P1{ty}_BACK0")
        I(f"s_cmp_eq_u32 s{sW}, 0")
        I(f"s_cselect_b32 s{sT1}, s{sCOL[1][0]}, s{sCOL[1][1]}")
        I(f"s_bfe_u32 s{sT2}, s2, 0x30003")
        I(f"s_mul_i32 s{sT2}, s{sT2}, {64*3584}")
        I(f"s_add_u32 s{sT1}, s{sT1}, s{sT2}")
        I(f"v_mul_u32_u24 v{t0}, 3584, v{vL}")
        I(f"buffer_load_dword v27, v{t0}, s[{SW1}:{SW1+3}], s{sT1} offen")
        I(f"s_branch P1{ty}_BACK0")
        a.label(f"P1{ty}_EPI")
        stamp(a, 3)
        for p in range(2):
            acc = ACC[2 + p]
            if p == 1:
                I(f"s_mul_i32 s{sT2}, s{sRT}, {144*1024}")
                I(f"s_add_u32 s{sT2}, s{sT2}, {AF_OFF + 32*1024}")
                I(f"s_lshl_b32 s{sT1}, s{sHF}, 11")
                I(f"s_add_u32 s{sT1}, s{sT1}, s{sT2}")
            I(f"{MF} v[{acc}:{acc+15}], v[{BIAS+2*p}:{BIAS+2*p+3}], v[{BONE}:{BONE+3}], v[{acc}:{acc+15}]")
        jobs = [(0, 0), (0, 1), (1, 0), (1, 1)]
        for n, (p, hh) in enumerate(jobs):
            I(f"s_lshl_b32 s7, s{sCOL[1][p]}, 5")
            I(f"s_add_u32 s7, s7, s{sT2 if (isA and p == 1) else sT1}")
            I(f"s_add_u32 s{76+n}, s7, {1024*hh}")
        I(f"s_mov_b32 s56, {'s%d' % sHF if isA else 0}")
        tb = [ACC[0], ACC[0] + 8, 44]
        def mish8(acc, pk):
            vp = lambda r: f"v[{r}:{r+1}]"
            prs = range(4)
            T = lambda e, kk: tb[kk] + 2*e
            for e in prs: I(f"v_pk_mul_f32 {vp(T(e,0))}, {vp(acc+2*e)}, s[{sL2E}:{sL2E+1}]")
            for e in range(8): I(f"v_min_f32 v{tb[0]+e}, s{s30}, v{tb[0]+e}")
            for e in range(8): I(f"v_exp_f32 v{tb[0]+e}, v{tb[0]+e}")
            for e in prs: I(f"v_pk_add_f32 {vp(T(e,1))}, {vp(T(e,0))}, s[{sTWO}:{sTWO+1}]")
            for e in prs: I(f"v_pk_mul_f32 {vp(T(e,1))}, {vp(T(e,0))}, {vp(T(e,1))}")
            for e in prs: I(f"v_pk_add_f32 {vp(T(e,2))}, {vp(T(e,1))}, s[{sTWO}:{sTWO+1}]")
            for e in range(8): I(f"v_rcp_f32 v{tb[2]+e}, v{tb[2]+e}")
            for e in prs: I(f"v_pk_mul_f32 {vp(T(e,1))}, {vp(T(e,1))}, {vp(T(e,2))}")
            for e in prs: I(f"v_pk_mul_f32 {vp(T(e,0))}, {vp(acc+2*e)}, {vp(T(e,1))}")
            for e in range(4): I(f"v_cvt_pk_bf16_f32 v{pk+e}, v{tb[0]+2*e}, v{tb[0]+2*e+1}")
        for n, (p, hh) in enumerate(jobs):
            if isA and n == 2:
                I(f"s_cmp_eq_u32 s{sHF}, 1")
                I(f"s_cbranch_scc1 P1A_EDONE")
            mish8(ACC[2 + p] + 8*hh, HKR[n])
        if isA: a.label("P1A_EDONE")
        stamp(a, 4)
        I("s_branch P2_ATT")

    path("A")
    a.label("P1_B")
    path("B")

    a.label("P2_ATT")
    sCNT, sNMAX, sFIRST, sVM = 50, 51, 52, 54
    vT, vLO, vKA, vVA, vG, vM, vT2 = 2, 11, 4, 5, 6, 7, 8
    Q, NEGM, S, O, P, KF, VF = 12, 16, [32, 48], 64, 80, [88, 92], [96, 104]
    IX = 9
    SM = "v_smfmac_f32_32x32x32_bf16"
    SA = opt("--sa", 3); SBK = opt("--sbk", 11)
    I(f"s_mov_b32 s{sVM}, 0xffff")
    I(f"s_mov_b32 s{sVM+1}, 0xffff")
    I(f"v_and_b32 v{vT}, 27, v{vL}")
    I(f"v_cmp_eq_u32 vcc, 16, v{vT}")
    I(f"v_mov_b32 v{vT}, 0x3f803f80")
    I(f"s_lshl_b32 s{sT0}, s{sW}, 10")
    I(f"v_cndmask_b32 v{VF[0]}, 0, v{vT}, vcc")
    for r in range(1, 16): I(f"v_mov_b32 v{VF[0]+r}, v{VF[0]}")
    I(f"s_add_u32 s{sT0}, s{sT0}, {QL}")
    I(f"v_add_u32 v{vT}, s{sT0}, v{vLO}")
    I(f"v_and_b32 v{vT2}, 31, v{vL}")
    I(f"v_lshlrev_b32 v{vT2}, 2, v{vT2}")
    I(f"s_lshl_b32 s{sT0}, s{sW}, 7")
    I(f"s_add_u32 s{sT0}, s{sT0}, {GL}")
    I(f"v_add_u32 v{vT2}, s{sT0}, v{vT2}")
    for r in range(4): I(f"v_mov_b32 v{148+r}, -1")
    I(f"s_mov_b32 s{sNMAX}, 1")
    I(f"s_mov_b32 s53, 8")
    I(f"s_mov_b32 s{sFIRST}, {Y2IT}")
    if ATPRIO: I("s_setprio 2")
    I("s_barrier")
    stamp(a, 5)
    I(f"ds_read_b128 v[{Q}:{Q+3}], v{vT}")
    I(f"ds_read_b32 v{vG}, v{vT2}")
    def hstores():
        for n in range(4):
            if n == 2:
                I(f"s_cmp_eq_u32 s56, 1")
                I(f"s_cbranch_scc1 P2_NOH3")
            I(f"buffer_store_dwordx4 v[{HKR[n]}:{HKR[n]+3}], v{vLO}, s[{SWS}:{SWS+3}], s{76+n} offen{WTF}")
        a.label("P2_NOH3")
        I(f"buffer_store_dwordx4 v[148:151], v{vLO}, s[{SWS}:{SWS+3}], s97 offen{WTF}")
    if not HLATE: hstores()
    a.label("P2_MAXPASS")
    I(f"v_mov_b32 v{vKA}, v{vLO}")
    I(f"v_mov_b32 v{vM}, 0xff800000")
    I(f"s_mov_b32 s{sCNT}, s{sNMAX}")
    a.label("P2_MAXLOOP")
    I(f"ds_read_b128 v[{KF[0]}:{KF[0]+3}], v{vKA}")
    I(f"v_add_u32 v{vKA}, 2048, v{vKA}")
    I("s_waitcnt lgkmcnt(0)")
    I(f"{MF} v[{S[0]}:{S[0]+15}], v[{KF[0]}:{KF[0]+3}], v[{Q}:{Q+3}], 0")
    I("s_nop 11")
    for r in range(8): I(f"v_max3_f32 v{vM}, v{S[0]+2*r}, v{S[0]+2*r+1}, v{vM}")
    I(f"s_sub_u32 s{sCNT}, s{sCNT}, 1")
    I(f"s_cmp_lg_u32 s{sCNT}, 0")
    I("s_cbranch_scc1 P2_MAXLOOP")
    I(f"v_mov_b32 v{vT}, v{vM}")
    I(f"v_mov_b32 v{vKA}, v{vLO}")
    I(f"v_and_b32 v{vT2}, 15, v{vL}")
    I(f"v_permlane32_swap_b32 v{vM}, v{vT}")
    I(f"v_lshlrev_b32 v{vVA}, 4, v{vT2}")
    I(f"v_lshrrev_b32 v{vT2}, 5, v{vL}")
    I(f"v_max_f32 v{vM}, v{vM}, v{vT}")
    I(f"v_lshl_add_u32 v{vVA}, v{vT2}, 8, v{vVA}")
    I(f"v_add_u32 v{vVA}, 1024, v{vVA}")
    def rdK(t, buf): I(f"ds_read_b128 v[{KF[buf]}:{KF[buf]+3}], v{vKA} offset:{2048*t}")
    def rdV(t, buf):
        I(f"s_mov_b64 exec, s[{sVM}:{sVM+1}]")
        I(f"ds_read_b128 v[{VF[buf]}:{VF[buf]+3}], v{vVA} offset:{2048*t}")
        I(f"ds_read_b128 v[{VF[buf]+4}:{VF[buf]+7}], v{vVA} offset:{2048*t+512}")
        I(f"s_mov_b64 exec, -1")
    rdK(0, 0); rdK(1, 1); rdV(0, 0)
    for r in range(16): I(f"v_sub_f32 v{NEGM+r}, 0, v{vM}")
    for r in range(8, 16): I(f"v_mov_b32 v{S[1]+r}, 0")
    I(f"v_mov_b32 v{IX}, 0xdddddddd")
    I("s_waitcnt lgkmcnt(3)")
    I(f"{MF} v[{S[0]}:{S[0]+15}], v[{KF[0]}:{KF[0]+3}], v[{Q}:{Q+3}], v[{NEGM}:{NEGM+15}]")
    for r in range(16): I(f"v_mov_b32 v{O+r}, 0")
    I(f"s_mov_b32 s{sCNT}, 8")
    a.label("P2_LOOP")
    for t in range(8):
        cur, nxt = t % 2, (t + 1) % 2
        sc, sn = S[cur], S[nxt]
        e = lambda k: I(f"v_exp_f32 v{sc+k}, v{sc+k}")
        e(0); e(1)
        I(f"{SM} v[{O}:{O+15}], v[{VF[nxt]+4}:{VF[nxt]+7}], v[{sn+8}:{sn+15}], v{IX}")
        rdV(t + 1, nxt)
        for k in range(2, 2 + SA): e(k)
        I("s_waitcnt lgkmcnt(2)")
        I(f"{MF} v[{sn}:{sn+15}], v[{KF[nxt]}:{KF[nxt]+3}], v[{Q}:{Q+3}], v[{NEGM}:{NEGM+15}]")
        rdK(t + 2, cur)
        for k in range(2 + SA, SBK): e(k)
        I(f"{SM} v[{O}:{O+15}], v[{VF[cur]}:{VF[cur]+3}], v[{sc}:{sc+7}], v{IX}")
        for k in range(SBK, 16): e(k)
    I(f"v_add_u32 v{vKA}, 0x4000, v{vKA}")
    I(f"v_add_u32 v{vVA}, 0x4000, v{vVA}")
    I(f"s_cmp_lg_u32 s53, s{sCNT}")
    I("s_cbranch_scc1 P2_NOBAR0")
    I(f"s_mov_b32 s53, 100")
    if HLATE: hstores()
    I("s_barrier")
    a.label("P2_NOBAR0")
    I(f"s_cmp_lg_u32 s{sFIRST}, s{sCNT}")
    I("s_cbranch_scc1 P2_NOBAR")
    I(f"s_mov_b32 s{sFIRST}, 100")
    I("s_waitcnt vmcnt(0)")
    I("s_barrier")
    stamp(a, 6)
    a.label("P2_NOBAR")
    if ATPRIO:
        I(f"s_cmp_lg_u32 s{sCNT}, {PR1}")
        I("s_cbranch_scc1 P2_NP1")
        I("s_setprio 1")
        a.label("P2_NP1")
        I(f"s_cmp_lg_u32 s{sCNT}, {PR2}")
        I("s_cbranch_scc1 P2_NP2")
        I("s_setprio 0")
        a.label("P2_NP2")
    I(f"s_sub_u32 s{sCNT}, s{sCNT}, 1")
    I(f"s_cmp_lg_u32 s{sCNT}, 0")
    I("s_cbranch_scc1 P2_LOOP")
    I(f"{SM} v[{O}:{O+15}], v[{VF[1]+4}:{VF[1]+7}], v[{S[1]+8}:{S[1]+15}], v{IX}")
    I("s_waitcnt lgkmcnt(0)")
    I("s_nop 11")
    stamp(a, 7)
    I(f"v_mov_b32 v{vT}, v{O+8}")
    I(f"v_rcp_f32 v{vT2}, v{O+8}")
    for r in range(8): I(f"v_fma_f32 v{vT}, v{O+r}, 0, v{vT}")
    I(f"v_cmp_gt_f32 vcc, {fhex(2.0**100)}, v{vT}")
    I(f"v_mul_f32 v{vT2}, v{vT2}, v{vG}")
    I("s_nop 3")
    I(f"s_cmp_eq_u64 vcc, -1")
    I("s_cbranch_scc1 P2_OK")
    I(f"s_cmp_eq_u32 s{sNMAX}, 64")
    I("s_cbranch_scc1 P2_OK")
    I(f"s_mov_b32 s{sNMAX}, 64")
    I("s_branch P2_MAXPASS")
    a.label("P2_OK")
    for r in range(8): I(f"v_mul_f32 v{O+r}, v{O+r}, v{vT2}")
    for r in range(4): I(f"v_cvt_pk_bf16_f32 v{P+r}, v{O+2*r}, v{O+2*r+1}")
    I(f"buffer_store_dwordx4 v[{P}:{P+3}], v{vLO}, s[{SWS}:{SWS+3}], s97 offen sc0 sc1")
    stamp(a, 8)
    stamp_flush(a, 9, SWS, sW, 0)
    I("s_endpgm")

    COMP[0] = False
    a.label("P2_SHADOW")
    sJ = 63
    sN = 8
    SO = 12
    sA0, sA1, sB0, sB1 = 80, 81, 82, 83
    sKV, sM0 = 20, 21
    sOC, sOR, sWA0, sWA1, sOB0, sOB1, sLS, sOB2, sOB3 = 22, 23, 24, 25, 26, 27, 84, 85, 86
    sTO = 87
    vLO = 3
    I(f"s_load_dwordx2 s[{SO}:{SO+1}], s[0:1], 64")
    I(f"s_setprio {SHPRIO2}")
    I(f"v_mov_b32 v{vLO}, v{vST}")
    I(f"v_mov_b32 v2, 0")
    I(f"s_mov_b32 s{sTO}, 0x40000")
    I(f"s_and_b32 s{sT0}, s2, 6")
    I(f"s_and_b32 s{sT1}, s2, 1")
    I(f"s_lshl_b32 s{sT1}, s{sT1}, 6")
    I(f"s_or_b32 s{sT0}, s{sT0}, s{sT1}")
    I(f"v_and_b32 v6, 1, v{vL}")
    I(f"v_bfe_u32 v7, v{vL}, 1, 3")
    I(f"v_lshl_or_b32 v6, v7, 3, v6")
    I(f"v_bfe_u32 v7, v{vL}, 4, 1")
    I(f"v_lshl_or_b32 v6, v7, 7, v6")
    I(f"v_or_b32 v6, s{sT0}, v6")
    I(f"v_xor_b32 v7, 1, v7")
    I(f"v_lshlrev_b32 v7, 2, v7")
    I(f"v_xor_b32 v6, v7, v6")
    I(f"s_lshr_b32 s{sT0}, s{sQB}, 2")
    I(f"s_and_b32 s{sT1}, s{sQB}, 3")
    I(f"s_lshl_b32 s{sT1}, s{sT1}, 4")
    I(f"s_or_b32 s{sT0}, s{sT0}, s{sT1}")
    I(f"v_and_b32 v7, 6, v{vL}")
    I(f"v_or_b32 v7, s{sT0}, v7")
    I(f"v_bfe_u32 v12, v{vL}, 4, 1")
    I(f"v_lshl_or_b32 v7, v12, 3, v7")
    I(f"v_and_b32 v12, 1, v{vL}")
    I(f"v_lshl_or_b32 v7, v12, 6, v7")
    I(f"v_bfe_u32 v12, v{vL}, 3, 1")
    I(f"v_lshl_or_b32 v7, v12, 7, v7")
    I(f"v_cmp_gt_u32 vcc, 32, v{vL}")
    I(f"s_lshl_b32 s{sKV}, s{sH}, 17")
    I(f"s_lshl_b32 s{sM0}, s{sJ}, 10")
    I(f"v_cndmask_b32 v6, v7, v6, vcc")
    I(f"v_lshlrev_b32 v6, 6, v6")
    I(f"s_add_u32 s{sKV}, s{sKV}, s{sM0}")
    I(f"s_add_u32 s{sKV}, s{sKV}, {KV_OFF}")
    I(f"s_lshl_b32 s{sT2}, s2, 6")
    I(f"s_add_u32 s{sT2}, s{sT2}, {FL_OFF}")
    I(f"s_mov_b32 s{sLS}, {FL_OFF}")
    I(f"global_load_dwordx2 v[4:5], v2, s[100:101] sc0 sc1")
    I(f"buffer_load_dwordx2 v[8:9], v6, s[{SWS}:{SWS+3}], s{sLS} offen sc0 sc1")
    I("s_waitcnt vmcnt(2) lgkmcnt(0)")
    I("s_barrier")
    I("s_waitcnt vmcnt(0)")
    stamp(a, 2)
    srd(a, SO, 2048*512*2)
    a.label("P2_F1CHK")
    I(f"v_readfirstlane_b32 s{sN}, v4")
    I(f"v_readfirstlane_b32 s{sN+1}, v5")
    I("s_nop 1")
    I(f"v_cmp_eq_u64 vcc, s[{sN}:{sN+1}], v[8:9]")
    I(f"s_cmp_eq_u32 s{sN}, 0")
    I("s_cbranch_scc1 P2_F1RE")
    I("s_nop 3")
    I(f"s_cmp_eq_u64 vcc, -1")
    I("s_cbranch_scc1 P2_F1GOT")
    a.label("P2_F1RE")
    I(f"s_cmp_eq_u32 s{sTO}, 0")
    I(f"s_cbranch_scc1 P2_F1GOT")
    I(f"s_sub_u32 s{sTO}, s{sTO}, 1")
    I(f"s_sleep {POLLS}")
    I(f"global_load_dwordx2 v[4:5], v2, s[100:101] sc0 sc1")
    I(f"buffer_load_dwordx2 v[8:9], v6, s[{SWS}:{SWS+3}], s{sLS} offen sc0 sc1")
    I("s_waitcnt vmcnt(0)")
    I("s_branch P2_F1CHK")
    a.label("P2_F1GOT")
    stamp(a, 3)
    def kvdma():
        I(f"s_mov_b32 m0, s{sM0}")
        I(f"s_add_u32 s{sM0}, s{sM0}, 4096")
        I(f"buffer_load_dwordx4 v{vLO}, s[{SWS}:{SWS+3}], s{sKV} offen lds")
        I(f"s_add_u32 s{sKV}, s{sKV}, 4096")
    I(f"s_lshl_b32 s{sT0}, s{sH}, 6")
    I(f"s_lshl_b32 s{sT1}, s{sQB}, 3")
    I(f"s_add_u32 s{sT0}, s{sT0}, s{sT1}")
    I(f"s_lshl_b32 s{sT1}, s{sJ}, 1")
    I(f"s_add_u32 s{sT0}, s{sT0}, s{sT1}")
    I(f"s_lshl_b32 s{sT0}, s{sT0}, 10")
    I(f"s_lshl_b32 s{sT1}, s{sJ}, 11")
    I(f"s_add_u32 m0, s{sT1}, {QL}")
    I(f"s_lshl_b32 s{sT1}, s{sQB}, 10")
    I(f"buffer_load_dwordx4 v{vLO}, s[{SWS}:{SWS+3}], s{sT0} offen lds")
    I(f"buffer_load_dwordx4 v{vLO}, s[{SWS}:{SWS+3}], s{sT0} offen offset:1024 lds")
    I(f"s_mov_b32 m0, {GL}")
    I(f"s_add_u32 s{sT1}, s{sT1}, {G_OFF}")
    I(f"buffer_load_dwordx4 v{vLO}, s[{SWS}:{SWS+3}], s{sT1} offen lds")
    for half in range(3):
        I(f"s_mov_b32 s{sCNT}, {(KV0, 16 - KV0, 16)[half]}")
        a.label(f"P2_KVLOOP{half}")
        kvdma()
        I(f"s_sub_u32 s{sCNT}, s{sCNT}, 1")
        I(f"s_cmp_lg_u32 s{sCNT}, 0")
        I(f"s_cbranch_scc1 P2_KVLOOP{half}")
        if half == 0:
            I(f"s_waitcnt vmcnt(0)")
            I("s_barrier")
            stamp(a, 4)
        if half == 1:
            I("s_waitcnt vmcnt(0)")
            I("s_barrier")
            srd(a, SWO, 512*512*2); srd(a, SW2, 1792*512*2)
            I(f"s_lshl_b32 s{sLS}, s{sJ}, 12")
            I(f"s_add_u32 s{sLS}, s{sLS}, {131072}")
            I(f"v_lshrrev_b32 v12, 5, v{vL}")
            I(f"v_bfe_u32 v13, v{vL}, 2, 2")
            I(f"v_and_b32 v14, 3, v{vL}")
            I(f"v_bfe_u32 v15, v{vL}, 4, 1")
            I(f"v_lshlrev_b32 v10, 9, v12")
            I(f"v_lshl_add_u32 v10, v13, 7, v10")
            I(f"v_lshrrev_b32 v16, 1, v13")
            I(f"v_lshl_add_u32 v10, v16, 6, v10")
            I(f"v_lshl_add_u32 v10, v15, 4, v10")
            I(f"v_and_b32 v16, 1, v14")
            I(f"v_lshl_add_u32 v10, v16, 5, v10")
            I(f"v_lshrrev_b32 v16, 1, v14")
            I(f"v_lshl_add_u32 v10, v16, 3, v10")
            I(f"v_add_u32 v10, s{sLS}, v10")
            I(f"v_xor_b32 v11, 64, v10")
            I(f"s_lshl_b32 s52, s2, 2")
            I(f"s_add_u32 s52, s52, s{sJ}")
            for n in range(2):
                if n == 1:
                    I(f"s_cmp_ge_u32 s52, 128")
                    I(f"s_cbranch_scc1 P2_TR1")
                    I(f"s_add_u32 s52, s52, 1024")
                I(f"s_mul_i32 s53, s52, 7282")
                I(f"s_lshr_b32 s53, s53, 20")
                I(f"s_mul_i32 s54, s53, 144")
                I(f"s_sub_u32 s54, s52, s54")
                I(f"s_add_u32 s{56+n}, s52, s52")
                I(f"s_sub_u32 s{56+n}, s{56+n}, s54")
                I(f"s_lshl_b32 s{56+n}, s{56+n}, 10")
                I(f"s_lshl_b32 s{sT0}, s54, 14")
                I(f"s_lshl_b32 s{sT1}, s53, 7")
                I(f"s_add_u32 s{sT0}, s{sT0}, s{sT1}")
                I(f"s_add_u32 m0, s{sLS}, {2048*n}")
                I(f"s_cmp_ge_u32 s54, 32")
                I(f"s_cbranch_scc1 P2_TW2{n}")
                I(f"s_add_u32 s{sT1}, s{sT0}, {8192 - 1024}")
                I(f"buffer_load_dwordx4 v{vTD}, s[{SWO}:{SWO+3}], s{sT0} offen lds")
                I(f"buffer_load_dwordx4 v{vTD}, s[{SWO}:{SWO+3}], s{sT1} offen offset:1024 lds")
                I(f"s_branch P2_TD{n}")
                a.label(f"P2_TW2{n}")
                I(f"s_sub_u32 s{sT0}, s{sT0}, {32*16384}")
                I(f"s_add_u32 s{sT1}, s{sT0}, {8192 - 1024}")
                I(f"buffer_load_dwordx4 v{vTD}, s[{SW2}:{SW2+3}], s{sT0} offen lds")
                I(f"buffer_load_dwordx4 v{vTD}, s[{SW2}:{SW2+3}], s{sT1} offen offset:1024 lds")
                a.label(f"P2_TD{n}")
            a.label("P2_TR1")
    I("s_waitcnt vmcnt(16)")
    for n in range(2):
        for ct in range(2):
            b = 24 + 8*n + 4*ct
            I(f"ds_read_b64_tr_b16 v[{b}:{b+1}], v{10+ct} offset:{2048*n}")
            I(f"ds_read_b64_tr_b16 v[{b+2}:{b+3}], v{10+ct} offset:{2048*n+1024}")
    I("s_waitcnt lgkmcnt(0)")
    for n in range(2):
        if n == 1:
            I(f"s_cmp_lt_u32 s52, 1024")
            I(f"s_cbranch_scc1 P2_TR2")
        for ct in range(2):
            b = 24 + 8*n + 4*ct
            I(f"s_add_u32 s7, s{56+n}, {WF_OFF + ct*144*1024}")
            I(f"buffer_store_dwordx4 v[{b}:{b+3}], v{vLO}, s[{SWS}:{SWS+3}], s7 offen{WTF}")
    a.label("P2_TR2")
    I(f"s_lshr_b32 s{sT0}, s{sJ}, 1")
    I(f"s_lshl_b32 s{sT1}, s{sQB}, 1")
    I(f"s_add_u32 s{sA0}, s{sT1}, s{sT0}")
    I(f"s_xor_b32 s{sA1}, s{sA0}, 1")
    I(f"s_and_b32 s{sT0}, s{sJ}, 1")
    I(f"s_lshl_b32 s{sT1}, s{sH}, 1")
    I(f"s_add_u32 s{sB0}, s{sT1}, s{sT0}")
    I(f"s_xor_b32 s{sB1}, s{sB0}, 1")
    I(f"s_mov_b32 s{sOC}, s{sA0}")
    I(f"s_mov_b32 s{sOR}, s{sB0}")
    I(f"s_lshl_b32 s32, s{sB0}, 7")
    I(f"s_add_u32 s32, s32, {G_OFF}")
    I(f"s_lshl_b32 s33, s{sB1}, 7")
    I(f"s_add_u32 s33, s33, {G_OFF}")
    I(f"s_lshl_b32 s{sT0}, s{sJ}, 13")
    for d, r in ((sWA0, sA0), (sWA1, sA1)):
        I(f"s_mul_i32 s{d}, s{r}, {144*1024}")
        I(f"s_add_u32 s{d}, s{d}, s{sT0}")
        I(f"s_add_u32 s{d}, s{d}, {WF_OFF}")
    for d, r in ((sOB0, sB0), (sOB1, sB1)):
        I(f"s_lshl_b32 s{d}, s{r}, 15")
        I(f"s_add_u32 s{d}, s{d}, s{sT0}")
        I(f"s_add_u32 s{d}, s{d}, {OF_OFF}")
    I(f"s_mul_i32 s{sT0}, s{sJ}, {28*1024}")
    for r, off in ((sA0, WF_OFF), (sA1, WF_OFF), (sB0, AF_OFF), (sB1, AF_OFF)):
        I(f"s_mul_i32 s{r}, s{r}, {144*1024}")
        I(f"s_add_u32 s{r}, s{r}, s{sT0}")
        I(f"s_add_u32 s{r}, s{r}, {off + 32*1024}")
    ACC2, FR = 8, 72
    I(f"s_lshr_b32 s{sT0}, s{sH}, 1")
    I(f"s_lshr_b32 s{sT1}, s{sT0}, 3")
    I(f"s_and_b32 s{sT0}, s{sT0}, 7")
    I(f"s_lshl_b32 s{sT0}, s{sT0}, 3")
    I(f"s_or_b32 s{sT0}, s{sT0}, s{sT1}")
    I(f"v_and_b32 v6, 6, v{vL}")
    I(f"v_and_b32 v7, 1, v{vL}")
    I(f"v_lshl_or_b32 v6, v7, 6, v6")
    I(f"v_bfe_u32 v7, v{vL}, 3, 1")
    I(f"v_lshl_or_b32 v6, v7, 7, v6")
    I(f"v_or_b32 v6, s{sT0}, v6")
    I(f"s_mul_i32 s{sT0}, s{sQB}, 36")
    I(f"v_subrev_u32 v7, 16, v{vL}")
    I(f"v_min_u32 v7, 35, v7")
    I(f"v_add_u32 v7, s{sT0}, v7")
    I(f"v_and_b32 v7, 255, v7")
    I(f"v_cmp_gt_u32 vcc, 16, v{vL}")
    I(f"s_add_u32 s{sT2}, s{sT2}, {F2_OFF - FL_OFF}")
    I(f"s_mov_b32 s{sLS}, {F2_OFF}")
    I(f"v_cndmask_b32 v6, v7, v6, vcc")
    I(f"v_lshlrev_b32 v6, 6, v6")
    I(f"s_lshr_b32 s{sT0}, s{sH}, 2")
    I(f"s_lshl_b32 s{sT0}, s{sT0}, 5")
    I(f"v_and_b32 v7, 31, v{vL}")
    I(f"v_add_u32 v7, s{sT0}, v7")
    I(f"v_lshlrev_b32 v7, 6, v7")
    I("s_waitcnt vmcnt(0)")
    I("s_barrier")
    stamp(a, 5)
    I(f"s_cmp_lg_u32 s{sJ}, 0")
    I("s_cbranch_scc1 P2_F2POLL")
    I("s_mov_b64 exec, 1")
    I(f"buffer_store_dwordx2 v[4:5], v2, s[{SWS}:{SWS+3}], s{sT2} offen sc0 sc1")
    I("s_mov_b64 exec, -1")
    def pollflags(vaddr, lab, done, sl):
        a.label(lab)
        I(f"buffer_load_dwordx2 v[{FR+88}:{FR+89}], v{vaddr}, s[{SWS}:{SWS+3}], s{sKV} offen sc0 sc1")
        I("s_waitcnt vmcnt(0)")
        I(f"v_cmp_eq_u64 vcc, s[{sN}:{sN+1}], v[{FR+88}:{FR+89}]")
        I("s_nop 4")
        I(f"s_cmp_eq_u64 vcc, -1")
        I(f"s_cbranch_scc1 {done}")
        I(f"s_cmp_eq_u32 s{sTO}, 0")
        I(f"s_cbranch_scc1 {done}")
        I(f"s_sub_u32 s{sTO}, s{sTO}, 1")
        I(f"s_sleep {sl}")
        I(f"s_branch {lab}")
    a.label("P2_F2POLL")
    I(f"s_mov_b32 s{sKV}, {F2_OFF}")
    pollflags(6, "P2_F2P", "P2_F2GOT", 8)
    a.label("P2_F2GOT")
    stamp(a, 6)
    def ld(u):
        fb = FR + 16*u
        for q, r in enumerate((sA0, sB0, sA1, sB1)):
            I(f"buffer_load_dwordx4 v[{fb+4*q}:{fb+4*q+3}], v{vLO}, s[{SWS}:{SWS+3}], s{r} offen offset:{1024*u}")
    def mm4(A0, A1, B0, B1):
        for tau, (A, B) in ((3, (A1, B1)), (2, (A1, B0)), (1, (A0, B1)), (0, (A0, B0))):
            acc = ACC2 + 16*tau
            I(f"{MF} v[{acc}:{acc+15}], v[{A}:{A+3}], v[{B}:{B+3}], v[{acc}:{acc+15}]")
    def mmf(fb): mm4(fb, fb+8, fb+4, fb+12)
    for u in range(4): ld(u)
    I(f"s_setprio 0")
    I(f"s_mov_b32 s{sCNT}, 6")
    for r in (sA0, sA1, sB0, sB1): I(f"s_add_u32 s{r}, s{r}, 4096")
    I("s_waitcnt vmcnt(12)")
    for tau, (A, B) in ((3, (FR+8, FR+12)), (2, (FR+8, FR+4)), (1, (FR, FR+12)), (0, (FR, FR+4))):
        acc = ACC2 + 16*tau
        I(f"{MF} v[{acc}:{acc+15}], v[{A}:{A+3}], v[{B}:{B+3}], 0")
    I("s_branch P2_GIN")
    a.label("P2_GLOOP")
    for r in (sA0, sA1, sB0, sB1): I(f"s_add_u32 s{r}, s{r}, 4096")
    for u in range(4):
        I("s_waitcnt vmcnt(12)")
        mmf(FR + 16*u)
        if u == 0: a.label("P2_GIN")
        ld(u)
    I(f"s_sub_u32 s{sCNT}, s{sCNT}, 1")
    I(f"s_cmp_lg_u32 s{sCNT}, 0")
    I("s_cbranch_scc1 P2_GLOOP")
    WA, OB = 72, 104
    for u in range(4):
        I(f"s_waitcnt vmcnt({12 - 4*u})")
        mmf(FR + 16*u)
    for s_ in range(4):
        for q, r in ((0, sWA0), (1, sWA1)):
            b = WA + 8*s_ + 4*q
            I(f"buffer_load_dwordx4 v[{b}:{b+3}], v{vLO}, s[{SWS}:{SWS+3}], s{r} offen offset:{1024*s_}")
    I(f"s_lshl_b32 s{sLS}, s{sJ}, 13")
    I(f"s_add_u32 s{sLS}, s{sLS}, 131072")
    for q, r in ((0, sWA0), (1, sWA1)):
        I(f"s_add_u32 m0, s{sLS}, {4096*q}")
        I(f"s_add_u32 s{sT0}, s{r}, 4096")
        for s_ in range(4):
            I(f"buffer_load_dwordx4 v{vLO}, s[{SWS}:{SWS+3}], s{sT0} offen offset:{1024*s_} lds")
    stamp(a, 7)
    I(f"s_setprio {SHPRIO2}")
    pollflags(7, "P2_F3P", "P2_F3GOT", 8)
    a.label("P2_F3GOT")
    I(f"v_and_b32 v2, 31, v{vL}")
    I(f"v_lshlrev_b32 v2, 2, v2")
    I(f"buffer_load_dword v4, v2, s[{SWS}:{SWS+3}], s32 offen")
    I(f"buffer_load_dword v5, v2, s[{SWS}:{SWS+3}], s33 offen")
    I("s_waitcnt vmcnt(0)")
    I(f"v_sub_f32 v4, 1.0, v4")
    I(f"v_sub_f32 v5, 1.0, v5")
    for tau in (3, 2, 1, 0):
        for k in range(16): I(f"v_mul_f32 v{ACC2+16*tau+k}, v{ACC2+16*tau+k}, v{4 + (tau & 1)}")
    I(f"s_add_u32 s{sOB2}, s{sOB0}, 4096")
    I(f"s_add_u32 s{sOB3}, s{sOB1}, 4096")
    I(f"v_add_u32 v2, s{sLS}, v{vLO}")
    I(f"s_mul_i32 s{sT0}, s{sJ}, 12288")
    I(f"v_add_u32 v4, s{sT0}, v{vLO}")
    for r in (1, 2, 3):
        I(f"s_xor_b32 s{sT0}, s{sJ}, {r}")
        I(f"s_mul_i32 s{sT0}, s{sT0}, 12288")
        I(f"v_add_u32 v{4+r}, s{sT0}, v{vLO}")
    I("s_waitcnt vmcnt(0)")
    I("s_barrier")
    stamp(a, 8)
    def ldo(s_):
        for q in range(2):
            r = (sOB0, sOB1)[q] if s_ < 4 else (sOB2, sOB3)[q]
            b = OB + 8*s_ + 4*q
            I(f"buffer_load_dwordx4 v[{b}:{b+3}], v{vLO}, s[{SWS}:{SWS+3}], s{r} offen offset:{1024*(s_%4)} sc0 sc1")
    for s_ in range(8): ldo(s_)
    for s_ in range(8):
        b = OB + 8*s_
        a.label(f"P2_CHK{s_}")
        I(f"s_waitcnt vmcnt({14 - 2*s_})")
        I(f"v_max3_u32 v0, v{b}, v{b+1}, v{b+2}")
        I(f"v_max3_u32 v0, v{b+3}, v{b+4}, v0")
        I(f"v_max3_u32 v0, v{b+5}, v{b+6}, v0")
        I(f"v_max_u32 v0, v{b+7}, v0")
        I(f"v_cmp_eq_u32 vcc, -1, v0")
        if s_ >= 4: I("s_waitcnt lgkmcnt(%d)" % (2*(7 - s_)))
        else: I("s_nop 0")
        I("s_nop 2")
        I(f"s_cbranch_vccnz P2_RETRY{s_}")
        a.label(f"P2_GO{s_}")
        wa = WA + 8*(s_ % 4)
        mm4(wa, wa+4, b, b+4)
        if s_ < 4:
            for q in range(2):
                I(f"ds_read_b128 v[{wa+4*q}:{wa+4*q+3}], v2 offset:{4096*q + 1024*s_}")
    I(f"s_lshl_b32 s{sT0}, s{sOR}, 15")
    I(f"s_lshl_b32 s{sT1}, s{sOC}, 6")
    I(f"s_add_u32 s{sT0}, s{sT0}, s{sT1}")
    I(f"v_and_b32 v2, 31, v{vL}")
    I(f"v_lshlrev_b32 v2, 10, v2")
    I(f"v_lshrrev_b32 v{vL}, 5, v{vL}")
    I(f"v_lshl_add_u32 v2, v{vL}, 5, v2")
    I("s_nop 2")
    for r in (3, 2, 1):
        for q in range(4):
            b = ACC2 + 16*r + 4*q
            I(f"ds_write_b128 v{4+r}, v[{b}:{b+3}] offset:{(r-1)*4096 + q*1024}")
    I("s_waitcnt lgkmcnt(0)")
    I("s_barrier")
    for r in range(3):
        for q in range(4):
            b = FR + 16*r + 4*q
            I(f"ds_read_b128 v[{b}:{b+3}], v4 offset:{r*4096 + q*1024}")
    for r in range(3):
        I(f"s_waitcnt lgkmcnt({8-4*r})")
        for k in range(16): I(f"v_add_f32 v{ACC2+k}, v{ACC2+k}, v{FR+16*r+k}")
    for r in range(8): I(f"v_cvt_pk_bf16_f32 v{FR+r}, v{ACC2+2*r}, v{ACC2+2*r+1}")
    I(f"buffer_store_dwordx4 v[{FR}:{FR+3}], v2, s[{SO}:{SO+3}], s{sT0} offen")
    I(f"buffer_store_dwordx4 v[{FR+4}:{FR+7}], v2, s[{SO}:{SO+3}], s{sT0} offen offset:16")
    if DBG:
        I("s_waitcnt vmcnt(0)")
        I("s_mov_b32 s65, s72")
    stamp(a, 8)
    stamp_flush(a, 9, SWS, sW, 0)
    I("s_endpgm")
    for s_ in range(8):
        a.label(f"P2_RETRY{s_}")
        I(f"s_cmp_eq_u32 s{sTO}, 0")
        I(f"s_cbranch_scc1 P2_GO{s_}")
        I(f"s_sub_u32 s{sTO}, s{sTO}, 1")
        if POLLS: I(f"s_sleep {POLLS}")
        for q_ in range(s_, 8): ldo(q_)
        I(f"s_branch P2_CHK{s_}")
    a.label("MK_END")
    I("s_endpgm")
    return a.text(), kdesc(KN, NV, 102, NV), 163840

DOC = """; ---------------------------------------------------------------------------------------------
; ---------------------------------------------------------------------------------------------
"""
if __name__ == "__main__":
    txt, kd, lds = gen()
    ref = open(f"cdna_kernels/{NAME}.s.ref").read().splitlines()
    head = [l for l in ref if l.startswith(";") and "@launch" not in l and "Override launch" not in l and "grid=ceil" not in l and "TODO" not in l][:12]
    s = "\n".join(head) + "\n" + f"; @launch grid=(256,1,1) block=(768,1,1) lds={lds}\n"
    s += '.amdgcn_target "amdgcn-amd-amdhsa--gfx950"\n' + DOC + '.text\n' + txt + '.section .rodata,"a"\n' + kd
    open(sys.argv[1], "w").write(s)
```
